```python
import torch

def _softmax(x, axis=-1):
    return torch.softmax(x, dim=axis)
def _gelu(x):
    return torch.nn.functional.gelu(x, approximate="tanh")
def _silu(x):
    return torch.nn.functional.silu(x)
def _sigmoid(x):
    return torch.sigmoid(x)
def _layernorm(x, axis=-1, eps=1e-5):
    m = x.mean(dim=axis, keepdim=True)
    v = x.var(dim=axis, keepdim=True, unbiased=False)
    return (x - m) / torch.sqrt(v + eps)
def _scatter_add(tgt, idx, src, axis=0):
    return tgt.clone().index_add_(axis, idx, src)
def _segment_sum(src, seg, n):
    out = torch.zeros((n,) + src.shape[1:], dtype=src.dtype)
    return out.index_add_(0, seg, src)
def _pad(x, pw):
    flat = tuple(v for pair in reversed(pw) for v in pair)
    return torch.nn.functional.pad(x, flat)

kernel_name = 'standalone__structured_sparse_n_m__ragged'

def setup_inputs():

    _w = (lambda a: (lambda t: t.to(torch.bfloat16) if t.is_floating_point() else t)(torch.as_tensor(a)))
    B, S, D = 4, 4096, 1024
    assert D % 4 == 0, "d_model must be divisible by M=4 for 2:4 sparsity"
    return {
        "x": _w((lambda *s: torch.randn(*s, dtype=torch.bfloat16) * 0.05)(B, S, D)),
        "w": _w((lambda *s: torch.randn(*s, dtype=torch.bfloat16) * 0.05)(D, D)),
        "b": _w((lambda *s: torch.randn(*s, dtype=torch.bfloat16) * 0.05)(D)),
    }

def reference(x, w, b):
    B, S, D = x.shape
    N, M = 2, 4
    G = D // M
    wg = w.reshape(G, M, D)
    mag = torch.abs(wg)
    order = torch.argsort(mag, 1)
    thr = (lambda x, i, axis: torch.take_along_dim(x, i, dim=axis))(mag, order[:, M - N:M - N + 1, :], 1)
    mask = (lambda x, dt: x.to(dt))(mag >= thr, w.dtype)
    wp = (wg * mask).reshape(D, D)
    return torch.einsum("bsd,df->bsf", x, wp) + b
```

```python
import sys

OUT = "standalone__structured_sparse_n_m__ragged.s"

WS_RC = 0x0
WS_WI = 0x1000
WS_WA = 0x40000
WS_RK = 0x200000
WS_RA = 0x400000
WS_SIZE = 0x10000000

class Cfg:
    B64 = True
    NB = 4
    PD = 3
    RCH = 5

cfg = Cfg()
for a in sys.argv[1:]:
    k, v = a.split("=")
    setattr(cfg, k, int(v))

if cfg.B64:
    RS = 4120
    BUF1 = 2056
else:
    RS = 4144
    BUF1 = 2064
PADOFF = 2048
LDS_X = 32 * RS
LDS_BT = LDS_X
LDS_TOTAL = LDS_X + 1024

L = []
def e(s=""):
    L.append("    " + s if s and not s.endswith(":") else s)

hdr = f"""; 2:4 structured-sparse GEMM  out = x @ prune24(w) + b   (B*S=16384, D=1024), bf16
; @launch kernel=prep_kernel grid=(32,1,1) block=(1024,1,1) lds=256
; @launch kernel=standalone__structured_sparse_n_m__ragged_kernel grid=(256,1,1) block=(256,1,1) lds={LDS_TOTAL}
.amdgcn_target "amdgcn-amd-amdhsa--gfx950"
.text
"""

def gen_prep():
    TBL = {0: 4, 1: 4, 2: 4, 4: 8, 8: 12, 3: 4, 5: 8, 6: 9, 7: 4, 9: 12, 10: 13, 11: 4, 12: 14, 13: 8, 14: 9, 15: 4}
    T64 = 0
    for k, v in TBL.items():
        T64 |= v << (4 * k)
    ET = {7: 1, 11: 2, 13: 2, 14: 2, 15: 3}
    E32 = 0
    for k, v in ET.items():
        E32 |= v << (2 * k)

    e(".globl prep_kernel")
    e(".p2align 8")
    e(".type prep_kernel,@function")
    e("prep_kernel:")
    e("s_cmp_ge_u32 s2, 32")
    e("s_cbranch_scc1 L_prep_end")
    e("s_load_dwordx2 s[4:5], s[0:1], 8")
    e("s_load_dwordx2 s[6:7], s[0:1], 40")
    e("v_and_b32 v1, 15, v0")
    e("v_lshrrev_b32 v2, 4, v0")
    e("v_lshlrev_b32 v3, 15, v2")
    e("v_lshl_add_u32 v3, v1, 2, v3")
    e("s_lshl_b32 s16, s2, 6")
    e("s_mov_b32 s20, 0x7fff7fff")
    e("s_mov_b32 s21, 0x00010001")
    e("s_mov_b32 s22, 0x000f000f")
    e(f"s_mov_b32 s24, {T64 & 0xffffffff:#x}")
    e(f"s_mov_b32 s25, {T64 >> 32:#x}")
    e(f"s_mov_b32 s26, {E32:#x}")
    e("s_mov_b32 s27, 0x05040100")
    e("s_mov_b32 s28, 0x07060302")
    e("s_mov_b32 s29, 0x01000100")
    e("s_mov_b32 s30, 0x0202")
    e("s_waitcnt lgkmcnt(0)")
    e("s_mov_b32 s8, s4")
    e("s_and_b32 s9, s5, 0xffff")
    e("s_mov_b32 s10, 0x200000")
    e("s_mov_b32 s11, 0x00020000")
    e("s_mov_b32 s12, s6")
    e("s_and_b32 s13, s7, 0xffff")
    e(f"s_mov_b32 s14, {WS_SIZE:#x}")
    e("s_mov_b32 s15, 0x00020000")
    D = 8
    for kk in range(0, 16, 2):
        e(f"buffer_load_dword v{D+kk}, v3, s[8:11], s16 offen")
        e(f"buffer_load_dword v{D+kk+1}, v3, s[8:11], s16 offen offset:2048")
        if kk < 14:
            e("s_add_u32 s16, s16, 4096")
    e("v_and_b32 v4, 9, v1")
    e("v_bfe_u32 v5, v1, 1, 1")
    e("v_bfe_u32 v6, v1, 2, 1")
    e("v_lshl_or_b32 v4, v5, 2, v4")
    e("v_lshl_or_b32 v4, v6, 1, v4")
    e("v_lshlrev_b32 v4, 1, v4")
    e("v_and_b32 v5, 1, v2")
    e("v_lshrrev_b32 v6, 1, v2")
    e("v_lshl_add_u32 v7, v5, 5, v4")
    e("v_lshl_add_u32 v24, v6, 6, v7")
    e("v_lshlrev_b32 v24, 4, v24")
    e("s_lshl_b32 s17, s2, 15")
    e(f"s_add_u32 s17, s17, {WS_WA:#x}")
    e("v_lshrrev_b32 v25, 3, v6")
    e("v_lshl_add_u32 v25, v25, 6, v7")
    e("v_lshlrev_b32 v25, 4, v25")
    e("v_and_b32 v26, 7, v6")
    e("v_lshl_add_u32 v25, v26, 1, v25")
    e("s_lshl_b32 s18, s2, 12")
    e(f"s_add_u32 s18, s18, {WS_WI:#x}")
    e("v_mov_b32 v36, 0")
    e("v_mov_b32 v37, 0")
    e("v_mov_b32 v38, 0")
    e("s_waitcnt vmcnt(0)")
    for g in range(4):
        a, b, c, d = (D + 4 * g + i for i in range(4))
        for i, r in enumerate((a, b, c, d)):
            e(f"v_and_b32 v{40+i}, s20, v{r}")
        e("v_pk_max_u16 v44, v40, v41")
        e("v_pk_min_u16 v45, v40, v41")
        e("v_pk_max_u16 v46, v42, v43")
        e("v_pk_min_u16 v47, v42, v43")
        e("v_pk_min_u16 v44, v44, v46")
        e("v_pk_max_u16 v45, v45, v47")
        e("v_pk_max_u16 v44, v44, v45")
        e("v_pk_max_u16 v44, v44, s21")
        for i in range(4):
            e(f"v_pk_sub_u16 v{40+i}, v44, v{40+i} clamp")
        for i in range(4):
            e(f"v_pk_min_u16 v{40+i}, v{40+i}, s21")
        e("v_lshl_or_b32 v40, v41, 1, v40")
        e("v_lshl_or_b32 v40, v42, 2, v40")
        e("v_lshl_or_b32 v40, v43, 3, v40")
        e("v_xor_b32 v40, s22, v40")
        for ee in range(2):
            sel = 27 + ee
            e(f"v_bfe_u32 v41, v40, {16*ee}, 4")
            e("v_lshlrev_b32 v42, 2, v41")
            e("v_lshrrev_b64 v[46:47], v42, s[24:25]")
            e("v_and_b32 v46, 15, v46")
            e(f"v_lshl_or_b32 v{36+ee}, v46, {4*g}, v{36+ee}")
            e(f"v_perm_b32 v48, v{b}, v{a}, s{sel}")
            e(f"v_perm_b32 v49, v{d}, v{c}, s{sel}")
            e("v_and_b32 v47, 3, v46")
            e("v_lshrrev_b32 v46, 2, v46")
            e("v_lshl_or_b32 v46, v46, 16, v47")
            e("v_mov_b32 v47, s29")
            e("v_mad_u32_u24 v46, v46, s30, v47")
            e(f"v_perm_b32 v{28+4*ee+g}, v49, v48, v46")
            e("v_lshlrev_b32 v42, 1, v41")
            e("v_lshrrev_b32 v43, v42, s26")
            e("v_and_b32 v43, 3, v43")
            e(f"v_lshl_or_b32 v38, v43, {2*(2*g+ee)}, v38")
    e("buffer_store_dwordx4 v[28:31], v24, s[12:15], s17 offen")
    e("buffer_store_dwordx4 v[32:35], v24, s[12:15], s17 offen offset:16")
    e("buffer_store_short v36, v25, s[12:15], s18 offen")
    e("buffer_store_short v37, v25, s[12:15], s18 offen offset:16")
    e("v_bcnt_u32_b32 v39, v38, 0")
    e("v_mov_b32 v40, v39")
    e("s_nop 1")
    for sh in (1, 2, 4, 8):
        e(f"v_add_u32_dpp v40, v40, v40 row_shr:{sh} row_mask:0xf bank_mask:0xf bound_ctrl:0")
        e("s_nop 1")
    e("v_add_u32_dpp v40, v40, v40 row_bcast:15 row_mask:0xa bank_mask:0xf")
    e("s_nop 1")
    e("v_add_u32_dpp v40, v40, v40 row_bcast:31 row_mask:0xc bank_mask:0xf")
    e("s_nop 1")
    e("v_and_b32 v41, 63, v0")
    e("v_lshrrev_b32 v42, 6, v0")
    e("v_lshlrev_b32 v43, 2, v42")
    e("v_cmp_eq_u32 vcc, 63, v41")
    e("s_and_saveexec_b64 s[32:33], vcc")
    e("ds_write_b32 v43, v40")
    e("s_mov_b64 exec, s[32:33]")
    e("s_waitcnt lgkmcnt(0)")
    e("s_barrier")
    e("v_and_b32 v43, 15, v0")
    e("v_lshlrev_b32 v44, 2, v43")
    e("ds_read_b32 v45, v44")
    e("v_cmp_lt_u32 vcc, v43, v42")
    e("s_waitcnt lgkmcnt(0)")
    e("s_nop 1")
    e("v_cndmask_b32 v46, 0, v45, vcc")
    e("s_nop 1")
    for sh in (1, 2, 4, 8):
        e(f"v_add_u32_dpp v45, v45, v45 row_shr:{sh} row_mask:0xf bank_mask:0xf bound_ctrl:0")
        e(f"v_add_u32_dpp v46, v46, v46 row_shr:{sh} row_mask:0xf bank_mask:0xf bound_ctrl:0")
        e("s_nop 1")
    e("v_readlane_b32 s34, v45, 15")
    e("v_readlane_b32 s35, v46, 15")
    e("v_sub_u32 v40, v40, v39")
    e("s_nop 1")
    e("v_add_u32 v40, s35, v40")
    e("s_add_u32 s36, s34, 15")
    e("s_lshr_b32 s36, s36, 4")
    e("s_lshl_b32 s37, s36, 10")
    e("s_lshl_b32 s38, s2, 20")
    e(f"s_add_u32 s38, s38, {WS_RA:#x}")
    e("s_lshl_b32 s39, s2, 16")
    e(f"s_add_u32 s39, s39, {WS_RK:#x}")
    e("v_mov_b32 v44, 0")
    e("v_mov_b32 v45, 0")
    e("v_mov_b32 v46, 0")
    e("v_mov_b32 v47, 0")
    e("v_lshlrev_b32 v48, 4, v0")
    e("L_prep_zf:")
    e("v_cmp_gt_u32 vcc, s37, v48")
    e("s_and_saveexec_b64 s[32:33], vcc")
    e("s_cbranch_execz L_prep_zf_done")
    e("buffer_store_dwordx4 v[44:47], v48, s[12:15], s38 offen")
    e("v_add_u32 v48, 0x4000, v48")
    e("s_mov_b64 exec, s[32:33]")
    e("s_branch L_prep_zf")
    e("L_prep_zf_done:")
    e("s_mov_b64 exec, s[32:33]")
    e("s_lshl_b32 s37, s36, 5")
    e(f"v_mov_b32 v44, {PADOFF | (PADOFF << 16):#x}")
    e("v_lshlrev_b32 v48, 2, v0")
    e("L_prep_kf:")
    e("v_cmp_gt_u32 vcc, s37, v48")
    e("s_and_saveexec_b64 s[32:33], vcc")
    e("s_cbranch_execz L_prep_kf_done")
    e("buffer_store_dword v44, v48, s[12:15], s39 offen")
    e("v_add_u32 v48, 0x1000, v48")
    e("s_mov_b64 exec, s[32:33]")
    e("s_branch L_prep_kf")
    e("L_prep_kf_done:")
    e("s_mov_b64 exec, s[32:33]")
    e("v_mov_b32 v44, s36")
    e("s_lshl_b32 s37, s2, 2")
    e("v_mov_b32 v48, 0")
    e("v_cmp_eq_u32 vcc, 0, v0")
    e("s_and_saveexec_b64 s[32:33], vcc")
    e(f"buffer_store_dword v44, v48, s[12:15], s37 offen offset:{WS_RC}")
    e("s_mov_b64 exec, s[32:33]")
    e("s_waitcnt vmcnt(0)")
    e("s_barrier")
    e("v_lshlrev_b32 v49, 5, v2")
    for g in range(4):
        for ee in range(2):
            for p in (2, 3):
                bit = 2 * (2 * g + ee) + (p - 2)
                lbl = f"L_prep_sc_{bit}"
                e(f"v_and_b32 v41, {1 << bit:#x}, v38")
                e("v_cmp_ne_u32 vcc, 0, v41")
                e("s_and_saveexec_b64 s[32:33], vcc")
                e(f"s_cbranch_execz {lbl}")
                e(f"v_and_b32 v41, {(1 << bit) - 1:#x}, v38")
                e("v_bcnt_u32_b32 v41, v41, v40")
                e("v_lshlrev_b32 v42, 1, v41")
                e(f"v_add_u32 v43, {2*(4*g+p)}, v49")
                e("buffer_store_short v43, v42, s[12:15], s39 offen")
                e("v_lshrrev_b32 v44, 3, v41")
                e("v_lshlrev_b32 v44, 9, v44")
                e("v_and_b32 v45, 7, v41")
                e("v_lshl_add_u32 v44, v45, 1, v44")
                e("v_lshl_add_u32 v44, v4, 4, v44")
                src = D + 4 * g + p
                if ee == 0:
                    e(f"buffer_store_short v{src}, v44, s[12:15], s38 offen")
                else:
                    e(f"buffer_store_short_d16_hi v{src}, v44, s[12:15], s38 offen offset:16")
                e(f"{lbl}:")
                e("s_mov_b64 exec, s[32:33]")
    e("L_prep_end:")
    e("s_endpgm")


def gen_main():
    NB, PD, RCH = cfg.NB, cfg.PD, cfg.RCH
    nxt = [1]
    def alloc(n, align=1):
        while nxt[0] % align:
            nxt[0] += 1
        r = nxt[0]
        nxt[0] += n
        return r
    vLB = alloc(1); vRB = alloc(1); vDX = alloc(1); vST = alloc(1); vBI = alloc(1)
    vT0 = alloc(1); vT1 = alloc(1)
    IDX = alloc(32, 4)
    ACC = alloc(64, 4)
    BF = alloc(8 * NB, 4)
    RAF = alloc(2 * RCH * 4, 4)
    RKO = alloc(2 * RCH * 4, 4)
    GA = alloc(8, 4)
    GD = alloc(16, 4)
    EP = alloc(16, 4)
    assert nxt[0] <= 256, nxt[0]

    def A(j, s):
        b = (s * 2 + j) * 4
        return f"a[{b}:{b+3}]"
    def acc(p, j):
        b = ACC + p * 32 + j * 16
        return f"v[{b}:{b+15}]"
    def bf(s):
        b = BF + (s % NB) * 8
        return b

    name = "standalone__structured_sparse_n_m__ragged_kernel"
    e(f".globl {name}")
    e(".p2align 8")
    e(f".type {name},@function")
    e(f"{name}:")
    e("s_cmp_ge_u32 s2, 256")
    e("s_cbranch_scc1 L_main_end")
    e("s_load_dwordx2 s[4:5], s[0:1], 0")
    e("s_load_dwordx2 s[6:7], s[0:1], 16")
    e("s_load_dwordx2 s[8:9], s[0:1], 24")
    e("s_load_dwordx2 s[10:11], s[0:1], 40")
    e(f"v_lshrrev_b32 v{vT0}, 6, v0")
    e("s_nop 0")
    e(f"v_readfirstlane_b32 s24, v{vT0}")
    e("s_and_b32 s25, s2, 7")
    e("s_lshr_b32 s26, s2, 3")
    e("s_and_b32 s27, s26, 3")
    e("s_lshr_b32 s26, s26, 2")
    e("s_lshl_b32 s25, s25, 3")
    e("s_add_u32 s26, s26, s25")
    e("s_lshl_b32 s28, s27, 2")
    e("s_add_u32 s28, s28, s24")
    e(f"v_and_b32 v{vT0}, 63, v0")
    e(f"v_and_b32 v{vT1}, 31, v0")
    e(f"v_bfe_u32 v{GA}, v0, 5, 1")
    e(f"v_mul_u32_u24 v{vRB}, {RS}, v{vT1}")
    e(f"v_lshl_add_u32 v{vLB}, v{GA}, 4, v{vRB}")
    e(f"v_lshlrev_b32 v{vDX}, 4, v{vT0}")
    e(f"v_lshlrev_b32 v{vST}, 11, v{vT1}")
    e(f"v_lshl_add_u32 v{vST}, v{GA}, 4, v{vST}")
    e("s_lshl_b32 s29, s24, 8")
    e(f"s_add_u32 s29, s29, {LDS_BT}")
    e(f"v_lshlrev_b32 v{vBI}, 5, v{GA}")
    e(f"v_add_u32 v{vBI}, s29, v{vBI}")
    e(f"v_lshlrev_b32 v{GA+1}, 4, v{GA}")
    e("s_waitcnt lgkmcnt(0)")
    e("s_mov_b32 s12, s4"); e("s_and_b32 s13, s5, 0xffff"); e("s_mov_b32 s14, 0x2000000"); e("s_mov_b32 s15, 0x00020000")
    e("s_mov_b32 s16, s8"); e("s_and_b32 s17, s9, 0xffff"); e("s_mov_b32 s18, 0x2000000"); e("s_mov_b32 s19, 0x00020000")
    e("s_mov_b32 s20, s10"); e("s_and_b32 s21, s11, 0xffff"); e(f"s_mov_b32 s22, {WS_SIZE:#x}"); e("s_mov_b32 s23, 0x00020000")
    e("s_mov_b32 s44, s6"); e("s_and_b32 s45, s7, 0xffff"); e("s_mov_b32 s46, 0x800"); e("s_mov_b32 s47, 0x00020000")
    e("s_lshl_b32 s30, s28, 3")
    e("s_load_dwordx2 s[30:31], s[10:11], s30")
    e("s_lshl_b32 s32, s26, 19")
    e("s_lshl_b32 s33, s24, 14")
    e("s_add_u32 s32, s32, s33")
    e(f"s_mul_i32 s35, s24, {8*RS}")

    def dma_block(p, interleave=None):
        ins = []
        for r in range(8):
            ins.append([f"s_add_u32 m0, s35, {r*RS + p*BUF1}",
                        f"s_add_u32 s36, s37, {r*2048}",
                        f"buffer_load_dwordx4 v{vDX}, s[12:15], s36 offen lds",
                        f"buffer_load_dwordx4 v{vDX}, s[12:15], s36 offen offset:1024 lds"])
        return ins

    e("s_mov_b32 s37, s32")
    for grp in dma_block(0):
        for i in grp: e(i)
    e("s_add_u32 s32, s32, 0x10000")
    e(f"v_lshlrev_b32 v{GA+2}, 1, v0")
    e("s_lshl_b32 s36, s27, 9")
    e(f"buffer_load_ushort v{GA+3}, v{GA+2}, s[44:47], s36 offen")
    for j in range(2):
        e(f"s_lshl_b32 s36, s28, 21")
        e(f"s_add_u32 s36, s36, {WS_RA + j*0x100000:#x}")
        for c in range(RCH):
            b = RAF + (j * RCH + c) * 4
            e(f"buffer_load_dwordx4 v[{b}:{b+3}], v{vDX}, s[20:23], s36 offen offset:{c*1024}" if c * 1024 < 4096 else
              f"s_add_u32 s38, s36, {c*1024}\n    buffer_load_dwordx4 v[{b}:{b+3}], v{vDX}, s[20:23], s38 offen")
        e(f"s_lshl_b32 s36, s28, 17")
        e(f"s_add_u32 s36, s36, {WS_RK + j*0x10000:#x}")
        for c in range(RCH):
            b = RKO + (j * RCH + c) * 4
            e(f"buffer_load_dwordx4 v[{b}:{b+3}], v{GA+1}, s[20:23], s36 offen offset:{c*32}")
    e("s_lshl_b32 s36, s28, 13")
    e(f"s_add_u32 s36, s36, {WS_WI:#x}")
    for j in range(2):
        for u in range(4):
            b = IDX + j * 16 + u * 4
            if j == 1 and u == 0:
                e("s_add_u32 s36, s36, 0x1000")
            e(f"buffer_load_dwordx4 v[{b}:{b+3}], v{vDX}, s[20:23], s36 offen offset:{u*1024}")
    e("s_lshl_b32 s36, s28, 16")
    e(f"s_add_u32 s36, s36, {WS_WA:#x}")
    e("s_add_u32 s38, s36, 0x8000")
    for s in range(32):
        for j in range(2):
            sreg = "s36" if j == 0 else "s38"
            e(f"buffer_load_dwordx4 {A(j,s)}, v{vDX}, s[20:23], {sreg} offen offset:{(s%4)*1024}")
        if s % 4 == 3 and s != 31:
            e("s_add_u32 s36, s36, 0x1000")
            e("s_add_u32 s38, s38, 0x1000")
    e("s_mov_b32 s37, s32")
    for grp in dma_block(1):
        for i in grp: e(i)
    e("s_add_u32 s32, s32, 0x10000")
    e(f"v_mov_b32 v{GA+4}, 0x3f803f80")
    e(f"v_mov_b32 v{GA+5}, 0x3f803f80")
    e(f"ds_write_b64 v{vRB}, v[{GA+4}:{GA+5}] offset:{PADOFF}")
    e(f"ds_write_b64 v{vRB}, v[{GA+4}:{GA+5}] offset:{BUF1+PADOFF}")
    e("s_waitcnt vmcnt(0)")
    e(f"v_lshlrev_b32 v{GA+3}, 16, v{GA+3}")
    e(f"v_lshlrev_b32 v{GA+2}, 2, v0")
    e(f"v_add_u32 v{GA+2}, {LDS_BT}, v{GA+2}")
    e(f"ds_write_b32 v{GA+2}, v{GA+3}")
    e("s_lshl_b32 s33, s26, 19")
    e("s_lshl_b32 s36, s28, 7")
    e("s_add_u32 s33, s33, s36")
    e("s_mov_b32 s34, 0x40000000")
    e("s_mov_b32 s39, 0")
    e("s_waitcnt lgkmcnt(0)")
    e("s_barrier")

    def bias_reads(p):
        r = []
        for j in range(2):
            for u in range(4):
                b = ACC + p * 32 + j * 16 + u * 4
                off = (32 * j + 16 * (u >> 1) + 4 * (u & 1)) * 4
                r.append(f"ds_read_b128 v[{b}:{b+3}], v{vBI} offset:{off}")
        return r

    def b_reads(p, s):
        b = bf(s)
        base = p * BUF1 + 64 * s
        if cfg.B64:
            return [f"ds_read_b64 v[{b}:{b+1}], v{vLB} offset:{base}",
                    f"ds_read_b64 v[{b+2}:{b+3}], v{vLB} offset:{base+8}",
                    f"ds_read_b64 v[{b+4}:{b+5}], v{vLB} offset:{base+32}",
                    f"ds_read_b64 v[{b+6}:{b+7}], v{vLB} offset:{base+40}"]
        return [f"ds_read_b128 v[{b}:{b+3}], v{vLB} offset:{base}",
                f"ds_read_b128 v[{b+4}:{b+7}], v{vLB} offset:{base+32}"]
    NR = 4 if cfg.B64 else 2

    for i in bias_reads(0): e(i)
    for s in range(PD):
        for i in b_reads(0, s): e(i)

    ds = []
    def issue(tag, ins):
        e(ins); ds.append(tag)
    def wait_for(tag):
        idx = max(i for i, t in enumerate(ds) if t == tag)
        n = len(ds) - 1 - idx
        n = min(n, 15)
        e(f"s_waitcnt lgkmcnt({n})")
    for _ in range(8): ds.append("bias0")
    for s in range(PD):
        for _ in range(NR): ds.append(("B", 0, s))

    uid = [0]
    def gather_block(p, j, c, gs):
        uid[0] += 1
        lbl = f"L_g{uid[0]}"
        e(f"s_cmp_le_u32 s{30+j}, {c}")
        e(f"s_cbranch_scc1 {lbl}")
        ko = RKO + (j * RCH + c) * 4
        for el in range(8):
            e(f"v_add_u32_sdwa v{GA+el}, v{vRB}, v{ko + (el>>1)} dst_sel:DWORD dst_unused:UNUSED_PAD src0_sel:DWORD src1_sel:WORD_{el&1}")
        for el in range(8):
            e(f"ds_read_u16 v{GD + gs*8 + (el&1)*4 + (el>>1)}, v{GA+el} offset:{p*BUF1}")
        e(f"{lbl}:")
        ds.append(("Gmark", p, j, c))
    def mfma_block(p, j, c, gs):
        uid[0] += 1
        lbl = f"L_m{uid[0]}"
        e(f"s_cmp_le_u32 s{30+j}, {c}")
        e(f"s_cbranch_scc1 {lbl}")
        idx = max(i for i, t in enumerate(ds) if t == ("Gmark", p, j, c))
        n = sum(1 for t in ds[idx+1:] if not (isinstance(t, tuple) and t[0] == "Gmark"))
        e(f"s_waitcnt lgkmcnt({min(n,15)})")
        ra = RAF + (j * RCH + c) * 4
        for m in range(4):
            e(f"v_lshl_or_b32 v{GD+gs*8+m}, v{GD+gs*8+4+m}, 16, v{GD+gs*8+m}")
        e("s_nop 1")
        e(f"v_mfma_f32_32x32x16_bf16 {acc(p,j)}, v[{ra}:{ra+3}], v[{GD+gs*8}:{GD+gs*8+3}], {acc(p,j)}")
        e(f"{lbl}:")

    def wait_for2(tag):
        idx = max(i for i, t in enumerate(ds) if t == tag)
        n = sum(1 for t in ds[idx+1:] if not (isinstance(t, tuple) and t[0] == "Gmark"))
        e(f"s_waitcnt lgkmcnt({min(n,15)})")

    e("L_loop:")
    first_ds_len = None
    for p in range(2):
        extras = {s: [] for s in range(32)}
        q = p ^ 1
        for j in range(2):
            lst = []
            for i in range(8):
                a0 = ACC + q * 32 + j * 16 + 2 * i
                lst.append(f"v_cvt_pk_bf16_f32 v{EP + j*8 + i}, v{a0}, v{a0+1}")
            lst.append(f"buffer_store_dwordx4 v[{EP+j*8}:{EP+j*8+3}], v{vST}, s[16:19], s34 offen offset:{64*j}")
            lst.append(f"buffer_store_dwordx4 v[{EP+j*8+4}:{EP+j*8+7}], v{vST}, s[16:19], s34 offen offset:{64*j+32}")
            extras[1 + 2 * j] += [("raw", x) for x in lst[:5]]
            extras[2 + 2 * j] += [("raw", x) for x in lst[5:]]
        br = bias_reads(q)
        extras[6] += [("ds", f"bias{q}", x) for x in br[:4]]
        extras[7] += [("ds", f"bias{q}", x) for x in br[4:]]
        z = 0
        for c in range(RCH):
            for j in range(2):
                extras[2 * z + 1].append(("G", j, c, z & 1))
                extras[2 * z + 4].append(("M", j, c, z & 1))
                z += 1
        assert 2 * (z - 1) + 4 < 32 - PD
        dma = dma_block(p)
        for s in range(32):
            wait_for2(("B", p, s))
            if s == 0:
                wait_for2(f"bias{p}")
            e(f"v_smfmac_f32_32x32x32_bf16 {acc(p,0)}, {A(0,s)}, v[{bf(s)}:{bf(s)+7}], v{IDX + (s>>1)}" + (" abid:1" if s & 1 else ""))
            for x in extras[s]:
                if x[0] == "raw": e(x[1])
                elif x[0] == "ds": issue(x[1], x[2])
                elif x[0] == "G": gather_block(p, x[1], x[2], x[3])
                elif x[0] == "M": mfma_block(p, x[1], x[2], x[3])
            e(f"v_smfmac_f32_32x32x32_bf16 {acc(p,1)}, {A(1,s)}, v[{bf(s)}:{bf(s)+7}], v{IDX + 16 + (s>>1)}" + (" abid:1" if s & 1 else ""))
            if s == 32 - PD - 1:
                for j in range(2):
                    uid[0] += 1
                    u = uid[0]
                    e(f"s_cmp_le_u32 s{30+j}, {RCH}")
                    e(f"s_cbranch_scc1 L_sp_end{u}")
                    e(f"s_mov_b32 s40, {RCH}")
                    e(f"v_bfe_u32 v{GA}, v0, 5, 1")
                    e(f"v_lshlrev_b32 v{EP+8}, 4, v{GA}")
                    e(f"L_sp{u}:")
                    e("s_lshl_b32 s36, s28, 21")
                    e(f"s_add_u32 s36, s36, {WS_RA + j*0x100000:#x}")
                    e("s_lshl_b32 s38, s40, 10")
                    e("s_add_u32 s36, s36, s38")
                    e(f"buffer_load_dwordx4 v[{EP}:{EP+3}], v{vDX}, s[20:23], s36 offen")
                    e("s_lshl_b32 s36, s28, 17")
                    e(f"s_add_u32 s36, s36, {WS_RK + j*0x10000:#x}")
                    e("s_lshl_b32 s38, s40, 5")
                    e("s_add_u32 s36, s36, s38")
                    e(f"buffer_load_dwordx4 v[{EP+4}:{EP+7}], v{EP+8}, s[20:23], s36 offen")
                    e("s_waitcnt vmcnt(0)")
                    for el in range(8):
                        e(f"v_add_u32_sdwa v{GA+el}, v{vRB}, v{EP+4 + (el>>1)} dst_sel:DWORD dst_unused:UNUSED_PAD src0_sel:DWORD src1_sel:WORD_{el&1}")
                    for el in range(8):
                        e(f"ds_read_u16 v{GD + (el&1)*4 + (el>>1)}, v{GA+el} offset:{p*BUF1}")
                    e("s_waitcnt lgkmcnt(0)")
                    for m in range(4):
                        e(f"v_lshl_or_b32 v{GD+m}, v{GD+4+m}, 16, v{GD+m}")
                    e("s_nop 1")
                    e(f"v_mfma_f32_32x32x16_bf16 {acc(p,j)}, v[{EP}:{EP+3}], v[{GD}:{GD+3}], {acc(p,j)}")
                    e("s_add_u32 s40, s40, 1")
                    e(f"s_cmp_lt_u32 s40, s{30+j}")
                    e(f"s_cbranch_scc1 L_sp{u}")
                    e(f"L_sp_end{u}:")
            sn = s + PD
            if sn < 32:
                for i in b_reads(p, sn): issue(("B", p, sn), i)
            else:
                if sn == 32:
                    e("s_waitcnt vmcnt(0) lgkmcnt(0)")
                    e("s_barrier")
                    e("s_mov_b32 s34, s33")
                    e("s_add_u32 s33, s33, 0x10000")
                    e("s_add_u32 s39, s39, 1")
                    e("s_cmp_lt_u32 s39, 7")
                    e("s_cselect_b32 s37, s32, 0x40000000")
                    e("s_add_u32 s32, s32, 0x10000")
                for i in b_reads(p ^ 1, sn - 32): issue(("B", p ^ 1, sn - 32), i)
                k = sn - 32
                per = (8 + PD - 1) // PD
                for grp in dma[k * per:(k + 1) * per]:
                    for i in grp: e(i)
    e("s_cmp_lt_u32 s39, 8")
    e("s_cbranch_scc1 L_loop")
    e("s_nop 15")
    for j in range(2):
        for i in range(8):
            a0 = ACC + 32 + j * 16 + 2 * i
            e(f"v_cvt_pk_bf16_f32 v{EP + j*8 + i}, v{a0}, v{a0+1}")
        e(f"buffer_store_dwordx4 v[{EP+j*8}:{EP+j*8+3}], v{vST}, s[16:19], s34 offen offset:{64*j}")
        e(f"buffer_store_dwordx4 v[{EP+j*8+4}:{EP+j*8+7}], v{vST}, s[16:19], s34 offen offset:{64*j+32}")
    e("L_main_end:")
    e("s_endpgm")


gen_prep()
gen_main()

tail = """
.section .rodata,"a"
.p2align 6
.amdhsa_kernel prep_kernel
  .amdhsa_next_free_vgpr 64
  .amdhsa_next_free_sgpr 64
  .amdhsa_accum_offset 64
  .amdhsa_group_segment_fixed_size 0
  .amdhsa_kernarg_size 48
  .amdhsa_user_sgpr_count 2
  .amdhsa_user_sgpr_kernarg_segment_ptr 1
  .amdhsa_system_sgpr_workgroup_id_x 1
.end_amdhsa_kernel
.p2align 6
.amdhsa_kernel standalone__structured_sparse_n_m__ragged_kernel
  .amdhsa_next_free_vgpr 512
  .amdhsa_next_free_sgpr 64
  .amdhsa_accum_offset 256
  .amdhsa_group_segment_fixed_size 0
  .amdhsa_kernarg_size 48
  .amdhsa_user_sgpr_count 2
  .amdhsa_user_sgpr_kernarg_segment_ptr 1
  .amdhsa_system_sgpr_workgroup_id_x 1
.end_amdhsa_kernel
"""
open(OUT, "w").write(hdr + "\n".join(L) + "\n" + tail)
print("wrote", OUT, len(L), "lines")
```

```python
import sys

OUT = "standalone__structured_sparse_n_m__ragged.s"
import os
OUT = os.environ.get("GEN_OUT", OUT)

WS_CNT = 0x0
WS_WI = 0x4000
WS_WA = 0x40000
WS_ENT = 0x200000
WS_SIZE = 0x10000000

class Cfg:
    B64 = 0
    RU = 5
    LW = 8
    TD = 2
    DS0 = 0
    DSS = 2
    NB = 4
    PD = 3
    RCH = 8
    PROF = 0
    NPF = 128
    PB = 4
    RPER = 33
    RLAT = 6
    BUD = 5
    CVM = 2
    NODMA = 0
    NORES = 0
    NOEPI = 0
    NOREAD = 0

cfg = Cfg()
for a in sys.argv[1:]:
    k, v = a.split("=")
    setattr(cfg, k, int(v))

if cfg.B64:
    RS = 4120
    BUF1 = 2056
else:
    RS = 4144
    BUF1 = 2064
PADOFF = 2048
LDS_X = 32 * RS
LDS_BT = LDS_X
LDS_TR = LDS_X + 1024
TRS = 144
LDS_SCR = LDS_TR + 4 * 32 * TRS
LDS_TOTAL = LDS_SCR + 256

L = []
def e(s=""):
    L.append("    " + s if s and not s.endswith(":") else s)

hdr = f"""; 2:4 structured-sparse GEMM  out = x @ prune24(w) + b   (B*S=16384, D=1024), bf16
; @launch kernel=prep_kernel grid=({64 + cfg.NPF},1,1) block=(512,1,1) lds=0
; @launch kernel=standalone__structured_sparse_n_m__ragged_kernel grid=(256,1,1) block=(256,1,1) lds={LDS_TOTAL}
.amdgcn_target "amdgcn-amd-amdhsa--gfx950"
.text
"""

def gen_prep():
    TBL = {0: 4, 1: 4, 2: 4, 4: 8, 8: 12, 3: 4, 5: 8, 6: 9, 7: 4, 9: 12, 10: 13, 11: 4, 12: 14, 13: 8, 14: 9, 15: 4}
    T64 = 0
    for k, v in TBL.items():
        T64 |= v << (4 * k)
    ET = {7: 1, 11: 2, 13: 2, 14: 2, 15: 3}
    E32 = 0
    for k, v in ET.items():
        E32 |= v << (2 * k)

    e(".globl prep_kernel")
    e(".p2align 8")
    e(".type prep_kernel,@function")
    e("prep_kernel:")
    e(f"s_cmp_ge_u32 s2, {64 + cfg.NPF}")
    e("s_cbranch_scc1 L_prep_end")
    e("s_cmp_ge_u32 s2, 64")
    e("s_cbranch_scc1 L_prep_pf")
    e("s_load_dwordx2 s[4:5], s[0:1], 8")
    e("s_load_dwordx2 s[6:7], s[0:1], 40")
    e("v_lshlrev_b32 v3, 2, v0")
    e("s_lshl_b32 s16, s2, 15")
    e("s_mov_b32 s20, 0x7fff7fff")
    e("s_mov_b32 s21, 0x00010001")
    e("s_mov_b32 s22, 0x000f000f")
    e(f"s_mov_b32 s24, {T64 & 0xffffffff:#x}")
    e(f"s_mov_b32 s25, {T64 >> 32:#x}")
    e(f"s_mov_b32 s26, {E32:#x}")
    e("s_mov_b32 s27, 0x05040100")
    e("s_mov_b32 s28, 0x07060302")
    e("s_mov_b32 s29, 0x01000100")
    e("s_mov_b32 s30, 0x0202")
    e("s_waitcnt lgkmcnt(0)")
    e("s_mov_b32 s8, s4")
    e("s_and_b32 s9, s5, 0xffff")
    e("s_mov_b32 s10, 0x200000")
    e("s_mov_b32 s11, 0x00020000")
    e("s_mov_b32 s12, s6")
    e("s_and_b32 s13, s7, 0xffff")
    e(f"s_mov_b32 s14, {WS_SIZE:#x}")
    e("s_mov_b32 s15, 0x00020000")
    D = 8
    for kk in range(0, 16, 2):
        e(f"buffer_load_dword v{D+kk}, v3, s[8:11], s16 offen")
        e(f"buffer_load_dword v{D+kk+1}, v3, s[8:11], s16 offen offset:2048")
        if kk < 14:
            e("s_add_u32 s16, s16, 4096")
    e("v_and_b32 v1, 15, v0")
    e("v_lshrrev_b32 v2, 4, v0")
    e("v_and_b32 v4, 9, v1")
    e("v_bfe_u32 v5, v1, 1, 1")
    e("v_bfe_u32 v6, v1, 2, 1")
    e("v_lshl_or_b32 v4, v5, 2, v4")
    e("v_lshl_or_b32 v4, v6, 1, v4")
    e("v_lshlrev_b32 v4, 1, v4")
    e("v_lshlrev_b32 v24, 15, v2")
    e("v_lshl_add_u32 v24, v4, 4, v24")
    e("v_lshlrev_b32 v25, 12, v2")
    e("v_lshl_add_u32 v25, v4, 4, v25")
    e("s_lshr_b32 s31, s2, 1")
    e("s_and_b32 s32, s2, 1")
    e("s_lshl_b32 s17, s31, 10")
    e("s_lshl_b32 s33, s32, 9")
    e("s_add_u32 s17, s17, s33")
    e(f"s_add_u32 s17, s17, {WS_WA:#x}")
    e("s_lshr_b32 s18, s31, 3")
    e("s_lshl_b32 s18, s18, 10")
    e("s_add_u32 s18, s18, s33")
    e("s_and_b32 s34, s31, 7")
    e("s_lshl_b32 s34, s34, 1")
    e("s_add_u32 s18, s18, s34")
    e(f"s_add_u32 s18, s18, {WS_WI:#x}")
    e("v_mov_b32 v36, 0")
    e("v_mov_b32 v37, 0")
    e("v_mov_b32 v38, 0")
    for g in range(4):
        a, b, c, d = (D + 4 * g + i for i in range(4))
        e(f"s_waitcnt vmcnt({12 - 4*g})")
        for i, r in enumerate((a, b, c, d)):
            e(f"v_and_b32 v{40+i}, s20, v{r}")
        e("v_pk_max_u16 v44, v40, v41")
        e("v_pk_min_u16 v45, v40, v41")
        e("v_pk_max_u16 v46, v42, v43")
        e("v_pk_min_u16 v47, v42, v43")
        e("v_pk_min_u16 v44, v44, v46")
        e("v_pk_max_u16 v45, v45, v47")
        e("v_pk_max_u16 v44, v44, v45")
        e("v_pk_max_u16 v44, v44, s21")
        for i in range(4):
            e(f"v_pk_sub_u16 v{40+i}, v44, v{40+i} clamp")
        for i in range(4):
            e(f"v_pk_min_u16 v{40+i}, v{40+i}, s21")
        e("v_lshl_or_b32 v40, v41, 1, v40")
        e("v_lshl_or_b32 v40, v42, 2, v40")
        e("v_lshl_or_b32 v40, v43, 3, v40")
        e("v_xor_b32 v40, s22, v40")
        for ee in range(2):
            sel = 27 + ee
            e(f"v_bfe_u32 v41, v40, {16*ee}, 4")
            e("v_lshlrev_b32 v42, 2, v41")
            e("v_lshrrev_b64 v[46:47], v42, s[24:25]")
            e("v_and_b32 v46, 15, v46")
            e(f"v_lshl_or_b32 v{36+ee}, v46, {4*g}, v{36+ee}")
            e(f"v_perm_b32 v48, v{b}, v{a}, s{sel}")
            e(f"v_perm_b32 v49, v{d}, v{c}, s{sel}")
            e("v_and_b32 v47, 3, v46")
            e("v_lshrrev_b32 v46, 2, v46")
            e("v_lshl_or_b32 v46, v46, 16, v47")
            e("v_mov_b32 v47, s29")
            e("v_mad_u32_u24 v46, v46, s30, v47")
            e(f"v_perm_b32 v{28+4*ee+g}, v49, v48, v46")
            e("v_lshlrev_b32 v42, 1, v41")
            e("v_lshrrev_b32 v43, v42, s26")
            e("v_and_b32 v43, 3, v43")
            e(f"v_lshl_or_b32 v38, v43, {2*(2*g+ee)}, v38")
    e("buffer_store_dwordx4 v[28:31], v24, s[12:15], s17 offen")
    e("buffer_store_dwordx4 v[32:35], v24, s[12:15], s17 offen offset:16")
    e("buffer_store_short v36, v25, s[12:15], s18 offen")
    e("buffer_store_short v37, v25, s[12:15], s18 offen offset:16")
    e("v_bcnt_u32_b32 v39, v38, 0")
    e("v_mov_b32 v40, v39")
    e("s_nop 1")
    for sh in (1, 2, 4, 8):
        e(f"v_add_u32_dpp v40, v40, v40 row_shr:{sh} row_mask:0xf bank_mask:0xf bound_ctrl:0")
        e("s_nop 1")
    e("v_lshlrev_b32 v41, 8, v2")
    e("s_lshl_b32 s35, s2, 2")
    e("v_cmp_eq_u32 vcc, 15, v1")
    e("s_and_saveexec_b64 s[36:37], vcc")
    e(f"buffer_store_dword v40, v41, s[12:15], s35 offen offset:{WS_CNT}")
    e("s_mov_b64 exec, s[36:37]")
    e("v_sub_u32 v40, v40, v39")
    e("v_lshlrev_b32 v41, 16, v2")
    e("s_lshl_b32 s35, s2, 10")
    e(f"s_add_u32 s35, s35, {WS_ENT:#x}")
    e("s_lshl_b32 s38, s2, 18")
    for g in range(4):
        for ee in range(2):
            for p in (2, 3):
                bit = 2 * (2 * g + ee) + (p - 2)
                lbl = f"L_prep_sc_{bit}"
                e(f"v_and_b32 v42, {1 << bit:#x}, v38")
                e("v_cmp_ne_u32 vcc, 0, v42")
                e("s_and_saveexec_b64 s[36:37], vcc")
                e(f"s_cbranch_execz {lbl}")
                e(f"v_and_b32 v42, {(1 << bit) - 1:#x}, v38")
                e("v_bcnt_u32_b32 v42, v42, v40")
                e("v_lshl_add_u32 v42, v42, 2, v41")
                src = D + 4 * g + p
                if ee == 0:
                    e(f"v_and_b32 v43, 0xffff, v{src}")
                else:
                    e(f"v_lshrrev_b32 v43, 16, v{src}")
                e(f"s_add_u32 s39, s38, {(g << 16) | (p << 24) | (ee << 26):#x}")
                e("v_or_b32 v43, s39, v43")
                e("v_lshl_add_u32 v43, v4, 26, v43")
                e("buffer_store_dword v43, v42, s[12:15], s35 offen")
                e(f"{lbl}:")
                e("s_mov_b64 exec, s[36:37]")
    e("s_endpgm")
    e("L_prep_pf:")
    e("s_load_dwordx2 s[4:5], s[0:1], 0")
    e("v_lshrrev_b32 v1, 6, v0")
    e("v_and_b32 v2, 63, v0")
    e("v_lshlrev_b32 v2, 7, v2")
    e("s_nop 0")
    e("v_readfirstlane_b32 s16, v1")
    e("s_and_b32 s17, s2, 7")
    e("s_sub_u32 s18, s2, 64")
    e("s_lshr_b32 s18, s18, 3")
    e("s_lshl_b32 s18, s18, 3")
    e("s_add_u32 s18, s18, s16")
    e("s_waitcnt lgkmcnt(0)")
    e("s_mov_b32 s8, s4")
    e("s_and_b32 s9, s5, 0xffff")
    e("s_mov_b32 s10, 0x2000000")
    e("s_mov_b32 s11, 0x00020000")
    nchunk = 64 * cfg.PB
    e("L_prep_pf_loop:")
    e(f"s_cmp_ge_u32 s18, {nchunk}")
    e("s_cbranch_scc1 L_prep_end")
    e("s_and_b32 s19, s18, 7")
    e("s_lshl_b32 s20, s17, 3")
    e("s_add_u32 s19, s19, s20")
    e("s_lshl_b32 s19, s19, 19")
    e("s_lshr_b32 s20, s18, 3")
    e("s_lshl_b32 s20, s20, 13")
    e("s_add_u32 s19, s19, s20")
    e("buffer_load_dword v3, v2, s[8:11], s19 offen")
    e(f"s_add_u32 s18, s18, {cfg.NPF}")
    e("s_branch L_prep_pf_loop")
    e("L_prep_end:")
    e("s_endpgm")


def gen_main():
    NB, PD, RCH, RU, LW = cfg.NB, cfg.PD, cfg.RCH, cfg.RU, cfg.LW
    nxt = [1]
    def alloc(n, align=1):
        while nxt[0] % align:
            nxt[0] += 1
        r = nxt[0]
        nxt[0] += n
        return r
    vLB = alloc(1); vRB = alloc(1); vDX = alloc(1); vST = alloc(1); vBI = alloc(1)
    vTC = alloc(1); vTR = alloc(1)
    vTW = 0
    IDX = alloc(32, 4)
    ACC = alloc(64, 4)
    BF = alloc(8 * NB, 4)
    RAF = alloc(2 * RCH * 4, 4)
    RIX = alloc(2 * RCH // 2, 4)
    RPK = alloc(2 * RCH * 2, 4)
    GD = alloc(16, 4)
    assert nxt[0] <= 256, nxt[0]

    def A(j, s):
        b = (s * 2 + j) * 4
        return f"a[{b}:{b+3}]"
    def acc(p, j):
        b = ACC + p * 32 + j * 16
        return f"v[{b}:{b+15}]"
    def bf(s):
        return BF + (s % NB) * 8

    ds = []
    vm = []
    def is_mark(t):
        return isinstance(t, tuple) and t[0] == "Gmark"
    def ds_issue(tag, ins):
        e(ins); ds.append(tag)
    def vm_issue(tag, ins):
        e(ins); vm.append(tag)
    def ds_n(tag):
        idx = max(i for i, t in enumerate(ds) if t == tag)
        return sum(1 for t in ds[idx+1:] if not is_mark(t))
    def vm_n(tag):
        idx = max(i for i, t in enumerate(vm) if t == tag)
        return len(vm) - 1 - idx
    def wait(dtag=None, vtag=None):
        w = []
        if vtag is not None:
            w.append(f"vmcnt({min(vm_n(vtag), 63)})")
        if dtag is not None:
            w.append(f"lgkmcnt({min(ds_n(dtag), 15)})")
        e("s_waitcnt " + " ".join(w))

    name = "standalone__structured_sparse_n_m__ragged_kernel"
    e(f".globl {name}")
    e(".p2align 8")
    e(f".type {name},@function")
    e(f"{name}:")
    e("s_cmp_ge_u32 s2, 256")
    e("s_cbranch_scc1 L_main_end")
    if cfg.PROF:
        e("s_memtime s[48:49]")
        e("s_mov_b32 s52, 0")
    e("s_load_dwordx2 s[4:5], s[0:1], 0")
    e("s_load_dwordx2 s[6:7], s[0:1], 16")
    e("s_load_dwordx2 s[8:9], s[0:1], 24")
    e("s_load_dwordx2 s[10:11], s[0:1], 40")
    e(f"v_lshrrev_b32 v{vTR}, 6, v0")
    e("s_nop 0")
    e(f"v_readfirstlane_b32 s24, v{vTR}")
    e("s_and_b32 s25, s2, 7")
    e("s_lshr_b32 s26, s2, 3")
    e("s_and_b32 s27, s26, 3")
    e("s_lshr_b32 s26, s26, 2")
    e("s_lshl_b32 s25, s25, 3")
    e("s_add_u32 s26, s26, s25")
    e("s_lshl_b32 s28, s27, 2")
    e("s_add_u32 s28, s28, s24")
    T = GD
    e(f"v_and_b32 v{T}, 63, v0")
    e(f"v_and_b32 v{T+1}, 31, v0")
    e(f"v_bfe_u32 v{T+2}, v0, 5, 1")
    e(f"v_mul_u32_u24 v{vRB}, {RS}, v{T+1}")
    e(f"v_lshl_add_u32 v{vLB}, v{T+2}, 4, v{vRB}")
    e(f"v_lshlrev_b32 v{vDX}, 4, v{T}")
    e(f"v_lshrrev_b32 v{T+6}, 3, v{T}")
    e(f"v_and_b32 v{T+7}, 7, v{T}")
    e(f"v_lshlrev_b32 v{vST}, 11, v{T+6}")
    e(f"v_lshl_add_u32 v{vST}, v{T+7}, 4, v{vST}")
    e(f"s_mul_i32 s29, s24, {32*TRS}")
    e(f"s_add_u32 s29, s29, {LDS_TR}")
    e(f"v_mul_u32_u24 v{vTR}, {TRS}, v{T+6}")
    e(f"v_lshl_add_u32 v{vTR}, v{T+7}, 4, v{vTR}")
    e(f"v_add_u32 v{vTR}, s29, v{vTR}")
    e(f"v_mul_u32_u24 v{T+8}, {TRS}, v{T+1}")
    e(f"v_lshl_add_u32 v{T+8}, v{T+2}, 4, v{T+8}")
    e(f"v_add_u32 v{T+8}, s29, v{T+8}")
    e(f"v_lshlrev_b32 v{vTC}, 6, v{T}")
    e("s_lshl_b32 s29, s24, 8")
    e(f"s_add_u32 s29, s29, {LDS_BT}")
    e(f"v_lshlrev_b32 v{vBI}, 5, v{T+2}")
    e(f"v_add_u32 v{vBI}, s29, v{vBI}")
    e(f"v_lshlrev_b32 v{T+3}, 3, v{T+2}")
    e(f"v_lshlrev_b32 v{T+4}, 1, v0")
    e("s_waitcnt lgkmcnt(0)")
    e("s_mov_b32 s12, s4"); e("s_and_b32 s13, s5, 0xffff"); e("s_mov_b32 s14, 0x2000000"); e("s_mov_b32 s15, 0x00020000")
    e("s_mov_b32 s16, s8"); e("s_and_b32 s17, s9, 0xffff"); e("s_mov_b32 s18, 0x2000000"); e("s_mov_b32 s19, 0x00020000")
    e("s_mov_b32 s20, s10"); e("s_and_b32 s21, s11, 0xffff"); e(f"s_mov_b32 s22, {WS_SIZE:#x}"); e("s_mov_b32 s23, 0x00020000")
    e("s_mov_b32 s44, s6"); e("s_and_b32 s45, s7, 0xffff"); e("s_mov_b32 s46, 0x800"); e("s_mov_b32 s47, 0x00020000")
    e("s_lshl_b32 s37, s26, 19")
    e("s_lshl_b32 s33, s24, 14")
    e("s_add_u32 s37, s37, s33")
    e(f"s_mul_i32 s35, s24, {8*RS}")
    e("s_lshl_b32 s41, s26, 19")
    e("s_lshl_b32 s33, s27, 14")
    e("s_add_u32 s41, s41, s33")
    e("s_lshl_b32 s33, s24, 12")
    e("s_add_u32 s41, s41, s33")
    e(f"s_add_u32 s41, s41, {cfg.TD * 0x10000}")

    def dma_groups(p, tag):
        ins = []
        for r in range(8):
            ins.append([("raw", f"s_add_u32 m0, s35, {r*RS + p*BUF1}"),
                        ("raw", f"s_add_u32 s36, s37, {r*2048}"),
                        ("vm", tag, f"buffer_load_dwordx4 v{vDX}, s[12:15], s36 offen lds"),
                        ("vm", tag, f"buffer_load_dwordx4 v{vDX}, s[12:15], s36 offen offset:1024 lds")])
        return ins
    def emit_items(items):
        for x in items:
            if x[0] == "raw": e(x[1])
            elif x[0] == "ds": ds_issue(x[1], x[2])
            elif x[0] == "vm": vm_issue(x[1], x[2])
            elif x[0] == "G": gather_block(*x[1:])
            elif x[0] == "M": mfma_block(*x[1:])
            elif x[0] == "W": wait(dtag=x[1])
            else: raise Exception(x)

    TT = ACC
    e(f"v_lshlrev_b32 v{TT+3}, 2, v{T}")
    e(f"v_lshlrev_b32 v{TT+4}, 10, v{T}")
    for j in range(2):
        e("s_lshl_b32 s36, s28, 9")
        e(f"s_add_u32 s36, s36, {WS_CNT + j*256:#x}")
        vm_issue("ent", f"buffer_load_dword v{TT+8+j}, v{TT+3}, s[20:23], s36 offen")
        e("s_lshl_b32 s36, s28, 17")
        e(f"s_add_u32 s36, s36, {WS_ENT + j*0x10000:#x}")
        vm_issue("ent", f"buffer_load_dwordx4 v[{TT+12+8*j}:{TT+15+8*j}], v{TT+4}, s[20:23], s36 offen")
        vm_issue("ent", f"buffer_load_dwordx4 v[{TT+16+8*j}:{TT+19+8*j}], v{TT+4}, s[20:23], s36 offen offset:16")
    for grp in dma_groups(0, "X0"):
        emit_items(grp)
    e("s_add_u32 s37, s37, 0x10000")
    e("s_lshl_b32 s36, s27, 9")
    vm_issue("misc", f"buffer_load_ushort v{T+5}, v{T+4}, s[44:47], s36 offen")
    e("s_lshl_b32 s36, s28, 13")
    e(f"s_add_u32 s36, s36, {WS_WI:#x}")
    for j in range(2):
        for u in range(4):
            b = IDX + j * 16 + u * 4
            if j == 1 and u == 0:
                e("s_add_u32 s36, s36, 0x1000")
            vm_issue("misc2", f"buffer_load_dwordx4 v[{b}:{b+3}], v{vDX}, s[20:23], s36 offen offset:{u*1024}")
    e("s_lshl_b32 s42, s28, 16")
    e(f"s_add_u32 s42, s42, {WS_WA:#x}")
    e("s_add_u32 s43, s42, 0x8000")
    def w_loads(s):
        r = []
        if s % 4 == 0 and s:
            r.append(("raw", "s_add_u32 s42, s42, 0x1000"))
            r.append(("raw", "s_add_u32 s43, s43, 0x1000"))
        for j in range(2):
            r.append(("vm", ("W", s), f"buffer_load_dwordx4 {A(j,s)}, v{vDX}, s[20:23], s{42+j} offen offset:{(s%4)*1024}"))
        return r
    for s in range(2):
        emit_items(w_loads(s))
    for s in range(2, LW):
        emit_items(w_loads(s))
    e(f"s_add_u32 s36, s35, {BUF1}")
    e(f"v_add_u32 v{TT+5}, s36, v{vDX}")
    e(f"s_mul_i32 s38, s24, {32*TRS}")
    e(f"s_add_u32 s38, s38, {LDS_TR}")
    e(f"v_add_u32 v{TT+6}, s38, v{vDX}")
    for i in range(4):
        e(f"v_mov_b32 v{TT+28+i}, 0")
    e(f"v_mov_b32 v{TT+32}, {PADOFF | (PADOFF << 16):#x}")
    e(f"v_add_u32 v{TT+7}, s38, v{TT+3}")
    for j in range(2):
        for c in range(RCH):
            e(f"ds_write_b128 v{TT+5}, v[{TT+28}:{TT+31}] offset:{(4*j + (c>>1))*RS + (c&1)*1024}")
        e(f"ds_write_b128 v{TT+6}, v[{TT+28}:{TT+31}] offset:{j*1024}")
    e(f"ds_write_b32 v{TT+7}, v{TT+32} offset:2048")
    wait(vtag="ent")
    for j in range(2):
        C = TT + 8 + j; S = TT + 33; E = TT + 12 + 8 * j
        e(f"v_mov_b32 v{S}, v{C}")
        e(f"v_cmp_lt_u32 vcc, 8, v{C}")
        for sh in (1, 2, 4, 8):
            e("s_nop 0")
            e(f"v_add_u32_dpp v{S}, v{S}, v{S} row_shr:{sh} row_mask:0xf bank_mask:0xf bound_ctrl:0")
            e("s_nop 0")
        e("s_nop 0")
        e(f"v_add_u32_dpp v{S}, v{S}, v{S} row_bcast:15 row_mask:0xa bank_mask:0xf")
        e("s_nop 1")
        e(f"v_add_u32_dpp v{S}, v{S}, v{S} row_bcast:31 row_mask:0xc bank_mask:0xf")
        e("s_nop 1")
        e(f"v_readlane_b32 s36, v{S}, 63")
        e(f"v_sub_u32 v{S}, v{S}, v{C}")
        e("s_cmp_lg_u64 vcc, 0")
        e(f"s_cselect_b32 s{64+j}, 1, 0")
        e(f"s_cmp_gt_u32 s36, {8*RCH}")
        e(f"s_cselect_b32 s{64+j}, 1, s{64+j}")
        e("s_add_u32 s36, s36, 7")
        e("s_lshr_b32 s36, s36, 3")
        e(f"s_cmp_eq_u32 s{64+j}, 0")
        e(f"s_cselect_b32 s{30+j}, s36, 0")
        e(f"s_cbranch_scc0 L_bld_skip{j}")
        for en in range(8):
            t = TT + 34
            e(f"v_cmp_lt_u32 vcc, {en}, v{C}")
            e("s_and_saveexec_b64 s[66:67], vcc")
            e(f"s_cbranch_execz L_bld_e{j}_7")
            e(f"v_add_u32 v{t}, {en}, v{S}")
            e(f"v_lshrrev_b32 v{t+1}, 3, v{t}")
            e(f"v_bfe_u32 v{t+2}, v{t}, 2, 1")
            e(f"v_and_b32 v{t+3}, 3, v{t}")
            e(f"v_lshrrev_b32 v{t+4}, 26, v{E+en}")
            e(f"v_lshl_add_u32 v{t+4}, v{t+2}, 5, v{t+4}")
            e(f"v_lshlrev_b32 v{t+4}, 4, v{t+4}")
            e(f"v_lshrrev_b32 v{t+5}, 1, v{t+1}")
            e(f"v_and_b32 v{t+6}, 1, v{t+1}")
            e(f"v_mul_u32_u24 v{t+7}, {RS}, v{t+5}")
            e(f"v_lshl_add_u32 v{t+7}, v{t+6}, 10, v{t+7}")
            e(f"v_add3_u32 v{t+7}, v{t+7}, v{t+4}, s35")
            e(f"v_lshl_add_u32 v{t+7}, v{t+3}, 2, v{t+7}")
            e(f"ds_write_b16 v{t+7}, v{E+en} offset:{BUF1 + 4*j*RS}")
            e(f"v_lshl_add_u32 v{t+8}, v{t+5}, 2, v{t+4}")
            e(f"v_add_u32 v{t+8}, s38, v{t+8}")
            e(f"v_lshlrev_b32 v{t+9}, 4, v{t+6}")
            e(f"v_lshl_add_u32 v{t+9}, v{t+3}, 2, v{t+9}")
            e(f"v_bfe_u32 v{t+10}, v{E+en}, 24, 2")
            e(f"v_lshlrev_b32 v{t+10}, v{t+9}, v{t+10}")
            e(f"ds_or_b32 v{t+8}, v{t+10} offset:{j*1024}")
            e(f"v_lshlrev_b32 v{t+8}, 4, v{t+1}")
            e(f"v_bfe_u32 v{t+9}, v{t}, 1, 1")
            e(f"v_lshl_add_u32 v{t+8}, v{t+9}, 3, v{t+8}")
            e(f"v_lshl_add_u32 v{t+8}, v{t+2}, 2, v{t+8}")
            e(f"v_and_b32 v{t+9}, 1, v{t}")
            e(f"v_lshl_add_u32 v{t+8}, v{t+9}, 1, v{t+8}")
            e(f"v_add_u32 v{t+8}, s38, v{t+8}")
            e(f"v_bfe_u32 v{t+10}, v{E+en}, 16, 8")
            e(f"v_lshlrev_b32 v{t+10}, 3, v{t+10}")
            e(f"ds_write_b16 v{t+8}, v{t+10} offset:{2048 + j*128}")
            if en == 7: e(f"L_bld_e{j}_{en}:")
            e("s_mov_b64 exec, s[66:67]")
        e(f"L_bld_skip{j}:")
    e(f"v_add_u32 v{TT+7}, s38, v{T+3}")
    for j in range(2):
        for c in range(RCH):
            b = RAF + (j * RCH + c) * 4
            e(f"ds_read_b128 v[{b}:{b+3}], v{TT+5} offset:{(4*j + (c>>1))*RS + (c&1)*1024}")
            b = RPK + (j * RCH + c) * 2
            e(f"ds_read_b64 v[{b}:{b+1}], v{TT+7} offset:{2048 + j*128 + c*16}")
        e(f"ds_read_b128 v[{RIX+j*4}:{RIX+j*4+3}], v{TT+6} offset:{j*1024}")
    e(f"v_mov_b32 v{T+6}, 0x3f803f80")
    e(f"v_mov_b32 v{T+7}, 0x3f803f80")
    e(f"ds_write_b64 v{vRB}, v[{T+6}:{T+7}] offset:{PADOFF}")
    e(f"ds_write_b64 v{vRB}, v[{T+6}:{T+7}] offset:{BUF1+PADOFF}")
    e("s_lshl_b32 s33, s26, 19")
    e("s_lshl_b32 s36, s28, 7")
    e("s_add_u32 s33, s33, s36")
    e("s_mov_b32 s39, 0")
    wait(vtag="misc")
    e(f"v_lshlrev_b32 v{T+5}, 16, v{T+5}")
    e(f"v_lshlrev_b32 v{T+4}, 2, v0")
    e(f"v_add_u32 v{T+4}, {LDS_BT}, v{T+4}")
    e(f"ds_write_b32 v{T+4}, v{T+5}")
    e(f"v_mov_b32 v{vTW}, v{T+8}")
    e("s_waitcnt lgkmcnt(0)")
    e("s_barrier")
    if cfg.PROF:
        e("s_memtime s[50:51]")
        e("s_waitcnt lgkmcnt(0)")

    def bias_reads(p):
        r = []
        for j in range(2):
            for u in range(4):
                b = ACC + p * 32 + j * 16 + u * 4
                off = (32 * j + 16 * (u >> 1) + 4 * (u & 1)) * 4
                r.append(("ds", f"bias{p}", f"ds_read_b128 v[{b}:{b+3}], v{vBI} offset:{off}"))
        return r

    def b_reads(p, s):
        b = bf(s)
        base = p * BUF1 + 64 * s
        if cfg.B64:
            return [("ds", ("B", p, s), f"ds_read_b64 v[{b}:{b+1}], v{vLB} offset:{base}"),
                    ("ds", ("B", p, s), f"ds_read_b64 v[{b+2}:{b+3}], v{vLB} offset:{base+8}"),
                    ("ds", ("B", p, s), f"ds_read_b64 v[{b+4}:{b+5}], v{vLB} offset:{base+32}"),
                    ("ds", ("B", p, s), f"ds_read_b64 v[{b+6}:{b+7}], v{vLB} offset:{base+40}")]
        return [("ds", ("B", p, s), f"ds_read_b128 v[{b}:{b+3}], v{vLB} offset:{base}"),
                ("ds", ("B", p, s), f"ds_read_b128 v[{b+4}:{b+7}], v{vLB} offset:{base+32}")]

    def g_items(p, j, c, gs, tag, pk=None):
        r = []
        pk = RPK + (j * RCH + c) * 2 if pk is None else pk
        for pb in range(4):
            d = GD + gs * 8 + 2 * pb
            r.append(("raw", f"v_add_u32_sdwa v{d}, v{vRB}, v{pk + (pb>>1)} dst_sel:DWORD dst_unused:UNUSED_PAD src0_sel:DWORD src1_sel:WORD_{pb&1}"))
        for pb in range(4):
            d = GD + gs * 8 + 2 * pb
            r.append(("ds", tag, f"ds_read_b64 v[{d}:{d+1}], v{d} offset:{p*BUF1}"))
        return r

    uid = [0]
    def gather_block(p, j, c, gs):
        uid[0] += 1
        lbl = f"L_g{uid[0]}"
        e(f"s_cmp_le_u32 s{30+j}, {c}")
        e(f"s_cbranch_scc1 {lbl}")
        for it in g_items(p, j, c, gs, None):
            e(it[-1])
        e(f"{lbl}:")
        ds.append(("Gmark", p, j, c))
    def mfma_block(p, j, c, gs):
        cond = c >= RU
        if cond:
            uid[0] += 1
            lbl = f"L_m{uid[0]}"
            e(f"s_cmp_le_u32 s{30+j}, {c}")
            e(f"s_cbranch_scc1 {lbl}")
            wait(dtag=("Gmark", p, j, c))
        else:
            wait(dtag=("G", p, j, c))
        ra = RAF + (j * RCH + c) * 4
        e(f"v_smfmac_f32_32x32x32_bf16 {acc(p,j)}, v[{ra}:{ra+3}], v[{GD+gs*8}:{GD+gs*8+7}], v{RIX + j*4 + (c>>1)}" + (" abid:1" if c & 1 else ""))
        if cond:
            e(f"{lbl}:")

    def epilogue_items(q):
        out = []
        for j in range(2):
            lst = []
            a = ACC + q * 32 + j * 16
            for i in range(8):
                lst.append(("raw", f"v_cvt_pk_bf16_f32 v{a + i}, v{a + 2*i}, v{a + 2*i + 1}"))
            lst.append(("ds", "tw", f"ds_write_b128 v{vTW}, v[{a}:{a+3}] offset:{64*j}"))
            lst.append(("ds", "tw", f"ds_write_b128 v{vTW}, v[{a+4}:{a+7}] offset:{64*j+32}"))
            out.append(lst)
        rb = []; st = []
        for i in range(4):
            a = ACC + q * 32 + 8 + (i >> 1) * 16 + (i & 1) * 4
            rb.append(("ds", ("tr", i), f"ds_read_b128 v[{a}:{a+3}], v{vTR} offset:{i*8*TRS}"))
            st.append(("W", ("tr", i)))
            st.append(("raw", f"s_add_u32 s36, s34, {i*8*2048}"))
            st.append(("vm", "st", f"buffer_store_dwordx4 v[{a}:{a+3}], v{vST}, s[16:19], s36 offen"))
        out.append(rb); out.append(st)
        return out

    emit_items(bias_reads(0))
    for s in range(PD):
        emit_items(b_reads(0, s))

    def block(p, first, last):
        q = p ^ 1
        order = [(j, c) for c in range(RCH) for j in range(2)] if not cfg.NORES else []
        ms0 = 0
        rq = []
        for z, (j, c) in enumerate(order):
            g0 = 2 * ms0 + int(min(cfg.RPER, (2 * (32 - PD) - 1 - cfg.RLAT - 2 * ms0) * 10 // 15) * z / 10)
            if c >= RU:
                rq.append((g0, 4, ("G", p, j, c, z & 1)))
            else:
                gi = g_items(p, j, c, z & 1, ("G", p, j, c))
                for k, it in enumerate(gi):
                    rq.append((g0 + (k >= 4), 1, it))
            rq.append((g0 + cfg.RLAT, 99, ("M", p, j, c, z & 1)))
        rq.sort(key=lambda t: t[0])
        fifo = []
        def add(items, min_step=0):
            for it in items:
                fifo.append((cfg.CVM if it[0] == "vm" else 1, min_step, it))
        ep = epilogue_items(q) if (not first and not cfg.NOEPI) else [[], [], [], []]
        dg = dma_groups(q, "Xn") if (not last and not cfg.NODMA) else [[] for _ in range(8)]
        br = bias_reads(q) if not last else []
        add(dg[0] + dg[1], 0)
        add(ep[0], 1); add(dg[2], 0); add(ep[1], 1); add(ep[2], 1); add(dg[3] + dg[4], 0)
        add(ep[3][:6], 1); add(dg[5], 0); add(ep[3][6:], 1); add(dg[6] + dg[7], 0)
        if dg[0]:
            add([("raw", f"s_mov_b32 m0, {LDS_SCR}"), ("raw", "s_nop 0"), ("vm", "touch", f"buffer_load_dword v{vTC}, s[12:15], s40 offen lds")], 0)
        add(br, 8)
        wl = {s: w_loads(s + LW) for s in range(32 - LW)} if first else {}

        def fill(s, gap, budget):
            if first: budget *= 2
            b0 = budget
            while rq and rq[0][0] <= gap:
                _, c, it = rq.pop(0)
                emit_items([it])
                budget = b0 if c == 99 else budget - c
            while fifo:
                c, ms, it = fifo[0]
                if ms > s or c > budget: return
                fifo.pop(0); emit_items([it]); budget -= c

        for s in range(32):
            if s == 0 and not last and not cfg.NODMA:
                e(f"s_cmp_lt_u32 s39, {8 - cfg.TD}")
                e("s_cselect_b32 s40, s41, 0x40000000")
                e("s_add_u32 s41, s41, 0x10000")
            if first:
                wait(dtag=("B", p, s), vtag=("W", s))
            else:
                wait(dtag=("B", p, s))
            if s == 0:
                wait(dtag=f"bias{p}")
            e(f"v_smfmac_f32_32x32x32_bf16 {acc(p,0)}, {A(0,s)}, v[{bf(s)}:{bf(s)+7}], v{IDX + (s>>1)}" + (" abid:1" if s & 1 else ""))
            sn = s + PD
            rd = b_reads(p, sn) if sn < 32 else []
            h = len(rd) // 2
            emit_items(rd[:h])
            if s in wl:
                emit_items(wl[s])
                fill(s, 2 * s, 0)
            else:
                fill(s, 2 * s, cfg.BUD - h)
            e(f"v_smfmac_f32_32x32x32_bf16 {acc(p,1)}, {A(1,s)}, v[{bf(s)}:{bf(s)+7}], v{IDX + 16 + (s>>1)}" + (" abid:1" if s & 1 else ""))
            emit_items(rd[h:])
            fill(s, 2 * s + 1, cfg.BUD - h - 1)
            if s == 32 - PD - 1:
                assert not fifo and not rq, ("fifo not drained", len(fifo), len(rq), first, last)
                for j in range(2):
                    uid[0] += 1
                    u = uid[0]
                    e(f"s_cmp_eq_u32 s{64+j}, 0")
                    e(f"s_cbranch_scc1 L_sp_end{u}")
                    e(f"v_lshrrev_b32 v{GD+13}, 4, v{vDX}")
                    for r in (2, 3, 4, 5, 6, 7, 9, 10, 11):
                        e(f"v_mov_b32 v{GD+r}, 0")
                    e("s_mov_b32 s58, 0")
                    e(f"L_sp_kr{u}:")
                    e("s_lshl_b32 s59, s28, 7")
                    e(f"s_add_u32 s59, s59, {j*64}")
                    e("s_add_u32 s59, s59, s58")
                    e("s_lshl_b32 s60, s59, 2")
                    e(f"s_add_u32 s60, s60, {WS_CNT}")
                    e("s_load_dword s60, s[10:11], s60")
                    e("s_lshl_b32 s59, s59, 10")
                    e(f"s_add_u32 s59, s59, {WS_ENT:#x}")
                    e("s_waitcnt lgkmcnt(0)")
                    e("s_cmp_eq_u32 s60, 0")
                    e(f"s_cbranch_scc1 L_sp_nx{u}")
                    e(f"L_sp_e{u}:")
                    e("s_load_dword s62, s[10:11], s59")
                    e("s_waitcnt lgkmcnt(0)")
                    e("s_lshr_b32 s63, s62, 26")
                    e(f"v_cmp_eq_u32 vcc, s63, v{GD+13}")
                    e("s_and_b32 s63, s62, 0xffff")
                    e(f"v_mov_b32 v{GD+14}, s63")
                    e("s_bfe_u32 s63, s62, 0x80010")
                    e("s_lshl_b32 s63, s63, 3")
                    e(f"v_add_u32 v{GD}, s63, v{vRB}")
                    e(f"v_cndmask_b32 v{GD+8}, 0, v{GD+14}, vcc")
                    e("s_bfe_u32 s63, s62, 0x20018")
                    e(f"v_mov_b32 v{GD+12}, s63")
                    e(f"ds_read_b64 v[{GD}:{GD+1}], v{GD} offset:{p*BUF1}")
                    e("s_waitcnt lgkmcnt(0)")
                    e(f"v_smfmac_f32_32x32x32_bf16 {acc(p,j)}, v[{GD+8}:{GD+11}], v[{GD}:{GD+7}], v{GD+12}")
                    e("s_add_u32 s59, s59, 4")
                    e("s_sub_u32 s60, s60, 1")
                    e("s_cmp_lg_u32 s60, 0")
                    e("s_nop 4")
                    e(f"s_cbranch_scc1 L_sp_e{u}")
                    e(f"L_sp_nx{u}:")
                    e("s_add_u32 s58, s58, 1")
                    e("s_cmp_lt_u32 s58, 64")
                    e(f"s_cbranch_scc1 L_sp_kr{u}")
                    e(f"L_sp_end{u}:")
            if sn >= 32 and not last:
                if sn == 32:
                    if cfg.PROF:
                        e("s_memtime s[54:55]")
                    if cfg.NODMA:
                        e("s_waitcnt lgkmcnt(0)")
                    else:
                        e(f"s_waitcnt vmcnt({min(vm_n('Xn'),63)}) lgkmcnt(0)")
                    e("s_barrier")
                    if cfg.PROF:
                        e("s_memtime s[56:57]")
                        e("s_waitcnt lgkmcnt(0)")
                        e("s_sub_u32 s56, s56, s54")
                        e("s_add_u32 s52, s52, s56")
                emit_items(b_reads(q, sn - 32))
            if s == 31:
                e("s_mov_b32 s34, s33")
                e("s_add_u32 s33, s33, 0x10000")
                e("s_add_u32 s37, s37, 0x10000")
                e("s_add_u32 s39, s39, 1")

    block(0, True, False)
    e("L_loop:")
    block(1, False, False)
    block(0, False, False)
    e("s_cmp_lt_u32 s39, 7")
    e("s_cbranch_scc1 L_loop")
    block(1, False, True)
    e("s_nop 15")
    for lst in epilogue_items(1):
        emit_items(lst)
    if cfg.PROF:
        e("s_memtime s[54:55]")
        e("s_waitcnt lgkmcnt(0)")
        e("s_sub_u32 s56, s50, s48")
        e("s_sub_u32 s57, s54, s50")
        e("s_nop 4")
        e(f"v_mov_b32 v{GD}, s56")
        e(f"v_mov_b32 v{GD+1}, s52")
        e(f"v_mov_b32 v{GD+2}, s57")
        e(f"v_mov_b32 v{GD+3}, s48")
        e("s_lshl_b32 s36, s2, 2")
        e("s_add_u32 s36, s36, s24")
        e("s_lshl_b32 s36, s36, 4")
        e("s_add_u32 s36, s36, 0x8000000")
        e(f"v_mov_b32 v{GD+4}, 0")
        e(f"buffer_store_dwordx4 v[{GD}:{GD+3}], v{GD+4}, s[20:23], s36 offen")
    e("L_main_end:")
    e("s_endpgm")


gen_prep()
gen_main()

tail = """
.section .rodata,"a"
.p2align 6
.amdhsa_kernel prep_kernel
  .amdhsa_next_free_vgpr 64
  .amdhsa_next_free_sgpr 96
  .amdhsa_accum_offset 64
  .amdhsa_group_segment_fixed_size 0
  .amdhsa_kernarg_size 48
  .amdhsa_user_sgpr_count 2
  .amdhsa_user_sgpr_kernarg_segment_ptr 1
  .amdhsa_system_sgpr_workgroup_id_x 1
.end_amdhsa_kernel
.p2align 6
.amdhsa_kernel standalone__structured_sparse_n_m__ragged_kernel
  .amdhsa_next_free_vgpr 512
  .amdhsa_next_free_sgpr 96
  .amdhsa_accum_offset 256
  .amdhsa_group_segment_fixed_size 0
  .amdhsa_kernarg_size 48
  .amdhsa_user_sgpr_count 2
  .amdhsa_user_sgpr_kernarg_segment_ptr 1
  .amdhsa_system_sgpr_workgroup_id_x 1
.end_amdhsa_kernel
"""
open(OUT, "w").write(hdr + "\n".join(L) + "\n" + tail)
print("wrote", OUT, len(L), "lines")
```

```python
import sys

OUT = "standalone__structured_sparse_n_m__ragged.s"
import os
OUT = os.environ.get("GEN_OUT", OUT)

WS_CNT = 0x0
WS_WI = 0x4000
WS_WA = 0x40000
WS_ENT = 0x200000
WS_SIZE = 0x10000000

class Cfg:
    B64 = 0
    RU = 5
    LW = 8
    TD = 2
    DS0 = 0
    DSS = 2
    NB = 4
    PD = 3
    RCH = 8
    PROF = 0
    TMO = 20000
    NPF = 128
    PB = 4
    RPER = 33
    RLAT = 6
    BUD = 5
    CVM = 2
    NODMA = 0
    NORES = 0
    NOEPI = 0
    NOREAD = 0

cfg = Cfg()
for a in sys.argv[1:]:
    k, v = a.split("=")
    setattr(cfg, k, int(v))

if cfg.B64:
    RS = 4120
    BUF1 = 2056
else:
    RS = 4144
    BUF1 = 2064
PADOFF = 2048
LDS_X = 32 * RS
LDS_BT = LDS_X
LDS_TR = LDS_X + 1024
TRS = 144
LDS_SCR = LDS_TR + 4 * 32 * TRS
LDS_TOTAL = LDS_SCR + 256

L = []
def e(s=""):
    L.append("    " + s if s and not s.endswith(":") else s)

hdr = f"""; 2:4 structured-sparse GEMM  out = x @ prune24(w) + b   (B*S=16384, D=1024), bf16
; @launch grid=(256,1,1) block=(256,1,1) lds={LDS_TOTAL}
.amdgcn_target "amdgcn-amd-amdhsa--gfx950"
.text
"""

def gen_prep_slice():
    TBL = {0: 4, 1: 4, 2: 4, 4: 8, 8: 12, 3: 4, 5: 8, 6: 9, 7: 4, 9: 12, 10: 13, 11: 4, 12: 14, 13: 8, 14: 9, 15: 4}
    T64 = 0
    for k, v in TBL.items():
        T64 |= v << (4 * k)
    ET = {7: 1, 11: 2, 13: 2, 14: 2, 15: 3}
    E32 = 0
    for k, v in ET.items():
        E32 |= v << (2 * k)
    R = 64
    def v(n): return f"v{R+n}"
    e("s_mov_b32 s76, 0x7fff7fff")
    e("s_mov_b32 s77, 0x00010001")
    e("s_mov_b32 s78, 0x000f000f")
    e(f"s_mov_b32 s80, {T64 & 0xffffffff:#x}")
    e(f"s_mov_b32 s81, {T64 >> 32:#x}")
    e(f"s_mov_b32 s82, {E32:#x}")
    e("s_mov_b32 s83, 0x05040100")
    e("s_mov_b32 s84, 0x07060302")
    e("s_mov_b32 s85, 0x01000100")
    e("s_mov_b32 s86, 0x0202")
    e(f"v_lshlrev_b32 {v(3)}, 2, v0")
    e("s_lshl_b32 s89, s87, 15")
    e("s_lshl_b32 s90, s88, 9")
    e("s_add_u32 s89, s89, s90")
    D = 8
    for kk in range(0, 16, 2):
        e(f"buffer_load_dword {v(D+kk)}, {v(3)}, s[68:71], s89 offen")
        e(f"buffer_load_dword {v(D+kk+1)}, {v(3)}, s[68:71], s89 offen offset:2048")
        if kk < 14:
            e("s_add_u32 s89, s89, 4096")
    e(f"v_and_b32 {v(1)}, 15, v0")
    e(f"v_lshrrev_b32 {v(2)}, 4, v0")
    e("s_lshl_b32 s90, s88, 3")
    e(f"v_add_u32 {v(2)}, s90, {v(2)}")
    e(f"v_and_b32 {v(4)}, 9, {v(1)}")
    e(f"v_bfe_u32 {v(5)}, {v(1)}, 1, 1")
    e(f"v_bfe_u32 {v(6)}, {v(1)}, 2, 1")
    e(f"v_lshl_or_b32 {v(4)}, {v(5)}, 2, {v(4)}")
    e(f"v_lshl_or_b32 {v(4)}, {v(6)}, 1, {v(4)}")
    e(f"v_lshlrev_b32 {v(4)}, 1, {v(4)}")
    e(f"v_lshlrev_b32 {v(24)}, 15, {v(2)}")
    e(f"v_lshl_add_u32 {v(24)}, {v(4)}, 4, {v(24)}")
    e(f"v_lshlrev_b32 {v(25)}, 12, {v(2)}")
    e(f"v_lshl_add_u32 {v(25)}, {v(4)}, 4, {v(25)}")
    e("s_lshr_b32 s91, s87, 1")
    e("s_and_b32 s92, s87, 1")
    e("s_lshl_b32 s93, s91, 10")
    e("s_lshl_b32 s92, s92, 9")
    e("s_add_u32 s93, s93, s92")
    e(f"s_add_u32 s93, s93, {WS_WA:#x}")
    e("s_lshr_b32 s94, s91, 3")
    e("s_lshl_b32 s94, s94, 10")
    e("s_add_u32 s94, s94, s92")
    e("s_and_b32 s91, s91, 7")
    e("s_lshl_b32 s91, s91, 1")
    e("s_add_u32 s94, s94, s91")
    e(f"s_add_u32 s94, s94, {WS_WI:#x}")
    e(f"v_mov_b32 {v(36)}, 0")
    e(f"v_mov_b32 {v(37)}, 0")
    e(f"v_mov_b32 {v(38)}, 0")
    for g in range(4):
        a, b, c, d = (D + 4 * g + i for i in range(4))
        e(f"s_waitcnt vmcnt({12 - 4*g})")
        for i, r in enumerate((a, b, c, d)):
            e(f"v_and_b32 {v(40+i)}, s76, {v(r)}")
        e(f"v_pk_max_u16 {v(44)}, {v(40)}, {v(41)}")
        e(f"v_pk_min_u16 {v(45)}, {v(40)}, {v(41)}")
        e(f"v_pk_max_u16 {v(46)}, {v(42)}, {v(43)}")
        e(f"v_pk_min_u16 {v(47)}, {v(42)}, {v(43)}")
        e(f"v_pk_min_u16 {v(44)}, {v(44)}, {v(46)}")
        e(f"v_pk_max_u16 {v(45)}, {v(45)}, {v(47)}")
        e(f"v_pk_max_u16 {v(44)}, {v(44)}, {v(45)}")
        e(f"v_pk_max_u16 {v(44)}, {v(44)}, s77")
        for i in range(4):
            e(f"v_pk_sub_u16 {v(40+i)}, {v(44)}, {v(40+i)} clamp")
        for i in range(4):
            e(f"v_pk_min_u16 {v(40+i)}, {v(40+i)}, s77")
        e(f"v_lshl_or_b32 {v(40)}, {v(41)}, 1, {v(40)}")
        e(f"v_lshl_or_b32 {v(40)}, {v(42)}, 2, {v(40)}")
        e(f"v_lshl_or_b32 {v(40)}, {v(43)}, 3, {v(40)}")
        e(f"v_xor_b32 {v(40)}, s78, {v(40)}")
        for ee in range(2):
            sel = 83 + ee
            e(f"v_bfe_u32 {v(41)}, {v(40)}, {16*ee}, 4")
            e(f"v_lshlrev_b32 {v(42)}, 2, {v(41)}")
            e(f"v_lshrrev_b64 v[{R+46}:{R+47}], {v(42)}, s[80:81]")
            e(f"v_and_b32 {v(46)}, 15, {v(46)}")
            e(f"v_lshl_or_b32 {v(36+ee)}, {v(46)}, {4*g}, {v(36+ee)}")
            e(f"v_perm_b32 {v(48)}, {v(b)}, {v(a)}, s{sel}")
            e(f"v_perm_b32 {v(49)}, {v(d)}, {v(c)}, s{sel}")
            e(f"v_and_b32 {v(47)}, 3, {v(46)}")
            e(f"v_lshrrev_b32 {v(46)}, 2, {v(46)}")
            e(f"v_lshl_or_b32 {v(46)}, {v(46)}, 16, {v(47)}")
            e(f"v_mov_b32 {v(47)}, s85")
            e(f"v_mad_u32_u24 {v(46)}, {v(46)}, s86, {v(47)}")
            e(f"v_perm_b32 {v(28+4*ee+g)}, {v(49)}, {v(48)}, {v(46)}")
            e(f"v_lshlrev_b32 {v(42)}, 1, {v(41)}")
            e(f"v_lshrrev_b32 {v(43)}, {v(42)}, s82")
            e(f"v_and_b32 {v(43)}, 3, {v(43)}")
            e(f"v_lshl_or_b32 {v(38)}, {v(43)}, {2*(2*g+ee)}, {v(38)}")
    e(f"buffer_store_dwordx4 v[{R+28}:{R+31}], {v(24)}, s[20:23], s93 offen sc1")
    e(f"buffer_store_dwordx4 v[{R+32}:{R+35}], {v(24)}, s[20:23], s93 offen offset:16 sc1")
    e(f"buffer_store_short {v(36)}, {v(25)}, s[20:23], s94 offen sc1")
    e(f"buffer_store_short {v(37)}, {v(25)}, s[20:23], s94 offen offset:16 sc1")
    e(f"v_bcnt_u32_b32 {v(39)}, {v(38)}, 0")
    e(f"v_mov_b32 {v(40)}, {v(39)}")
    e("s_nop 1")
    for sh in (1, 2, 4, 8):
        e(f"v_add_u32_dpp {v(40)}, {v(40)}, {v(40)} row_shr:{sh} row_mask:0xf bank_mask:0xf bound_ctrl:0")
        e("s_nop 1")
    e(f"v_lshlrev_b32 {v(41)}, 8, {v(2)}")
    e("s_lshl_b32 s89, s87, 2")
    e(f"v_cmp_eq_u32 vcc, 15, {v(1)}")
    e("s_and_saveexec_b64 s[66:67], vcc")
    e(f"buffer_store_dword {v(40)}, {v(41)}, s[20:23], s89 offen offset:{WS_CNT} sc1")
    e("s_mov_b64 exec, s[66:67]")
    e(f"v_sub_u32 {v(40)}, {v(40)}, {v(39)}")
    e(f"v_lshlrev_b32 {v(41)}, 16, {v(2)}")
    e("s_lshl_b32 s89, s87, 10")
    e(f"s_add_u32 s89, s89, {WS_ENT:#x}")
    e("s_lshl_b32 s90, s87, 18")
    for g in range(4):
        for ee in range(2):
            for p in (2, 3):
                bit = 2 * (2 * g + ee) + (p - 2)
                lbl = f"L_prep_sc_{bit}"
                e(f"v_and_b32 {v(42)}, {1 << bit:#x}, {v(38)}")
                e(f"v_cmp_ne_u32 vcc, 0, {v(42)}")
                e("s_and_saveexec_b64 s[66:67], vcc")
                e(f"s_cbranch_execz {lbl}")
                e(f"v_and_b32 {v(42)}, {(1 << bit) - 1:#x}, {v(38)}")
                e(f"v_bcnt_u32_b32 {v(42)}, {v(42)}, {v(40)}")
                e(f"v_lshl_add_u32 {v(42)}, {v(42)}, 2, {v(41)}")
                src = D + 4 * g + p
                if ee == 0:
                    e(f"v_and_b32 {v(43)}, 0xffff, {v(src)}")
                else:
                    e(f"v_lshrrev_b32 {v(43)}, 16, {v(src)}")
                e(f"s_add_u32 s91, s90, {(g << 16) | (p << 24) | (ee << 26):#x}")
                e(f"v_or_b32 {v(43)}, s91, {v(43)}")
                e(f"v_lshl_add_u32 {v(43)}, {v(4)}, 26, {v(43)}")
                e(f"buffer_store_dword {v(43)}, {v(42)}, s[20:23], s89 offen sc1")
                e(f"{lbl}:")
                e("s_mov_b64 exec, s[66:67]")


def gen_main():
    NB, PD, RCH, RU, LW = cfg.NB, cfg.PD, cfg.RCH, cfg.RU, cfg.LW
    nxt = [1]
    def alloc(n, align=1):
        while nxt[0] % align:
            nxt[0] += 1
        r = nxt[0]
        nxt[0] += n
        return r
    vLB = alloc(1); vRB = alloc(1); vDX = alloc(1); vST = alloc(1); vBI = alloc(1)
    vTC = alloc(1); vTR = alloc(1)
    vTW = 0
    IDX = alloc(32, 4)
    ACC = alloc(64, 4)
    BF = alloc(8 * NB, 4)
    RAF = alloc(2 * RCH * 4, 4)
    RIX = alloc(2 * RCH // 2, 4)
    RPK = alloc(2 * RCH * 2, 4)
    GD = alloc(16, 4)
    assert nxt[0] <= 256, nxt[0]

    def A(j, s):
        b = (s * 2 + j) * 4
        return f"a[{b}:{b+3}]"
    def acc(p, j):
        b = ACC + p * 32 + j * 16
        return f"v[{b}:{b+15}]"
    def bf(s):
        return BF + (s % NB) * 8

    ds = []
    vm = []
    def is_mark(t):
        return isinstance(t, tuple) and t[0] == "Gmark"
    def ds_issue(tag, ins):
        e(ins); ds.append(tag)
    def vm_issue(tag, ins):
        e(ins); vm.append(tag)
    def ds_n(tag):
        idx = max(i for i, t in enumerate(ds) if t == tag)
        return sum(1 for t in ds[idx+1:] if not is_mark(t))
    def vm_n(tag):
        idx = max(i for i, t in enumerate(vm) if t == tag)
        return len(vm) - 1 - idx
    def wait(dtag=None, vtag=None):
        w = []
        if vtag is not None:
            w.append(f"vmcnt({min(vm_n(vtag), 63)})")
        if dtag is not None:
            w.append(f"lgkmcnt({min(ds_n(dtag), 15)})")
        e("s_waitcnt " + " ".join(w))

    name = "standalone__structured_sparse_n_m__ragged_kernel"
    e(f".globl {name}")
    e(".p2align 8")
    e(f".type {name},@function")
    e(f"{name}:")
    e("s_cmp_ge_u32 s2, 256")
    e("s_cbranch_scc1 L_main_end")
    if cfg.PROF:
        e("s_memtime s[48:49]")
        e("s_memrealtime s[96:97]")
        e("s_mov_b32 s52, 0")
    e("s_load_dwordx2 s[4:5], s[0:1], 0")
    e("s_load_dwordx2 s[6:7], s[0:1], 16")
    e("s_load_dwordx2 s[8:9], s[0:1], 24")
    e("s_load_dwordx2 s[10:11], s[0:1], 40")
    e("s_load_dwordx2 s[68:69], s[0:1], 8")
    e("s_load_dwordx2 s[72:73], s[0:1], 32")
    e(f"v_lshrrev_b32 v{vTR}, 6, v0")
    e("s_nop 0")
    e(f"v_readfirstlane_b32 s24, v{vTR}")
    e("s_and_b32 s25, s2, 7")
    e("s_lshr_b32 s26, s2, 3")
    e("s_and_b32 s27, s26, 3")
    e("s_lshr_b32 s26, s26, 2")
    e("s_lshl_b32 s25, s25, 3")
    e("s_add_u32 s26, s26, s25")
    e("s_lshl_b32 s28, s27, 2")
    e("s_add_u32 s28, s28, s24")
    T = GD
    e(f"v_and_b32 v{T}, 63, v0")
    e(f"v_and_b32 v{T+1}, 31, v0")
    e(f"v_bfe_u32 v{T+2}, v0, 5, 1")
    e(f"v_mul_u32_u24 v{vRB}, {RS}, v{T+1}")
    e(f"v_lshl_add_u32 v{vLB}, v{T+2}, 4, v{vRB}")
    e(f"v_lshlrev_b32 v{vDX}, 4, v{T}")
    e(f"v_lshrrev_b32 v{T+6}, 3, v{T}")
    e(f"v_and_b32 v{T+7}, 7, v{T}")
    e(f"v_lshlrev_b32 v{vST}, 11, v{T+6}")
    e(f"v_lshl_add_u32 v{vST}, v{T+7}, 4, v{vST}")
    e(f"s_mul_i32 s29, s24, {32*TRS}")
    e(f"s_add_u32 s29, s29, {LDS_TR}")
    e(f"v_mul_u32_u24 v{vTR}, {TRS}, v{T+6}")
    e(f"v_lshl_add_u32 v{vTR}, v{T+7}, 4, v{vTR}")
    e(f"v_add_u32 v{vTR}, s29, v{vTR}")
    e(f"v_mul_u32_u24 v{T+8}, {TRS}, v{T+1}")
    e(f"v_lshl_add_u32 v{T+8}, v{T+2}, 4, v{T+8}")
    e(f"v_add_u32 v{T+8}, s29, v{T+8}")
    e(f"v_lshlrev_b32 v{vTC}, 6, v{T}")
    e("s_lshl_b32 s29, s24, 8")
    e(f"s_add_u32 s29, s29, {LDS_BT}")
    e(f"v_lshlrev_b32 v{vBI}, 5, v{T+2}")
    e(f"v_add_u32 v{vBI}, s29, v{vBI}")
    e(f"v_lshlrev_b32 v{T+3}, 3, v{T+2}")
    e(f"v_lshlrev_b32 v{T+4}, 1, v0")
    e("s_waitcnt lgkmcnt(0)")
    e("s_mov_b32 s12, s4"); e("s_and_b32 s13, s5, 0xffff"); e("s_mov_b32 s14, 0x2000000"); e("s_mov_b32 s15, 0x00020000")
    e("s_mov_b32 s16, s8"); e("s_and_b32 s17, s9, 0xffff"); e("s_mov_b32 s18, 0x2000000"); e("s_mov_b32 s19, 0x00020000")
    e("s_mov_b32 s20, s10"); e("s_and_b32 s21, s11, 0xffff"); e(f"s_mov_b32 s22, {WS_SIZE:#x}"); e("s_mov_b32 s23, 0x00020000")
    e("s_mov_b32 s44, s6"); e("s_and_b32 s45, s7, 0xffff"); e("s_mov_b32 s46, 0x800"); e("s_mov_b32 s47, 0x00020000")
    e("s_and_b32 s69, s69, 0xffff"); e("s_mov_b32 s70, 0x200000"); e("s_mov_b32 s71, 0x00020000")
    e("s_and_b32 s73, s73, 0xffff"); e("s_mov_b32 s74, 0x100"); e("s_mov_b32 s75, 0x00020000")
    e("s_lshl_b32 s37, s26, 19")
    e("s_lshl_b32 s33, s24, 14")
    e("s_add_u32 s37, s37, s33")
    e(f"s_mul_i32 s35, s24, {8*RS}")
    e("s_lshl_b32 s41, s26, 19")
    e("s_lshl_b32 s33, s27, 14")
    e("s_add_u32 s41, s41, s33")
    e("s_lshl_b32 s33, s24, 12")
    e("s_add_u32 s41, s41, s33")
    e(f"s_add_u32 s41, s41, {cfg.TD * 0x10000}")

    def dma_groups(p, tag):
        ins = []
        for r in range(8):
            ins.append([("raw", f"s_add_u32 m0, s35, {r*RS + p*BUF1}"),
                        ("raw", f"s_add_u32 s36, s37, {r*2048}"),
                        ("vm", tag, f"buffer_load_dwordx4 v{vDX}, s[12:15], s36 offen lds"),
                        ("vm", tag, f"buffer_load_dwordx4 v{vDX}, s[12:15], s36 offen offset:1024 lds")])
        return ins
    def emit_items(items):
        for x in items:
            if x[0] == "raw": e(x[1])
            elif x[0] == "ds": ds_issue(x[1], x[2])
            elif x[0] == "vm": vm_issue(x[1], x[2])
            elif x[0] == "G": gather_block(*x[1:])
            elif x[0] == "M": mfma_block(*x[1:])
            elif x[0] == "W": wait(dtag=x[1])
            else: raise Exception(x)

    for grp in dma_groups(0, "X0"):
        emit_items(grp)
    e("s_add_u32 s37, s37, 0x10000")
    e(f"s_mov_b32 m0, {LDS_SCR}")
    for tb in range(1, cfg.TD):
        e(f"s_sub_u32 s36, s41, {(cfg.TD - tb) * 0x10000}")
        vm_issue("touch", f"buffer_load_dword v{vTC}, s[12:15], s36 offen lds")
    e("s_lshr_b32 s87, s2, 2")
    e("s_and_b32 s88, s2, 3")
    e("s_mov_b32 s95, 0")
    e("L_prep_again:")
    e("s_cmp_ge_u32 s24, 2")
    e("s_cbranch_scc1 L_prep_done")
    gen_prep_slice()
    e("L_prep_done:")
    e("s_cmp_eq_u32 s95, 0")
    e("s_cbranch_scc1 L_prep_signal")
    e("s_add_u32 s87, s87, 1")
    e("s_cmp_lt_u32 s87, 64")
    e("s_cbranch_scc1 L_prep_again")
    e("s_waitcnt vmcnt(0)")
    e("s_barrier")
    e("s_branch L_sync_done")
    e("L_prep_signal:")
    e("s_waitcnt vmcnt(0)")
    e("s_barrier")
    e(f"v_mov_b32 v{GD+9}, 0")
    e(f"v_mov_b32 v{GD+10}, 1")
    e("s_cmp_lg_u32 s24, 0")
    e("s_cbranch_scc1 L_sync_wait")
    e("s_lshl_b32 s36, s88, 6")
    e("v_cmp_eq_u32 vcc, 0, v0")
    e("s_and_saveexec_b64 s[66:67], vcc")
    e(f"buffer_atomic_add v{GD+10}, v{GD+9}, s[72:75], s36 offen sc1")
    e("s_mov_b64 exec, s[66:67]")
    e("s_lshl_b32 s36, s27, 6")
    e("s_memrealtime s[90:91]")
    e("L_poll:")
    e(f"buffer_load_dword v{GD+11}, v{GD+9}, s[72:75], s36 offen sc1")
    e("s_memrealtime s[92:93]")
    e("s_waitcnt vmcnt(0) lgkmcnt(0)")
    e(f"v_readfirstlane_b32 s89, v{GD+11}")
    e("s_sub_u32 s92, s92, s90")
    e("s_cmp_ge_u32 s89, 64")
    e("s_cbranch_scc1 L_poll_ok")
    e("s_sleep 2")
    e(f"s_cmp_lt_u32 s92, {cfg.TMO}")
    e("s_cbranch_scc1 L_poll")
    e(f"v_mov_b32 v{GD+9}, 1")
    e("L_poll_ok:")
    e(f"v_mov_b32 v{GD+10}, {LDS_SCR + 252}")
    e(f"ds_write_b32 v{GD+10}, v{GD+9}")
    e("s_waitcnt lgkmcnt(0)")
    e("L_sync_wait:")
    e("s_barrier")
    e(f"v_mov_b32 v{GD+10}, {LDS_SCR + 252}")
    e(f"ds_read_b32 v{GD+9}, v{GD+10}")
    e("s_waitcnt lgkmcnt(0)")
    e(f"v_readfirstlane_b32 s95, v{GD+9}")
    e("s_mov_b32 s87, 0")
    e("s_mov_b32 s88, s27")
    e("s_cmp_lg_u32 s95, 0")
    e("s_cbranch_scc1 L_prep_again")
    e("L_sync_done:")
    vm.clear()
    TT = ACC
    e(f"v_lshlrev_b32 v{TT+3}, 2, v{T}")
    e(f"v_lshlrev_b32 v{TT+4}, 10, v{T}")
    for j in range(2):
        e("s_lshl_b32 s36, s28, 9")
        e(f"s_add_u32 s36, s36, {WS_CNT + j*256:#x}")
        vm_issue("ent", f"buffer_load_dword v{TT+8+j}, v{TT+3}, s[20:23], s36 offen sc1")
        e("s_lshl_b32 s36, s28, 17")
        e(f"s_add_u32 s36, s36, {WS_ENT + j*0x10000:#x}")
        vm_issue("ent", f"buffer_load_dwordx4 v[{TT+12+8*j}:{TT+15+8*j}], v{TT+4}, s[20:23], s36 offen sc1")
        vm_issue("ent", f"buffer_load_dwordx4 v[{TT+16+8*j}:{TT+19+8*j}], v{TT+4}, s[20:23], s36 offen offset:16 sc1")
    e("s_lshl_b32 s36, s27, 9")
    vm_issue("misc", f"buffer_load_ushort v{T+5}, v{T+4}, s[44:47], s36 offen")
    e("s_lshl_b32 s36, s28, 13")
    e(f"s_add_u32 s36, s36, {WS_WI:#x}")
    for j in range(2):
        for u in range(4):
            b = IDX + j * 16 + u * 4
            if j == 1 and u == 0:
                e("s_add_u32 s36, s36, 0x1000")
            vm_issue("misc2", f"buffer_load_dwordx4 v[{b}:{b+3}], v{vDX}, s[20:23], s36 offen offset:{u*1024} sc1")
    e("s_lshl_b32 s42, s28, 16")
    e(f"s_add_u32 s42, s42, {WS_WA:#x}")
    e("s_add_u32 s43, s42, 0x8000")
    def w_loads(s):
        r = []
        if s % 4 == 0 and s:
            r.append(("raw", "s_add_u32 s42, s42, 0x1000"))
            r.append(("raw", "s_add_u32 s43, s43, 0x1000"))
        for j in range(2):
            r.append(("vm", ("W", s), f"buffer_load_dwordx4 {A(j,s)}, v{vDX}, s[20:23], s{42+j} offen offset:{(s%4)*1024} sc1"))
        return r
    for s in range(2):
        emit_items(w_loads(s))
    for s in range(2, LW):
        emit_items(w_loads(s))
    e(f"s_add_u32 s36, s35, {BUF1}")
    e(f"v_add_u32 v{TT+5}, s36, v{vDX}")
    e(f"s_mul_i32 s38, s24, {32*TRS}")
    e(f"s_add_u32 s38, s38, {LDS_TR}")
    e(f"v_add_u32 v{TT+6}, s38, v{vDX}")
    for i in range(4):
        e(f"v_mov_b32 v{TT+28+i}, 0")
    e(f"v_mov_b32 v{TT+32}, {PADOFF | (PADOFF << 16):#x}")
    e(f"v_add_u32 v{TT+7}, s38, v{TT+3}")
    for j in range(2):
        for c in range(RCH):
            e(f"ds_write_b128 v{TT+5}, v[{TT+28}:{TT+31}] offset:{(4*j + (c>>1))*RS + (c&1)*1024}")
        e(f"ds_write_b128 v{TT+6}, v[{TT+28}:{TT+31}] offset:{j*1024}")
    e(f"ds_write_b32 v{TT+7}, v{TT+32} offset:2048")
    wait(vtag="ent")
    for j in range(2):
        C = TT + 8 + j; S = TT + 33; E = TT + 12 + 8 * j
        e(f"v_mov_b32 v{S}, v{C}")
        e(f"v_cmp_lt_u32 vcc, 8, v{C}")
        for sh in (1, 2, 4, 8):
            e("s_nop 0")
            e(f"v_add_u32_dpp v{S}, v{S}, v{S} row_shr:{sh} row_mask:0xf bank_mask:0xf bound_ctrl:0")
            e("s_nop 0")
        e("s_nop 0")
        e(f"v_add_u32_dpp v{S}, v{S}, v{S} row_bcast:15 row_mask:0xa bank_mask:0xf")
        e("s_nop 1")
        e(f"v_add_u32_dpp v{S}, v{S}, v{S} row_bcast:31 row_mask:0xc bank_mask:0xf")
        e("s_nop 1")
        e(f"v_readlane_b32 s36, v{S}, 63")
        e(f"v_sub_u32 v{S}, v{S}, v{C}")
        e("s_cmp_lg_u64 vcc, 0")
        e(f"s_cselect_b32 s{64+j}, 1, 0")
        e(f"s_cmp_gt_u32 s36, {8*RCH}")
        e(f"s_cselect_b32 s{64+j}, 1, s{64+j}")
        e("s_add_u32 s36, s36, 7")
        e("s_lshr_b32 s36, s36, 3")
        e(f"s_cmp_eq_u32 s{64+j}, 0")
        e(f"s_cselect_b32 s{30+j}, s36, 0")
        e(f"s_cbranch_scc0 L_bld_skip{j}")
        for en in range(8):
            t = TT + 34
            e(f"v_cmp_lt_u32 vcc, {en}, v{C}")
            e("s_and_saveexec_b64 s[66:67], vcc")
            e(f"s_cbranch_execz L_bld_e{j}_7")
            e(f"v_add_u32 v{t}, {en}, v{S}")
            e(f"v_lshrrev_b32 v{t+1}, 3, v{t}")
            e(f"v_bfe_u32 v{t+2}, v{t}, 2, 1")
            e(f"v_and_b32 v{t+3}, 3, v{t}")
            e(f"v_lshrrev_b32 v{t+4}, 26, v{E+en}")
            e(f"v_lshl_add_u32 v{t+4}, v{t+2}, 5, v{t+4}")
            e(f"v_lshlrev_b32 v{t+4}, 4, v{t+4}")
            e(f"v_lshrrev_b32 v{t+5}, 1, v{t+1}")
            e(f"v_and_b32 v{t+6}, 1, v{t+1}")
            e(f"v_mul_u32_u24 v{t+7}, {RS}, v{t+5}")
            e(f"v_lshl_add_u32 v{t+7}, v{t+6}, 10, v{t+7}")
            e(f"v_add3_u32 v{t+7}, v{t+7}, v{t+4}, s35")
            e(f"v_lshl_add_u32 v{t+7}, v{t+3}, 2, v{t+7}")
            e(f"ds_write_b16 v{t+7}, v{E+en} offset:{BUF1 + 4*j*RS}")
            e(f"v_lshl_add_u32 v{t+8}, v{t+5}, 2, v{t+4}")
            e(f"v_add_u32 v{t+8}, s38, v{t+8}")
            e(f"v_lshlrev_b32 v{t+9}, 4, v{t+6}")
            e(f"v_lshl_add_u32 v{t+9}, v{t+3}, 2, v{t+9}")
            e(f"v_bfe_u32 v{t+10}, v{E+en}, 24, 2")
            e(f"v_lshlrev_b32 v{t+10}, v{t+9}, v{t+10}")
            e(f"ds_or_b32 v{t+8}, v{t+10} offset:{j*1024}")
            e(f"v_lshlrev_b32 v{t+8}, 4, v{t+1}")
            e(f"v_bfe_u32 v{t+9}, v{t}, 1, 1")
            e(f"v_lshl_add_u32 v{t+8}, v{t+9}, 3, v{t+8}")
            e(f"v_lshl_add_u32 v{t+8}, v{t+2}, 2, v{t+8}")
            e(f"v_and_b32 v{t+9}, 1, v{t}")
            e(f"v_lshl_add_u32 v{t+8}, v{t+9}, 1, v{t+8}")
            e(f"v_add_u32 v{t+8}, s38, v{t+8}")
            e(f"v_bfe_u32 v{t+10}, v{E+en}, 16, 8")
            e(f"v_lshlrev_b32 v{t+10}, 3, v{t+10}")
            e(f"ds_write_b16 v{t+8}, v{t+10} offset:{2048 + j*128}")
            if en == 7: e(f"L_bld_e{j}_{en}:")
            e("s_mov_b64 exec, s[66:67]")
        e(f"L_bld_skip{j}:")
    e(f"v_add_u32 v{TT+7}, s38, v{T+3}")
    for j in range(2):
        for c in range(RCH):
            b = RAF + (j * RCH + c) * 4
            e(f"ds_read_b128 v[{b}:{b+3}], v{TT+5} offset:{(4*j + (c>>1))*RS + (c&1)*1024}")
            b = RPK + (j * RCH + c) * 2
            e(f"ds_read_b64 v[{b}:{b+1}], v{TT+7} offset:{2048 + j*128 + c*16}")
        e(f"ds_read_b128 v[{RIX+j*4}:{RIX+j*4+3}], v{TT+6} offset:{j*1024}")
    e(f"v_mov_b32 v{T+6}, 0x3f803f80")
    e(f"v_mov_b32 v{T+7}, 0x3f803f80")
    e(f"ds_write_b64 v{vRB}, v[{T+6}:{T+7}] offset:{PADOFF}")
    e(f"ds_write_b64 v{vRB}, v[{T+6}:{T+7}] offset:{BUF1+PADOFF}")
    e("s_lshl_b32 s33, s26, 19")
    e("s_lshl_b32 s36, s28, 7")
    e("s_add_u32 s33, s33, s36")
    e("s_mov_b32 s39, 0")
    wait(vtag="misc")
    e(f"v_lshlrev_b32 v{T+5}, 16, v{T+5}")
    e(f"v_lshlrev_b32 v{T+4}, 2, v0")
    e(f"v_add_u32 v{T+4}, {LDS_BT}, v{T+4}")
    e(f"ds_write_b32 v{T+4}, v{T+5}")
    e(f"v_mov_b32 v{vTW}, v{T+8}")
    e("s_waitcnt lgkmcnt(0)")
    e("s_barrier")
    if cfg.PROF:
        e("s_memtime s[50:51]")
        e("s_waitcnt lgkmcnt(0)")

    def bias_reads(p):
        r = []
        for j in range(2):
            for u in range(4):
                b = ACC + p * 32 + j * 16 + u * 4
                off = (32 * j + 16 * (u >> 1) + 4 * (u & 1)) * 4
                r.append(("ds", f"bias{p}", f"ds_read_b128 v[{b}:{b+3}], v{vBI} offset:{off}"))
        return r

    def b_reads(p, s):
        b = bf(s)
        base = p * BUF1 + 64 * s
        if cfg.B64:
            return [("ds", ("B", p, s), f"ds_read_b64 v[{b}:{b+1}], v{vLB} offset:{base}"),
                    ("ds", ("B", p, s), f"ds_read_b64 v[{b+2}:{b+3}], v{vLB} offset:{base+8}"),
                    ("ds", ("B", p, s), f"ds_read_b64 v[{b+4}:{b+5}], v{vLB} offset:{base+32}"),
                    ("ds", ("B", p, s), f"ds_read_b64 v[{b+6}:{b+7}], v{vLB} offset:{base+40}")]
        return [("ds", ("B", p, s), f"ds_read_b128 v[{b}:{b+3}], v{vLB} offset:{base}"),
                ("ds", ("B", p, s), f"ds_read_b128 v[{b+4}:{b+7}], v{vLB} offset:{base+32}")]

    def g_items(p, j, c, gs, tag, pk=None):
        r = []
        pk = RPK + (j * RCH + c) * 2 if pk is None else pk
        for pb in range(4):
            d = GD + gs * 8 + 2 * pb
            r.append(("raw", f"v_add_u32_sdwa v{d}, v{vRB}, v{pk + (pb>>1)} dst_sel:DWORD dst_unused:UNUSED_PAD src0_sel:DWORD src1_sel:WORD_{pb&1}"))
        for pb in range(4):
            d = GD + gs * 8 + 2 * pb
            r.append(("ds", tag, f"ds_read_b64 v[{d}:{d+1}], v{d} offset:{p*BUF1}"))
        return r

    uid = [0]
    def gather_block(p, j, c, gs):
        uid[0] += 1
        lbl = f"L_g{uid[0]}"
        e(f"s_cmp_le_u32 s{30+j}, {c}")
        e(f"s_cbranch_scc1 {lbl}")
        for it in g_items(p, j, c, gs, None):
            e(it[-1])
        e(f"{lbl}:")
        ds.append(("Gmark", p, j, c))
    def mfma_block(p, j, c, gs):
        cond = c >= RU
        if cond:
            uid[0] += 1
            lbl = f"L_m{uid[0]}"
            e(f"s_cmp_le_u32 s{30+j}, {c}")
            e(f"s_cbranch_scc1 {lbl}")
            wait(dtag=("Gmark", p, j, c))
        else:
            wait(dtag=("G", p, j, c))
        ra = RAF + (j * RCH + c) * 4
        e(f"v_smfmac_f32_32x32x32_bf16 {acc(p,j)}, v[{ra}:{ra+3}], v[{GD+gs*8}:{GD+gs*8+7}], v{RIX + j*4 + (c>>1)}" + (" abid:1" if c & 1 else ""))
        if cond:
            e(f"{lbl}:")

    def epilogue_items(q):
        out = []
        for j in range(2):
            lst = []
            a = ACC + q * 32 + j * 16
            for i in range(8):
                lst.append(("raw", f"v_cvt_pk_bf16_f32 v{a + i}, v{a + 2*i}, v{a + 2*i + 1}"))
            lst.append(("ds", "tw", f"ds_write_b128 v{vTW}, v[{a}:{a+3}] offset:{64*j}"))
            lst.append(("ds", "tw", f"ds_write_b128 v{vTW}, v[{a+4}:{a+7}] offset:{64*j+32}"))
            out.append(lst)
        rb = []; st = []
        for i in range(4):
            a = ACC + q * 32 + 8 + (i >> 1) * 16 + (i & 1) * 4
            rb.append(("ds", ("tr", i), f"ds_read_b128 v[{a}:{a+3}], v{vTR} offset:{i*8*TRS}"))
            st.append(("W", ("tr", i)))
            st.append(("raw", f"s_add_u32 s36, s34, {i*8*2048}"))
            st.append(("vm", "st", f"buffer_store_dwordx4 v[{a}:{a+3}], v{vST}, s[16:19], s36 offen"))
        out.append(rb); out.append(st)
        return out

    emit_items(bias_reads(0))
    for s in range(PD):
        emit_items(b_reads(0, s))

    def block(p, first, last):
        q = p ^ 1
        order = [(j, c) for c in range(RCH) for j in range(2)] if not cfg.NORES else []
        ms0 = 0
        rq = []
        for z, (j, c) in enumerate(order):
            g0 = 2 * ms0 + int(min(cfg.RPER, (2 * (32 - PD) - 1 - cfg.RLAT - 2 * ms0) * 10 // 15) * z / 10)
            if c >= RU:
                rq.append((g0, 4, ("G", p, j, c, z & 1)))
            else:
                gi = g_items(p, j, c, z & 1, ("G", p, j, c))
                for k, it in enumerate(gi):
                    rq.append((g0 + (k >= 4), 1, it))
            rq.append((g0 + cfg.RLAT, 99, ("M", p, j, c, z & 1)))
        rq.sort(key=lambda t: t[0])
        fifo = []
        def add(items, min_step=0):
            for it in items:
                fifo.append((cfg.CVM if it[0] == "vm" else 1, min_step, it))
        ep = epilogue_items(q) if (not first and not cfg.NOEPI) else [[], [], [], []]
        dg = dma_groups(q, "Xn") if (not last and not cfg.NODMA) else [[] for _ in range(8)]
        br = bias_reads(q) if not last else []
        add(dg[0] + dg[1], 0)
        add(ep[0], 1); add(dg[2], 0); add(ep[1], 1); add(ep[2], 1); add(dg[3] + dg[4], 0)
        add(ep[3][:6], 1); add(dg[5], 0); add(ep[3][6:], 1); add(dg[6] + dg[7], 0)
        if dg[0]:
            add([("raw", f"s_mov_b32 m0, {LDS_SCR}"), ("raw", "s_nop 0"), ("vm", "touch", f"buffer_load_dword v{vTC}, s[12:15], s40 offen lds")], 0)
        add(br, 8)
        wl = {s: w_loads(s + LW) for s in range(32 - LW)} if first else {}

        def fill(s, gap, budget):
            if first: budget *= 2
            b0 = budget
            while rq and rq[0][0] <= gap:
                _, c, it = rq.pop(0)
                emit_items([it])
                budget = b0 if c == 99 else budget - c
            while fifo:
                c, ms, it = fifo[0]
                if ms > s or c > budget: return
                fifo.pop(0); emit_items([it]); budget -= c

        for s in range(32):
            if s == 0 and not last and not cfg.NODMA:
                e(f"s_cmp_lt_u32 s39, {8 - cfg.TD}")
                e("s_cselect_b32 s40, s41, 0x40000000")
                e("s_add_u32 s41, s41, 0x10000")
            if first:
                wait(dtag=("B", p, s), vtag=("W", s))
            else:
                wait(dtag=("B", p, s))
            if s == 0:
                wait(dtag=f"bias{p}")
            e(f"v_smfmac_f32_32x32x32_bf16 {acc(p,0)}, {A(0,s)}, v[{bf(s)}:{bf(s)+7}], v{IDX + (s>>1)}" + (" abid:1" if s & 1 else ""))
            sn = s + PD
            rd = b_reads(p, sn) if sn < 32 else []
            h = len(rd) // 2
            emit_items(rd[:h])
            if s in wl:
                emit_items(wl[s])
                fill(s, 2 * s, 0)
            else:
                fill(s, 2 * s, cfg.BUD - h)
            e(f"v_smfmac_f32_32x32x32_bf16 {acc(p,1)}, {A(1,s)}, v[{bf(s)}:{bf(s)+7}], v{IDX + 16 + (s>>1)}" + (" abid:1" if s & 1 else ""))
            emit_items(rd[h:])
            fill(s, 2 * s + 1, cfg.BUD - h - 1)
            if s == 32 - PD - 1:
                assert not fifo and not rq, ("fifo not drained", len(fifo), len(rq), first, last)
                for j in range(2):
                    uid[0] += 1
                    u = uid[0]
                    e(f"s_cmp_eq_u32 s{64+j}, 0")
                    e(f"s_cbranch_scc1 L_sp_end{u}")
                    e(f"v_lshrrev_b32 v{GD+13}, 4, v{vDX}")
                    for r in (2, 3, 4, 5, 6, 7, 9, 10, 11):
                        e(f"v_mov_b32 v{GD+r}, 0")
                    e("s_mov_b32 s58, 0")
                    e(f"L_sp_kr{u}:")
                    e("s_lshl_b32 s59, s28, 7")
                    e(f"s_add_u32 s59, s59, {j*64}")
                    e("s_add_u32 s59, s59, s58")
                    e("s_lshl_b32 s60, s59, 2")
                    e(f"s_add_u32 s60, s60, {WS_CNT}")
                    e(f"buffer_load_dword v{GD+15}, v{GD+9}, s[20:23], s60 offen sc1")
                    e("s_lshl_b32 s59, s59, 10")
                    e(f"s_add_u32 s59, s59, {WS_ENT:#x}")
                    e("s_waitcnt vmcnt(0)")
                    e(f"v_readfirstlane_b32 s60, v{GD+15}")
                    e("s_nop 3")
                    e("s_cmp_eq_u32 s60, 0")
                    e(f"s_cbranch_scc1 L_sp_nx{u}")
                    e(f"L_sp_e{u}:")
                    e(f"buffer_load_dword v{GD+15}, v{GD+9}, s[20:23], s59 offen sc1")
                    e("s_waitcnt vmcnt(0)")
                    e(f"v_readfirstlane_b32 s62, v{GD+15}")
                    e("s_nop 3")
                    e("s_lshr_b32 s63, s62, 26")
                    e(f"v_cmp_eq_u32 vcc, s63, v{GD+13}")
                    e("s_and_b32 s63, s62, 0xffff")
                    e(f"v_mov_b32 v{GD+14}, s63")
                    e("s_bfe_u32 s63, s62, 0x80010")
                    e("s_lshl_b32 s63, s63, 3")
                    e(f"v_add_u32 v{GD}, s63, v{vRB}")
                    e(f"v_cndmask_b32 v{GD+8}, 0, v{GD+14}, vcc")
                    e("s_bfe_u32 s63, s62, 0x20018")
                    e(f"v_mov_b32 v{GD+12}, s63")
                    e(f"ds_read_b64 v[{GD}:{GD+1}], v{GD} offset:{p*BUF1}")
                    e("s_waitcnt lgkmcnt(0)")
                    e(f"v_smfmac_f32_32x32x32_bf16 {acc(p,j)}, v[{GD+8}:{GD+11}], v[{GD}:{GD+7}], v{GD+12}")
                    e("s_add_u32 s59, s59, 4")
                    e("s_sub_u32 s60, s60, 1")
                    e("s_cmp_lg_u32 s60, 0")
                    e("s_nop 4")
                    e(f"s_cbranch_scc1 L_sp_e{u}")
                    e(f"L_sp_nx{u}:")
                    e("s_add_u32 s58, s58, 1")
                    e("s_cmp_lt_u32 s58, 64")
                    e(f"s_cbranch_scc1 L_sp_kr{u}")
                    e(f"L_sp_end{u}:")
            if sn >= 32 and not last:
                if sn == 32:
                    if cfg.PROF:
                        e("s_memtime s[54:55]")
                    if cfg.NODMA:
                        e("s_waitcnt lgkmcnt(0)")
                    else:
                        e(f"s_waitcnt vmcnt({min(vm_n('Xn'),63)}) lgkmcnt(0)")
                    e("s_barrier")
                    if cfg.PROF:
                        e("s_memtime s[56:57]")
                        e("s_waitcnt lgkmcnt(0)")
                        e("s_sub_u32 s56, s56, s54")
                        e("s_add_u32 s52, s52, s56")
                emit_items(b_reads(q, sn - 32))
            if s == 31:
                e("s_mov_b32 s34, s33")
                e("s_add_u32 s33, s33, 0x10000")
                e("s_add_u32 s37, s37, 0x10000")
                e("s_add_u32 s39, s39, 1")

    block(0, True, False)
    e("L_loop:")
    block(1, False, False)
    block(0, False, False)
    e("s_cmp_lt_u32 s39, 7")
    e("s_cbranch_scc1 L_loop")
    block(1, False, True)
    e("s_nop 15")
    for lst in epilogue_items(1):
        emit_items(lst)
    if cfg.PROF:
        e("s_memtime s[54:55]")
        e("s_memrealtime s[98:99]")
        e("s_waitcnt lgkmcnt(0)")
        e("s_sub_u32 s56, s50, s48")
        e("s_sub_u32 s57, s54, s50")
        e("s_sub_u32 s48, s98, s96")
        e("s_nop 4")
        e(f"v_mov_b32 v{GD}, s56")
        e(f"v_mov_b32 v{GD+1}, s52")
        e(f"v_mov_b32 v{GD+2}, s57")
        e(f"v_mov_b32 v{GD+3}, s48")
        e("s_lshl_b32 s36, s2, 2")
        e("s_add_u32 s36, s36, s24")
        e("s_lshl_b32 s36, s36, 4")
        e("s_add_u32 s36, s36, 0x8000000")
        e(f"v_mov_b32 v{GD+4}, 0")
        e(f"buffer_store_dwordx4 v[{GD}:{GD+3}], v{GD+4}, s[20:23], s36 offen")
    e("L_main_end:")
    e("s_endpgm")


gen_main()

tail = """
.section .rodata,"a"
.p2align 6
.amdhsa_kernel standalone__structured_sparse_n_m__ragged_kernel
  .amdhsa_next_free_vgpr 512
  .amdhsa_next_free_sgpr 102
  .amdhsa_accum_offset 256
  .amdhsa_group_segment_fixed_size 0
  .amdhsa_kernarg_size 48
  .amdhsa_user_sgpr_count 2
  .amdhsa_user_sgpr_kernarg_segment_ptr 1
  .amdhsa_system_sgpr_workgroup_id_x 1
.end_amdhsa_kernel
"""
open(OUT, "w").write(hdr + "\n".join(L) + "\n" + tail)
print("wrote", OUT, len(L), "lines")
```

```python
import sys

OUT = "standalone__structured_sparse_n_m__ragged.s"
import os
OUT = os.environ.get("GEN_OUT", OUT)

WS_CNT = 0x0
WS_WI = 0x4000
WS_WA = 0x40000
WS_ENT = 0x200000
WS_SIZE = 0x10000000

class Cfg:
    B64 = 0
    RU = 5
    LW = 8
    TD = 2
    DS0 = 0
    DSS = 2
    NB = 4
    PD = 3
    RCH = 8
    PROF = 0
    SLP0 = 64
    SLP = 8
    DGS = 4
    DG0F = 0
    DMAFIRST = 1
    XSAME = 0
    OSAME = 0
    TMO = 20000
    NPF = 128
    PB = 4
    RPER = 33
    RLAT = 6
    BUD = 5
    CVM = 2
    NODMA = 0
    NORES = 0
    NOEPI = 0
    NOREAD = 0

cfg = Cfg()
for a in sys.argv[1:]:
    k, v = a.split("=")
    setattr(cfg, k, int(v))

if cfg.B64:
    RS = 4120
    BUF1 = 2056
else:
    RS = 4144
    BUF1 = 2064
PADOFF = 2048
LDS_X = 32 * RS
LDS_BT = LDS_X
LDS_TR = LDS_X + 1024
TRS = 144
LDS_SCR = LDS_TR + 4 * 32 * TRS
LDS_TOTAL = LDS_SCR + 256 + 16

L = []
def e(s=""):
    L.append("    " + s if s and not s.endswith(":") else s)

hdr = f"""; 2:4 structured-sparse GEMM  out = x @ prune24(w) + b   (B*S=16384, D=1024), bf16
; @launch grid=(256,1,1) block=(256,1,1) lds={LDS_TOTAL}
.amdgcn_target "amdgcn-amd-amdhsa--gfx950"
.text
"""

def gen_prep_slice():
    TBL = {0: 4, 1: 4, 2: 4, 4: 8, 8: 12, 3: 4, 5: 8, 6: 9, 7: 4, 9: 12, 10: 13, 11: 4, 12: 14, 13: 8, 14: 9, 15: 4}
    T64 = 0
    for k, v in TBL.items():
        T64 |= v << (4 * k)
    ET = {7: 1, 11: 2, 13: 2, 14: 2, 15: 3}
    E32 = 0
    for k, v in ET.items():
        E32 |= v << (2 * k)
    R = 64
    def v(n): return f"v{R+n}"
    e("s_mov_b32 s76, 0x7fff7fff")
    e("s_mov_b32 s77, 0x00010001")
    e("s_mov_b32 s78, 0x000f000f")
    e(f"s_mov_b32 s80, {T64 & 0xffffffff:#x}")
    e(f"s_mov_b32 s81, {T64 >> 32:#x}")
    e(f"s_mov_b32 s82, {E32:#x}")
    e("s_mov_b32 s83, 0x05040100")
    e("s_mov_b32 s84, 0x07060302")
    e("s_mov_b32 s85, 0x01000100")
    e("s_mov_b32 s86, 0x0202")
    e(f"v_lshlrev_b32 {v(3)}, 2, v0")
    e("s_lshl_b32 s89, s87, 15")
    e("s_lshl_b32 s90, s88, 10")
    e("s_add_u32 s89, s89, s90")
    D = 8
    for kk in range(0, 16, 2):
        e(f"buffer_load_dword {v(D+kk)}, {v(3)}, s[68:71], s89 offen")
        e(f"buffer_load_dword {v(D+kk+1)}, {v(3)}, s[68:71], s89 offen offset:2048")
        if kk < 14:
            e("s_add_u32 s89, s89, 4096")
    e(f"v_and_b32 {v(1)}, 15, v0")
    e(f"v_lshrrev_b32 {v(2)}, 4, v0")
    e("s_lshl_b32 s90, s88, 4")
    e(f"v_add_u32 {v(2)}, s90, {v(2)}")
    e(f"v_and_b32 {v(4)}, 9, {v(1)}")
    e(f"v_bfe_u32 {v(5)}, {v(1)}, 1, 1")
    e(f"v_bfe_u32 {v(6)}, {v(1)}, 2, 1")
    e(f"v_lshl_or_b32 {v(4)}, {v(5)}, 2, {v(4)}")
    e(f"v_lshl_or_b32 {v(4)}, {v(6)}, 1, {v(4)}")
    e(f"v_lshlrev_b32 {v(4)}, 1, {v(4)}")
    e(f"v_lshlrev_b32 {v(24)}, 15, {v(2)}")
    e(f"v_lshl_add_u32 {v(24)}, {v(4)}, 4, {v(24)}")
    e(f"v_lshlrev_b32 {v(25)}, 12, {v(2)}")
    e(f"v_lshl_add_u32 {v(25)}, {v(4)}, 4, {v(25)}")
    e("s_lshr_b32 s91, s87, 1")
    e("s_and_b32 s92, s87, 1")
    e("s_lshl_b32 s93, s91, 10")
    e("s_lshl_b32 s92, s92, 9")
    e("s_add_u32 s93, s93, s92")
    e(f"s_add_u32 s93, s93, {WS_WA:#x}")
    e("s_lshr_b32 s94, s91, 3")
    e("s_lshl_b32 s94, s94, 10")
    e("s_add_u32 s94, s94, s92")
    e("s_and_b32 s91, s91, 7")
    e("s_lshl_b32 s91, s91, 1")
    e("s_add_u32 s94, s94, s91")
    e(f"s_add_u32 s94, s94, {WS_WI:#x}")
    e(f"v_mov_b32 {v(36)}, 0")
    e(f"v_mov_b32 {v(37)}, 0")
    e(f"v_mov_b32 {v(38)}, 0")
    for g in range(4):
        a, b, c, d = (D + 4 * g + i for i in range(4))
        e(f"s_waitcnt vmcnt({12 - 4*g})")
        for i, r in enumerate((a, b, c, d)):
            e(f"v_and_b32 {v(40+i)}, s76, {v(r)}")
        e(f"v_pk_max_u16 {v(44)}, {v(40)}, {v(41)}")
        e(f"v_pk_min_u16 {v(45)}, {v(40)}, {v(41)}")
        e(f"v_pk_max_u16 {v(46)}, {v(42)}, {v(43)}")
        e(f"v_pk_min_u16 {v(47)}, {v(42)}, {v(43)}")
        e(f"v_pk_min_u16 {v(44)}, {v(44)}, {v(46)}")
        e(f"v_pk_max_u16 {v(45)}, {v(45)}, {v(47)}")
        e(f"v_pk_max_u16 {v(44)}, {v(44)}, {v(45)}")
        e(f"v_pk_max_u16 {v(44)}, {v(44)}, s77")
        for i in range(4):
            e(f"v_pk_sub_u16 {v(40+i)}, {v(44)}, {v(40+i)} clamp")
        for i in range(4):
            e(f"v_pk_min_u16 {v(40+i)}, {v(40+i)}, s77")
        e(f"v_lshl_or_b32 {v(40)}, {v(41)}, 1, {v(40)}")
        e(f"v_lshl_or_b32 {v(40)}, {v(42)}, 2, {v(40)}")
        e(f"v_lshl_or_b32 {v(40)}, {v(43)}, 3, {v(40)}")
        e(f"v_xor_b32 {v(40)}, s78, {v(40)}")
        for ee in range(2):
            sel = 83 + ee
            e(f"v_bfe_u32 {v(41)}, {v(40)}, {16*ee}, 4")
            e(f"v_lshlrev_b32 {v(42)}, 2, {v(41)}")
            e(f"v_lshrrev_b64 v[{R+46}:{R+47}], {v(42)}, s[80:81]")
            e(f"v_and_b32 {v(46)}, 15, {v(46)}")
            e(f"v_lshl_or_b32 {v(36+ee)}, {v(46)}, {4*g}, {v(36+ee)}")
            e(f"v_perm_b32 {v(48)}, {v(b)}, {v(a)}, s{sel}")
            e(f"v_perm_b32 {v(49)}, {v(d)}, {v(c)}, s{sel}")
            e(f"v_and_b32 {v(47)}, 3, {v(46)}")
            e(f"v_lshrrev_b32 {v(46)}, 2, {v(46)}")
            e(f"v_lshl_or_b32 {v(46)}, {v(46)}, 16, {v(47)}")
            e(f"v_mov_b32 {v(47)}, s85")
            e(f"v_mad_u32_u24 {v(46)}, {v(46)}, s86, {v(47)}")
            e(f"v_perm_b32 {v(28+4*ee+g)}, {v(49)}, {v(48)}, {v(46)}")
            e(f"v_lshlrev_b32 {v(42)}, 1, {v(41)}")
            e(f"v_lshrrev_b32 {v(43)}, {v(42)}, s82")
            e(f"v_and_b32 {v(43)}, 3, {v(43)}")
            e(f"v_lshl_or_b32 {v(38)}, {v(43)}, {2*(2*g+ee)}, {v(38)}")
    e(f"buffer_store_dwordx4 v[{R+28}:{R+31}], {v(24)}, s[20:23], s93 offen sc1")
    e(f"buffer_store_dwordx4 v[{R+32}:{R+35}], {v(24)}, s[20:23], s93 offen offset:16 sc1")
    e(f"buffer_store_short {v(36)}, {v(25)}, s[20:23], s94 offen sc1")
    e(f"buffer_store_short {v(37)}, {v(25)}, s[20:23], s94 offen offset:16 sc1")
    e(f"v_bcnt_u32_b32 {v(39)}, {v(38)}, 0")
    e(f"v_mov_b32 {v(40)}, {v(39)}")
    e("s_nop 1")
    for sh in (1, 2, 4, 8):
        e(f"v_add_u32_dpp {v(40)}, {v(40)}, {v(40)} row_shr:{sh} row_mask:0xf bank_mask:0xf bound_ctrl:0")
        e("s_nop 1")
    e(f"v_lshlrev_b32 {v(41)}, 8, {v(2)}")
    e("s_lshl_b32 s89, s87, 2")
    e(f"v_cmp_eq_u32 vcc, 15, {v(1)}")
    e("s_and_saveexec_b64 s[66:67], vcc")
    e(f"buffer_store_dword {v(40)}, {v(41)}, s[20:23], s89 offen offset:{WS_CNT} sc1")
    e("s_mov_b64 exec, s[66:67]")
    e(f"v_sub_u32 {v(40)}, {v(40)}, {v(39)}")
    e(f"v_lshlrev_b32 {v(41)}, 16, {v(2)}")
    e("s_lshl_b32 s89, s87, 10")
    e(f"s_add_u32 s89, s89, {WS_ENT:#x}")
    e("s_lshl_b32 s90, s87, 18")
    for g in range(4):
        for ee in range(2):
            for p in (2, 3):
                bit = 2 * (2 * g + ee) + (p - 2)
                lbl = f"L_prep_sc_{bit}"
                e(f"v_and_b32 {v(42)}, {1 << bit:#x}, {v(38)}")
                e(f"v_cmp_ne_u32 vcc, 0, {v(42)}")
                e("s_and_saveexec_b64 s[66:67], vcc")
                e(f"s_cbranch_execz {lbl}")
                e(f"v_and_b32 {v(42)}, {(1 << bit) - 1:#x}, {v(38)}")
                e(f"v_bcnt_u32_b32 {v(42)}, {v(42)}, {v(40)}")
                e(f"v_lshl_add_u32 {v(42)}, {v(42)}, 2, {v(41)}")
                src = D + 4 * g + p
                if ee == 0:
                    e(f"v_and_b32 {v(43)}, 0xffff, {v(src)}")
                else:
                    e(f"v_lshrrev_b32 {v(43)}, 16, {v(src)}")
                e(f"s_add_u32 s91, s90, {(g << 16) | (p << 24) | (ee << 26):#x}")
                e(f"v_or_b32 {v(43)}, s91, {v(43)}")
                e(f"v_lshl_add_u32 {v(43)}, {v(4)}, 26, {v(43)}")
                e(f"buffer_store_dword {v(43)}, {v(42)}, s[20:23], s89 offen sc1")
                e(f"{lbl}:")
                e("s_mov_b64 exec, s[66:67]")


def gen_main():
    NB, PD, RCH, RU, LW = cfg.NB, cfg.PD, cfg.RCH, cfg.RU, cfg.LW
    nxt = [1]
    def alloc(n, align=1):
        while nxt[0] % align:
            nxt[0] += 1
        r = nxt[0]
        nxt[0] += n
        return r
    vLB = alloc(1); vRB = alloc(1); vDX = alloc(1); vST = alloc(1); vBI = alloc(1)
    vTC = alloc(1); vTR = alloc(1)
    vTW = 0
    IDX = alloc(32, 4)
    ACC = alloc(64, 4)
    BF = alloc(8 * NB, 4)
    RAF = alloc(2 * RCH * 4, 4)
    RIX = alloc(2 * RCH // 2, 4)
    RPK = alloc(2 * RCH * 2, 4)
    GD = alloc(16, 4)
    assert nxt[0] <= 256, nxt[0]

    def A(j, s):
        b = (s * 2 + j) * 4
        return f"a[{b}:{b+3}]"
    def acc(p, j):
        b = ACC + p * 32 + j * 16
        return f"v[{b}:{b+15}]"
    def bf(s):
        return BF + (s % NB) * 8

    ds = []
    vm = []
    def is_mark(t):
        return isinstance(t, tuple) and t[0] == "Gmark"
    def ds_issue(tag, ins):
        e(ins); ds.append(tag)
    def vm_issue(tag, ins):
        e(ins); vm.append(tag)
    def ds_n(tag):
        idx = max(i for i, t in enumerate(ds) if t == tag)
        return sum(1 for t in ds[idx+1:] if not is_mark(t))
    def vm_n(tag):
        idx = max(i for i, t in enumerate(vm) if t == tag)
        return len(vm) - 1 - idx
    def wait(dtag=None, vtag=None):
        w = []
        if vtag is not None:
            w.append(f"vmcnt({min(vm_n(vtag), 63)})")
        if dtag is not None:
            w.append(f"lgkmcnt({min(ds_n(dtag), 15)})")
        e("s_waitcnt " + " ".join(w))

    name = "standalone__structured_sparse_n_m__ragged_kernel"
    e(f".globl {name}")
    e(".p2align 8")
    e(f".type {name},@function")
    e(f"{name}:")
    e("s_cmp_ge_u32 s2, 256")
    e("s_cbranch_scc1 L_main_end")
    if cfg.PROF:
        e("s_memtime s[48:49]")
        e("s_memrealtime s[96:97]")
        e("s_mov_b32 s52, 0")
    e("s_load_dwordx2 s[4:5], s[0:1], 0")
    e("s_load_dwordx2 s[6:7], s[0:1], 16")
    e("s_load_dwordx2 s[8:9], s[0:1], 24")
    e("s_load_dwordx2 s[10:11], s[0:1], 40")
    e("s_load_dwordx2 s[68:69], s[0:1], 8")
    e("s_load_dwordx2 s[72:73], s[0:1], 32")
    e(f"v_lshrrev_b32 v{vTR}, 6, v0")
    e("s_nop 0")
    e(f"v_readfirstlane_b32 s24, v{vTR}")
    e("s_and_b32 s25, s2, 7")
    e("s_lshr_b32 s26, s2, 3")
    e("s_and_b32 s27, s26, 3")
    e("s_lshr_b32 s26, s26, 2")
    e("s_lshl_b32 s25, s25, 3")
    e("s_add_u32 s26, s26, s25")
    e("s_lshl_b32 s28, s27, 2")
    e("s_add_u32 s28, s28, s24")
    T = GD
    e(f"v_and_b32 v{T}, 63, v0")
    e(f"v_and_b32 v{T+1}, 31, v0")
    e(f"v_bfe_u32 v{T+2}, v0, 5, 1")
    e(f"v_mul_u32_u24 v{vRB}, {RS}, v{T+1}")
    e(f"v_lshl_add_u32 v{vLB}, v{T+2}, 4, v{vRB}")
    e(f"v_lshlrev_b32 v{vDX}, 4, v{T}")
    e(f"v_lshrrev_b32 v{T+6}, 3, v{T}")
    e(f"v_and_b32 v{T+7}, 7, v{T}")
    e(f"v_lshlrev_b32 v{vST}, 11, v{T+6}")
    e(f"v_lshl_add_u32 v{vST}, v{T+7}, 4, v{vST}")
    e(f"s_mul_i32 s29, s24, {32*TRS}")
    e(f"s_add_u32 s29, s29, {LDS_TR}")
    e(f"v_mul_u32_u24 v{vTR}, {TRS}, v{T+6}")
    e(f"v_lshl_add_u32 v{vTR}, v{T+7}, 4, v{vTR}")
    e(f"v_add_u32 v{vTR}, s29, v{vTR}")
    e(f"v_mul_u32_u24 v{T+8}, {TRS}, v{T+1}")
    e(f"v_lshl_add_u32 v{T+8}, v{T+2}, 4, v{T+8}")
    e(f"v_add_u32 v{T+8}, s29, v{T+8}")
    e(f"v_lshlrev_b32 v{vTC}, 6, v{T}")
    e("s_lshl_b32 s29, s24, 8")
    e(f"s_add_u32 s29, s29, {LDS_BT}")
    e(f"v_lshlrev_b32 v{vBI}, 5, v{T+2}")
    e(f"v_add_u32 v{vBI}, s29, v{vBI}")
    e(f"v_lshlrev_b32 v{T+3}, 3, v{T+2}")
    e(f"v_lshlrev_b32 v{T+4}, 1, v0")
    e("s_waitcnt lgkmcnt(0)")
    e("s_mov_b32 s12, s4"); e("s_and_b32 s13, s5, 0xffff"); e("s_mov_b32 s14, 0x2000000"); e("s_mov_b32 s15, 0x00020000")
    e("s_mov_b32 s16, s8"); e("s_and_b32 s17, s9, 0xffff"); e("s_mov_b32 s18, 0x2000000"); e("s_mov_b32 s19, 0x00020000")
    e("s_mov_b32 s20, s10"); e("s_and_b32 s21, s11, 0xffff"); e(f"s_mov_b32 s22, {WS_SIZE:#x}"); e("s_mov_b32 s23, 0x00020000")
    e("s_mov_b32 s44, s6"); e("s_and_b32 s45, s7, 0xffff"); e("s_mov_b32 s46, 0x800"); e("s_mov_b32 s47, 0x00020000")
    e("s_and_b32 s69, s69, 0xffff"); e("s_mov_b32 s70, 0x200000"); e("s_mov_b32 s71, 0x00020000")
    e("s_and_b32 s73, s73, 0xffff"); e("s_mov_b32 s74, 0x100"); e("s_mov_b32 s75, 0x00020000")
    e("s_lshl_b32 s37, s26, 19")
    e("s_lshl_b32 s33, s24, 14")
    e("s_add_u32 s37, s37, s33")
    e(f"s_mul_i32 s35, s24, {8*RS}")
    e("s_lshl_b32 s41, s26, 19")
    e("s_lshl_b32 s33, s27, 14")
    e("s_add_u32 s41, s41, s33")
    e("s_lshl_b32 s33, s24, 12")
    e("s_add_u32 s41, s41, s33")
    e(f"s_add_u32 s41, s41, {cfg.TD * 0x10000}")

    def dma_groups(p, tag):
        ins = []
        for r in range(8):
            ins.append([("raw", f"s_add_u32 m0, s35, {r*RS + p*BUF1}"),
                        ("raw", f"s_add_u32 s36, s37, {r*2048}"),
                        ("vm", tag, f"buffer_load_dwordx4 v{vDX}, s[12:15], s36 offen lds"),
                        ("vm", tag, f"buffer_load_dwordx4 v{vDX}, s[12:15], s36 offen offset:1024 lds")])
        return ins
    def emit_items(items):
        for x in items:
            if x[0] == "raw": e(x[1])
            elif x[0] == "ds": ds_issue(x[1], x[2])
            elif x[0] == "vm": vm_issue(x[1], x[2])
            elif x[0] == "G": gather_block(*x[1:])
            elif x[0] == "M": mfma_block(*x[1:])
            elif x[0] == "W": wait(dtag=x[1])
            else: raise Exception(x)

    e("s_lshr_b32 s87, s2, 1")
    e("s_and_b32 s88, s2, 1")
    e("s_mov_b32 s95, 0")
    e(f"v_mov_b32 v{GD+9}, 0")
    e(f"v_mov_b32 v{GD+10}, 1")
    e("s_cmp_ge_u32 s2, 128")
    e("s_cbranch_scc1 L_prep_skip")
    e("L_prep_again:")
    gen_prep_slice()
    e("s_cmp_eq_u32 s95, 0")
    e("s_cbranch_scc1 L_prep_signal0")
    e("s_add_u32 s87, s87, 1")
    e("s_cmp_lt_u32 s87, 64")
    e("s_cbranch_scc1 L_prep_again")
    e("s_waitcnt vmcnt(0)")
    e("s_barrier")
    e("s_branch L_sync_done")
    e("L_prep_signal0:")
    if cfg.PROF: e("s_memtime s[100:101]")
    e(f"s_waitcnt vmcnt(0)")
    if cfg.PROF:
        e("s_memtime s[54:55]")
        e("s_waitcnt lgkmcnt(0)")
        e("s_sub_u32 s100, s100, s48")
        e("s_sub_u32 s101, s54, s48")
    e("s_barrier")
    e("s_cmp_lg_u32 s24, 0")
    e("s_cbranch_scc1 L_x0")
    e("s_lshl_b32 s36, s88, 6")
    e("s_add_u32 s36, s36, s87")
    e("v_cmp_eq_u32 vcc, 0, v0")
    e("s_and_saveexec_b64 s[66:67], vcc")
    e(f"buffer_store_byte v{GD+10}, v{GD+9}, s[72:75], s36 offen sc1")
    e("s_mov_b64 exec, s[66:67]")
    e("s_branch L_poll_setup")
    e("L_prep_skip:")
    e("s_cmp_lg_u32 s24, 0")
    e("s_cbranch_scc1 L_x0")
    for _ in range(cfg.SLP0 // 64):
        e("s_sleep 64")
    e("L_poll_setup:")
    e("s_lshr_b32 s36, s27, 1")
    e("s_lshl_b32 s36, s36, 6")
    e(f"v_and_b32 v{GD+12}, 15, v0")
    e(f"v_lshlrev_b32 v{GD+12}, 2, v{GD+12}")
    e("s_mov_b32 s89, 0x01010101")
    e("s_memrealtime s[90:91]")
    e("L_poll:")
    e(f"buffer_load_dword v{GD+11}, v{GD+12}, s[72:75], s36 offen sc1")
    e("s_memrealtime s[92:93]")
    e("s_waitcnt vmcnt(0) lgkmcnt(0)")
    e(f"v_cmp_ne_u32 vcc, s89, v{GD+11}")
    e("s_sub_u32 s92, s92, s90")
    e("s_cmp_eq_u64 vcc, 0")
    e("s_cbranch_scc1 L_poll_ok")
    if cfg.SLP: e(f"s_sleep {cfg.SLP}")
    e(f"s_cmp_lt_u32 s92, {cfg.TMO}")
    e("s_cbranch_scc1 L_poll")
    e(f"v_mov_b32 v{GD+9}, 1")
    e("L_poll_ok:")
    e(f"v_mov_b32 v{GD+10}, {LDS_SCR + 256}")
    e(f"ds_write_b32 v{GD+10}, v{GD+9}")
    e("s_waitcnt lgkmcnt(0)")
    e("s_branch L_sync_wait")
    e("L_x0:")
    for r in range(8):
        e(f"s_add_u32 m0, s35, {r*RS}")
        e(f"s_add_u32 s36, s37, {r*2048}")
        e(f"buffer_load_dwordx4 v{vDX}, s[12:15], s36 offen lds")
        e(f"buffer_load_dwordx4 v{vDX}, s[12:15], s36 offen offset:1024 lds")
    e(f"s_mov_b32 m0, {LDS_SCR}")
    for tb in range(1, cfg.TD):
        e(f"s_sub_u32 s36, s41, {(cfg.TD - tb) * 0x10000}")
        e(f"buffer_load_dword v{vTC}, s[12:15], s36 offen lds")
    e("s_cmp_lg_u32 s24, 1")
    e("s_cbranch_scc1 L_sync_wait")
    for r in range(8):
        e(f"s_mov_b32 m0, {r*RS}")
        e(f"s_sub_u32 s36, s37, {8*2048 - r*2048}")
        e(f"buffer_load_dwordx4 v{vDX}, s[12:15], s36 offen lds")
        e(f"buffer_load_dwordx4 v{vDX}, s[12:15], s36 offen offset:1024 lds")
    e(f"s_mov_b32 m0, {LDS_SCR}")
    for tb in range(1, cfg.TD):
        e(f"s_sub_u32 s36, s41, {(cfg.TD - tb) * 0x10000 + 4096}")
        e(f"buffer_load_dword v{vTC}, s[12:15], s36 offen lds")
    e("L_sync_wait:")
    e("s_add_u32 s37, s37, 0x10000")
    if cfg.PROF:
        e("s_memrealtime s[58:59]")
        e("s_waitcnt lgkmcnt(0)")
    e("s_barrier")
    e(f"v_mov_b32 v{GD+10}, {LDS_SCR + 256}")
    e(f"ds_read_b32 v{GD+9}, v{GD+10}")
    e("s_waitcnt lgkmcnt(0)")
    e(f"v_readfirstlane_b32 s95, v{GD+9}")
    e("s_mov_b32 s87, 0")
    e("s_lshr_b32 s88, s27, 1")
    e("s_cmp_lg_u32 s95, 0")
    e("s_cbranch_scc1 L_prep_again")
    e("L_sync_done:")
    if cfg.PROF:
        e("s_memtime s[54:55]")
        e("s_waitcnt lgkmcnt(0)")
        e("s_sub_u32 s53, s54, s48")
        e("s_memrealtime s[60:61]")
        e("s_waitcnt lgkmcnt(0)")
    TT = ACC
    e(f"v_lshlrev_b32 v{TT+3}, 2, v{T}")
    e(f"v_lshlrev_b32 v{TT+4}, 10, v{T}")
    for j in range(2):
        e("s_lshl_b32 s36, s28, 9")
        e(f"s_add_u32 s36, s36, {WS_CNT + j*256:#x}")
        vm_issue("ent", f"buffer_load_dword v{TT+8+j}, v{TT+3}, s[20:23], s36 offen sc1")
        e("s_lshl_b32 s36, s28, 17")
        e(f"s_add_u32 s36, s36, {WS_ENT + j*0x10000:#x}")
        vm_issue("ent", f"buffer_load_dwordx4 v[{TT+12+8*j}:{TT+15+8*j}], v{TT+4}, s[20:23], s36 offen sc1")
        vm_issue("ent", f"buffer_load_dwordx4 v[{TT+16+8*j}:{TT+19+8*j}], v{TT+4}, s[20:23], s36 offen offset:16 sc1")
    e("s_lshl_b32 s36, s27, 9")
    vm_issue("misc", f"buffer_load_ushort v{T+5}, v{T+4}, s[44:47], s36 offen")
    e("s_lshl_b32 s36, s28, 13")
    e(f"s_add_u32 s36, s36, {WS_WI:#x}")
    for j in range(2):
        for u in range(4):
            b = IDX + j * 16 + u * 4
            if j == 1 and u == 0:
                e("s_add_u32 s36, s36, 0x1000")
            vm_issue("misc2", f"buffer_load_dwordx4 v[{b}:{b+3}], v{vDX}, s[20:23], s36 offen offset:{u*1024} sc1")
    e("s_lshl_b32 s42, s28, 16")
    e(f"s_add_u32 s42, s42, {WS_WA:#x}")
    e("s_add_u32 s43, s42, 0x8000")
    def w_loads(s):
        r = []
        if s % 4 == 0 and s:
            r.append(("raw", "s_add_u32 s42, s42, 0x1000"))
            r.append(("raw", "s_add_u32 s43, s43, 0x1000"))
        for j in range(2):
            r.append(("vm", ("W", s), f"buffer_load_dwordx4 {A(j,s)}, v{vDX}, s[20:23], s{42+j} offen offset:{(s%4)*1024} sc1"))
        return r
    for s in range(2):
        emit_items(w_loads(s))
    for s in range(2, LW):
        emit_items(w_loads(s))
    e(f"s_add_u32 s36, s35, {BUF1}")
    e(f"v_add_u32 v{TT+5}, s36, v{vDX}")
    e(f"s_mul_i32 s38, s24, {32*TRS}")
    e(f"s_add_u32 s38, s38, {LDS_TR}")
    e(f"v_add_u32 v{TT+6}, s38, v{vDX}")
    for i in range(4):
        e(f"v_mov_b32 v{TT+28+i}, 0")
    e(f"v_mov_b32 v{TT+32}, {PADOFF | (PADOFF << 16):#x}")
    e(f"v_add_u32 v{TT+7}, s38, v{TT+3}")
    for j in range(2):
        for c in range(RCH):
            e(f"ds_write_b128 v{TT+5}, v[{TT+28}:{TT+31}] offset:{(4*j + (c>>1))*RS + (c&1)*1024}")
        e(f"ds_write_b128 v{TT+6}, v[{TT+28}:{TT+31}] offset:{j*1024}")
    e(f"ds_write_b32 v{TT+7}, v{TT+32} offset:2048")
    wait(vtag="ent")
    for j in range(2):
        C = TT + 8 + j; S = TT + 33; E = TT + 12 + 8 * j
        e(f"v_mov_b32 v{S}, v{C}")
        e(f"v_cmp_lt_u32 vcc, 8, v{C}")
        for sh in (1, 2, 4, 8):
            e("s_nop 0")
            e(f"v_add_u32_dpp v{S}, v{S}, v{S} row_shr:{sh} row_mask:0xf bank_mask:0xf bound_ctrl:0")
            e("s_nop 0")
        e("s_nop 0")
        e(f"v_add_u32_dpp v{S}, v{S}, v{S} row_bcast:15 row_mask:0xa bank_mask:0xf")
        e("s_nop 1")
        e(f"v_add_u32_dpp v{S}, v{S}, v{S} row_bcast:31 row_mask:0xc bank_mask:0xf")
        e("s_nop 1")
        e(f"v_readlane_b32 s36, v{S}, 63")
        e(f"v_sub_u32 v{S}, v{S}, v{C}")
        e("s_cmp_lg_u64 vcc, 0")
        e(f"s_cselect_b32 s{64+j}, 1, 0")
        e(f"s_cmp_gt_u32 s36, {8*RCH}")
        e(f"s_cselect_b32 s{64+j}, 1, s{64+j}")
        e("s_add_u32 s36, s36, 7")
        e("s_lshr_b32 s36, s36, 3")
        e(f"s_cmp_eq_u32 s{64+j}, 0")
        e(f"s_cselect_b32 s{30+j}, s36, 0")
        e(f"s_cbranch_scc0 L_bld_skip{j}")
        for en in range(8):
            t = TT + 34
            e(f"v_cmp_lt_u32 vcc, {en}, v{C}")
            e("s_and_saveexec_b64 s[66:67], vcc")
            e(f"s_cbranch_execz L_bld_e{j}_7")
            e(f"v_add_u32 v{t}, {en}, v{S}")
            e(f"v_lshrrev_b32 v{t+1}, 3, v{t}")
            e(f"v_bfe_u32 v{t+2}, v{t}, 2, 1")
            e(f"v_and_b32 v{t+3}, 3, v{t}")
            e(f"v_lshrrev_b32 v{t+4}, 26, v{E+en}")
            e(f"v_lshl_add_u32 v{t+4}, v{t+2}, 5, v{t+4}")
            e(f"v_lshlrev_b32 v{t+4}, 4, v{t+4}")
            e(f"v_lshrrev_b32 v{t+5}, 1, v{t+1}")
            e(f"v_and_b32 v{t+6}, 1, v{t+1}")
            e(f"v_mul_u32_u24 v{t+7}, {RS}, v{t+5}")
            e(f"v_lshl_add_u32 v{t+7}, v{t+6}, 10, v{t+7}")
            e(f"v_add3_u32 v{t+7}, v{t+7}, v{t+4}, s35")
            e(f"v_lshl_add_u32 v{t+7}, v{t+3}, 2, v{t+7}")
            e(f"ds_write_b16 v{t+7}, v{E+en} offset:{BUF1 + 4*j*RS}")
            e(f"v_lshl_add_u32 v{t+8}, v{t+5}, 2, v{t+4}")
            e(f"v_add_u32 v{t+8}, s38, v{t+8}")
            e(f"v_lshlrev_b32 v{t+9}, 4, v{t+6}")
            e(f"v_lshl_add_u32 v{t+9}, v{t+3}, 2, v{t+9}")
            e(f"v_bfe_u32 v{t+10}, v{E+en}, 24, 2")
            e(f"v_lshlrev_b32 v{t+10}, v{t+9}, v{t+10}")
            e(f"ds_or_b32 v{t+8}, v{t+10} offset:{j*1024}")
            e(f"v_lshlrev_b32 v{t+8}, 4, v{t+1}")
            e(f"v_bfe_u32 v{t+9}, v{t}, 1, 1")
            e(f"v_lshl_add_u32 v{t+8}, v{t+9}, 3, v{t+8}")
            e(f"v_lshl_add_u32 v{t+8}, v{t+2}, 2, v{t+8}")
            e(f"v_and_b32 v{t+9}, 1, v{t}")
            e(f"v_lshl_add_u32 v{t+8}, v{t+9}, 1, v{t+8}")
            e(f"v_add_u32 v{t+8}, s38, v{t+8}")
            e(f"v_bfe_u32 v{t+10}, v{E+en}, 16, 8")
            e(f"v_lshlrev_b32 v{t+10}, 3, v{t+10}")
            e(f"ds_write_b16 v{t+8}, v{t+10} offset:{2048 + j*128}")
            if en == 7: e(f"L_bld_e{j}_{en}:")
            e("s_mov_b64 exec, s[66:67]")
        e(f"L_bld_skip{j}:")
    e(f"v_add_u32 v{TT+7}, s38, v{T+3}")
    for j in range(2):
        for c in range(RCH):
            b = RAF + (j * RCH + c) * 4
            e(f"ds_read_b128 v[{b}:{b+3}], v{TT+5} offset:{(4*j + (c>>1))*RS + (c&1)*1024}")
            b = RPK + (j * RCH + c) * 2
            e(f"ds_read_b64 v[{b}:{b+1}], v{TT+7} offset:{2048 + j*128 + c*16}")
        e(f"ds_read_b128 v[{RIX+j*4}:{RIX+j*4+3}], v{TT+6} offset:{j*1024}")
    e(f"v_mov_b32 v{T+6}, 0x3f803f80")
    e(f"v_mov_b32 v{T+7}, 0x3f803f80")
    e(f"ds_write_b64 v{vRB}, v[{T+6}:{T+7}] offset:{PADOFF}")
    e(f"ds_write_b64 v{vRB}, v[{T+6}:{T+7}] offset:{BUF1+PADOFF}")
    e("s_lshl_b32 s33, s26, 19")
    e("s_lshl_b32 s36, s28, 7")
    e("s_add_u32 s33, s33, s36")
    e("s_mov_b32 s39, 0")
    wait(vtag="misc")
    e(f"v_lshlrev_b32 v{T+5}, 16, v{T+5}")
    e(f"v_lshlrev_b32 v{T+4}, 2, v0")
    e(f"v_add_u32 v{T+4}, {LDS_BT}, v{T+4}")
    e(f"ds_write_b32 v{T+4}, v{T+5}")
    e(f"v_mov_b32 v{vTW}, v{T+8}")
    e("s_waitcnt lgkmcnt(0)")
    e("s_barrier")
    if cfg.PROF:
        e("s_memtime s[50:51]")
        e("s_waitcnt lgkmcnt(0)")

    def bias_reads(p):
        r = []
        for j in range(2):
            for u in range(4):
                b = ACC + p * 32 + j * 16 + u * 4
                off = (32 * j + 16 * (u >> 1) + 4 * (u & 1)) * 4
                r.append(("ds", f"bias{p}", f"ds_read_b128 v[{b}:{b+3}], v{vBI} offset:{off}"))
        return r

    def b_reads(p, s):
        b = bf(s)
        base = p * BUF1 + 64 * s
        if cfg.B64:
            return [("ds", ("B", p, s), f"ds_read_b64 v[{b}:{b+1}], v{vLB} offset:{base}"),
                    ("ds", ("B", p, s), f"ds_read_b64 v[{b+2}:{b+3}], v{vLB} offset:{base+8}"),
                    ("ds", ("B", p, s), f"ds_read_b64 v[{b+4}:{b+5}], v{vLB} offset:{base+32}"),
                    ("ds", ("B", p, s), f"ds_read_b64 v[{b+6}:{b+7}], v{vLB} offset:{base+40}")]
        return [("ds", ("B", p, s), f"ds_read_b128 v[{b}:{b+3}], v{vLB} offset:{base}"),
                ("ds", ("B", p, s), f"ds_read_b128 v[{b+4}:{b+7}], v{vLB} offset:{base+32}")]

    def g_items(p, j, c, gs, tag, pk=None):
        r = []
        pk = RPK + (j * RCH + c) * 2 if pk is None else pk
        for pb in range(4):
            d = GD + gs * 8 + 2 * pb
            r.append(("raw", f"v_add_u32_sdwa v{d}, v{vRB}, v{pk + (pb>>1)} dst_sel:DWORD dst_unused:UNUSED_PAD src0_sel:DWORD src1_sel:WORD_{pb&1}"))
        for pb in range(4):
            d = GD + gs * 8 + 2 * pb
            r.append(("ds", tag, f"ds_read_b64 v[{d}:{d+1}], v{d} offset:{p*BUF1}"))
        return r

    uid = [0]
    def gather_block(p, j, c, gs):
        uid[0] += 1
        lbl = f"L_g{uid[0]}"
        e(f"s_cmp_le_u32 s{30+j}, {c}")
        e(f"s_cbranch_scc1 {lbl}")
        for it in g_items(p, j, c, gs, None):
            e(it[-1])
        e(f"{lbl}:")
        ds.append(("Gmark", p, j, c))
    def mfma_block(p, j, c, gs):
        cond = c >= RU
        if cond:
            uid[0] += 1
            lbl = f"L_m{uid[0]}"
            e(f"s_cmp_le_u32 s{30+j}, {c}")
            e(f"s_cbranch_scc1 {lbl}")
            wait(dtag=("Gmark", p, j, c))
        else:
            wait(dtag=("G", p, j, c))
        ra = RAF + (j * RCH + c) * 4
        e(f"v_smfmac_f32_32x32x32_bf16 {acc(p,j)}, v[{ra}:{ra+3}], v[{GD+gs*8}:{GD+gs*8+7}], v{RIX + j*4 + (c>>1)}" + (" abid:1" if c & 1 else ""))
        if cond:
            e(f"{lbl}:")

    def epilogue_items(q):
        out = []
        for j in range(2):
            lst = []
            a = ACC + q * 32 + j * 16
            for i in range(8):
                lst.append(("raw", f"v_cvt_pk_bf16_f32 v{a + i}, v{a + 2*i}, v{a + 2*i + 1}"))
            lst.append(("ds", "tw", f"ds_write_b128 v{vTW}, v[{a}:{a+3}] offset:{64*j}"))
            lst.append(("ds", "tw", f"ds_write_b128 v{vTW}, v[{a+4}:{a+7}] offset:{64*j+32}"))
            out.append(lst)
        rb = []; st = []
        for i in range(4):
            a = ACC + q * 32 + 8 + (i >> 1) * 16 + (i & 1) * 4
            rb.append(("ds", ("tr", i), f"ds_read_b128 v[{a}:{a+3}], v{vTR} offset:{i*8*TRS}"))
            st.append(("W", ("tr", i)))
            st.append(("raw", f"s_add_u32 s38, s34, {i*8*2048}"))
            st.append(("vm", "st", f"buffer_store_dwordx4 v[{a}:{a+3}], v{vST}, s[16:19], s38 offen"))
        out.append(rb); out.append(st)
        return out

    emit_items(bias_reads(0))
    for s in range(PD):
        emit_items(b_reads(0, s))

    def block(p, first, last):
        q = p ^ 1
        order = [(j, c) for c in range(RCH) for j in range(2)] if not cfg.NORES else []
        ms0 = 0
        rq = []
        for z, (j, c) in enumerate(order):
            g0 = 2 * ms0 + int(min(cfg.RPER, (2 * (32 - PD) - 1 - cfg.RLAT - 2 * ms0) * 10 // 15) * z / 10)
            if c >= RU:
                rq.append((g0, 4, ("G", p, j, c, z & 1)))
            else:
                gi = g_items(p, j, c, z & 1, ("G", p, j, c))
                for k, it in enumerate(gi):
                    rq.append((g0 + (k >= 4), 1, it))
            rq.append((g0 + cfg.RLAT, 99, ("M", p, j, c, z & 1)))
        rq.sort(key=lambda t: t[0])
        fifo = []
        def at(g, items):
            for it in items:
                rq.append((g, 1, it))
        ep = epilogue_items(q) if (not first and not cfg.NOEPI) else None
        dg = dma_groups(q, "Xn") if (not last and not cfg.NODMA) else None
        br = bias_reads(q) if not last else []
        if dg:
            d0 = cfg.DG0F if first else 0
            for r in range(8):
                at(d0 + cfg.DGS * r, dg[r][:3]); at(d0 + cfg.DGS * r + cfg.DGS // 2, dg[r][3:])
            at(d0 + cfg.DGS * 8, [("raw", f"s_mov_b32 m0, {LDS_SCR}"), ("raw", "s_nop 0"), ("vm", "touch", f"buffer_load_dword v{vTC}, s[12:15], s40 offen lds")])
        if ep:
            at(3, ep[0][:4]); at(5, ep[0][4:8]); at(7, ep[0][8:9]); at(9, ep[0][9:10])
            at(11, ep[1][:4]); at(13, ep[1][4:8]); at(15, ep[1][8:9]); at(17, ep[1][9:10])
            at(21, ep[2][:2]); at(23, ep[2][2:])
            for i in range(4):
                at(29 + 2 * i, ep[3][3*i:3*i+3])
        for i, it in enumerate(br):
            at(39 + 2 * i, [it])
        rq.sort(key=lambda t: t[0])
        wl = {s: w_loads(s + LW) for s in range(32 - LW)} if first else {}

        def fill(s, gap, budget):
            if first: budget *= 2
            b0 = budget
            while rq and rq[0][0] <= gap:
                _, c, it = rq.pop(0)
                emit_items([it])
                budget = b0 if c == 99 else budget - c
            while fifo:
                c, ms, it = fifo[0]
                if ms > s or c > budget: return
                fifo.pop(0); emit_items([it]); budget -= c

        for s in range(32):
            if s == 0 and not last and not cfg.NODMA:
                e(f"s_cmp_lt_u32 s39, {8 - cfg.TD}")
                e("s_cselect_b32 s40, s41, 0x40000000")
                e("s_add_u32 s41, s41, 0x10000")
            if first:
                wait(dtag=("B", p, s), vtag=("W", s))
            else:
                wait(dtag=("B", p, s))
            if s == 0:
                wait(dtag=f"bias{p}")
            e(f"v_smfmac_f32_32x32x32_bf16 {acc(p,0)}, {A(0,s)}, v[{bf(s)}:{bf(s)+7}], v{IDX + (s>>1)}" + (" abid:1" if s & 1 else ""))
            sn = s + PD
            rd = b_reads(p, sn) if sn < 32 else []
            h = len(rd) // 2
            emit_items(rd[:h])
            if s in wl:
                emit_items(wl[s])
                fill(s, 2 * s, 0)
            else:
                fill(s, 2 * s, cfg.BUD - h)
            e(f"v_smfmac_f32_32x32x32_bf16 {acc(p,1)}, {A(1,s)}, v[{bf(s)}:{bf(s)+7}], v{IDX + 16 + (s>>1)}" + (" abid:1" if s & 1 else ""))
            emit_items(rd[h:])
            fill(s, 2 * s + 1, cfg.BUD - h - 1)
            if s == 32 - PD - 1:
                assert not fifo and not rq, ("fifo not drained", len(fifo), len(rq), first, last)
                for j in range(2):
                    uid[0] += 1
                    u = uid[0]
                    e(f"s_cmp_eq_u32 s{64+j}, 0")
                    e(f"s_cbranch_scc1 L_sp_end{u}")
                    e(f"v_lshrrev_b32 v{GD+13}, 4, v{vDX}")
                    for r in (2, 3, 4, 5, 6, 7, 9, 10, 11):
                        e(f"v_mov_b32 v{GD+r}, 0")
                    e("s_mov_b32 s58, 0")
                    e(f"L_sp_kr{u}:")
                    e("s_lshl_b32 s59, s28, 7")
                    e(f"s_add_u32 s59, s59, {j*64}")
                    e("s_add_u32 s59, s59, s58")
                    e("s_lshl_b32 s60, s59, 2")
                    e(f"s_add_u32 s60, s60, {WS_CNT}")
                    e(f"buffer_load_dword v{GD+15}, v{GD+9}, s[20:23], s60 offen sc1")
                    e("s_lshl_b32 s59, s59, 10")
                    e(f"s_add_u32 s59, s59, {WS_ENT:#x}")
                    e("s_waitcnt vmcnt(0)")
                    e(f"v_readfirstlane_b32 s60, v{GD+15}")
                    e("s_nop 3")
                    e("s_cmp_eq_u32 s60, 0")
                    e(f"s_cbranch_scc1 L_sp_nx{u}")
                    e(f"L_sp_e{u}:")
                    e(f"buffer_load_dword v{GD+15}, v{GD+9}, s[20:23], s59 offen sc1")
                    e("s_waitcnt vmcnt(0)")
                    e(f"v_readfirstlane_b32 s62, v{GD+15}")
                    e("s_nop 3")
                    e("s_lshr_b32 s63, s62, 26")
                    e(f"v_cmp_eq_u32 vcc, s63, v{GD+13}")
                    e("s_and_b32 s63, s62, 0xffff")
                    e(f"v_mov_b32 v{GD+14}, s63")
                    e("s_bfe_u32 s63, s62, 0x80010")
                    e("s_lshl_b32 s63, s63, 3")
                    e(f"v_add_u32 v{GD}, s63, v{vRB}")
                    e(f"v_cndmask_b32 v{GD+8}, 0, v{GD+14}, vcc")
                    e("s_bfe_u32 s63, s62, 0x20018")
                    e(f"v_mov_b32 v{GD+12}, s63")
                    e(f"ds_read_b64 v[{GD}:{GD+1}], v{GD} offset:{p*BUF1}")
                    e("s_waitcnt lgkmcnt(0)")
                    e(f"v_smfmac_f32_32x32x32_bf16 {acc(p,j)}, v[{GD+8}:{GD+11}], v[{GD}:{GD+7}], v{GD+12}")
                    e("s_add_u32 s59, s59, 4")
                    e("s_sub_u32 s60, s60, 1")
                    e("s_cmp_lg_u32 s60, 0")
                    e("s_nop 4")
                    e(f"s_cbranch_scc1 L_sp_e{u}")
                    e(f"L_sp_nx{u}:")
                    e("s_add_u32 s58, s58, 1")
                    e("s_cmp_lt_u32 s58, 64")
                    e(f"s_cbranch_scc1 L_sp_kr{u}")
                    e(f"L_sp_end{u}:")
            if sn >= 32 and not last:
                if sn == 32:
                    if cfg.PROF:
                        e("s_memtime s[54:55]")
                    if cfg.NODMA:
                        e("s_waitcnt lgkmcnt(0)")
                    else:
                        e(f"s_waitcnt vmcnt({min(vm_n('Xn'),63)}) lgkmcnt(0)")
                    e("s_barrier")
                    if cfg.PROF:
                        e("s_memtime s[56:57]")
                        e("s_waitcnt lgkmcnt(0)")
                        e("s_sub_u32 s56, s56, s54")
                        e("s_add_u32 s52, s52, s56")
                emit_items(b_reads(q, sn - 32))
            if s == 31:
                e("s_mov_b32 s34, s33")
                if not cfg.OSAME: e("s_add_u32 s33, s33, 0x10000")
                if not cfg.XSAME: e("s_add_u32 s37, s37, 0x10000")
                e("s_add_u32 s39, s39, 1")

    block(0, True, False)
    if cfg.PROF:
        e("s_memtime s[54:55]")
        e("s_waitcnt lgkmcnt(0)")
        e("s_sub_u32 s51, s54, s50")
    e("L_loop:")
    block(1, False, False)
    block(0, False, False)
    e("s_cmp_lt_u32 s39, 7")
    e("s_cbranch_scc1 L_loop")
    block(1, False, True)
    e("s_nop 15")
    for lst in epilogue_items(1):
        emit_items(lst)
    if cfg.PROF:
        e("s_memtime s[54:55]")
        e("s_memrealtime s[98:99]")
        e("s_waitcnt lgkmcnt(0)")
        e("s_sub_u32 s56, s50, s48")
        e("s_sub_u32 s57, s54, s50")
        e("s_sub_u32 s48, s98, s96")
        e("s_nop 4")
        e(f"v_mov_b32 v{GD}, s56")
        e(f"v_mov_b32 v{GD+1}, s52")
        e(f"v_mov_b32 v{GD+2}, s57")
        e(f"v_mov_b32 v{GD+3}, s48")
        e("s_lshl_b32 s36, s2, 2")
        e("s_add_u32 s36, s36, s24")
        e("s_lshl_b32 s36, s36, 4")
        e("s_add_u32 s36, s36, 0x8000000")
        e(f"v_mov_b32 v{GD+8}, 0")
        e(f"v_mov_b32 v{GD+4}, s100")
        e(f"v_mov_b32 v{GD+5}, s101")
        e(f"v_mov_b32 v{GD+6}, s53")
        e(f"v_mov_b32 v{GD+7}, s51")
        e(f"buffer_store_dwordx4 v[{GD}:{GD+3}], v{GD+8}, s[20:23], s36 offen")
        e("s_add_u32 s36, s36, 0x100000")
        e(f"buffer_store_dwordx4 v[{GD+4}:{GD+7}], v{GD+8}, s[20:23], s36 offen")
        e("s_nop 2")
        e(f"v_mov_b32 v{GD+4}, s96")
        e(f"v_mov_b32 v{GD+5}, s58")
        e(f"v_mov_b32 v{GD+6}, s60")
        e(f"v_mov_b32 v{GD+7}, s98")
        e("s_add_u32 s36, s36, 0x100000")
        e(f"buffer_store_dwordx4 v[{GD+4}:{GD+7}], v{GD+8}, s[20:23], s36 offen")
    e("L_main_end:")
    e("s_endpgm")


gen_main()

tail = """
.section .rodata,"a"
.p2align 6
.amdhsa_kernel standalone__structured_sparse_n_m__ragged_kernel
  .amdhsa_next_free_vgpr 512
  .amdhsa_next_free_sgpr 102
  .amdhsa_accum_offset 256
  .amdhsa_group_segment_fixed_size 0
  .amdhsa_kernarg_size 48
  .amdhsa_user_sgpr_count 2
  .amdhsa_user_sgpr_kernarg_segment_ptr 1
  .amdhsa_system_sgpr_workgroup_id_x 1
.end_amdhsa_kernel
"""
open(OUT, "w").write(hdr + "\n".join(L) + "\n" + tail)
print("wrote", OUT, len(L), "lines")
```

```python
import sys, os

OUT = os.environ.get("GEN_OUT", "standalone__structured_sparse_n_m__ragged.s")

WS_CNT = 0x0
WS_WI = 0x4000
WS_WA = 0x40000
WS_ENT = 0x200000
WS_SIZE = 0x10000000

class Cfg:
    NB = 4
    PD = 3
    RCH = 8
    RU = 6
    TD = 2
    RPER = 33
    RLAT = 6
    DGS = 4
    TMO = 20000
    SLP = 32
    SLP0 = 64
    PROF = 0
    NODMA = 0
    NORES = 0
    NOEPI = 0

cfg = Cfg()
for a in sys.argv[1:]:
    k, v = a.split("=")
    setattr(cfg, k, int(v))

RS = 4144
BUF1 = 2064
PADOFF = 2048
LDS_X = 32 * RS
LDS_TR = LDS_X
TRS = 144
LDS_SCR = LDS_TR + 4 * 32 * TRS
LDS_TOTAL = LDS_SCR + 256 + 16

L = []
def e(s=""):
    L.append("    " + s if s and not s.endswith(":") else s)

hdr = f"""; 2:4 structured-sparse GEMM  out = x @ prune24(w) + b   (B*S=16384, D=1024), bf16
; @launch grid=(256,1,1) block=(256,1,1) lds={LDS_TOTAL}
.amdgcn_target "amdgcn-amd-amdhsa--gfx950"
.text
"""


def gen_prep_slice():
    TBL = {0: 4, 1: 4, 2: 4, 4: 8, 8: 12, 3: 4, 5: 8, 6: 9, 7: 4, 9: 12, 10: 13, 11: 4, 12: 14, 13: 8, 14: 9, 15: 4}
    T64 = 0
    for k, v in TBL.items():
        T64 |= v << (4 * k)
    ET = {7: 1, 11: 2, 13: 2, 14: 2, 15: 3}
    E32 = 0
    for k, v in ET.items():
        E32 |= v << (2 * k)
    R = 64
    def v(n): return f"v{R+n}"
    e(f"v_lshlrev_b32 {v(3)}, 2, v0")
    e("s_lshl_b32 s89, s87, 15")
    e("s_lshl_b32 s90, s88, 10")
    e("s_add_u32 s89, s89, s90")
    D = 8
    for kk in range(0, 16, 2):
        e(f"buffer_load_dword {v(D+kk)}, {v(3)}, s[68:71], s89 offen")
        e(f"buffer_load_dword {v(D+kk+1)}, {v(3)}, s[68:71], s89 offen offset:2048")
        if kk < 14:
            e("s_add_u32 s89, s89, 4096")
    e("s_mov_b32 s76, 0x7fff7fff")
    e("s_mov_b32 s77, 0x00010001")
    e("s_mov_b32 s78, 0x000f000f")
    e(f"s_mov_b32 s80, {T64 & 0xffffffff:#x}")
    e(f"s_mov_b32 s81, {T64 >> 32:#x}")
    e(f"s_mov_b32 s82, {E32:#x}")
    e("s_mov_b32 s83, 0x05040100")
    e("s_mov_b32 s84, 0x07060302")
    e("s_mov_b32 s85, 0x01000100")
    e("s_mov_b32 s86, 0x0202")
    e(f"v_and_b32 {v(1)}, 15, v0")
    e(f"v_lshrrev_b32 {v(2)}, 4, v0")
    e("s_lshl_b32 s90, s88, 4")
    e(f"v_add_u32 {v(2)}, s90, {v(2)}")
    e(f"v_and_b32 {v(4)}, 9, {v(1)}")
    e(f"v_bfe_u32 {v(5)}, {v(1)}, 1, 1")
    e(f"v_bfe_u32 {v(6)}, {v(1)}, 2, 1")
    e(f"v_lshl_or_b32 {v(4)}, {v(5)}, 2, {v(4)}")
    e(f"v_lshl_or_b32 {v(4)}, {v(6)}, 1, {v(4)}")
    e(f"v_lshlrev_b32 {v(4)}, 1, {v(4)}")
    e(f"v_lshlrev_b32 {v(24)}, 15, {v(2)}")
    e(f"v_lshl_add_u32 {v(24)}, {v(4)}, 4, {v(24)}")
    e(f"v_lshlrev_b32 {v(25)}, 12, {v(2)}")
    e(f"v_lshl_add_u32 {v(25)}, {v(4)}, 4, {v(25)}")
    e("s_lshr_b32 s91, s87, 1")
    e("s_and_b32 s92, s87, 1")
    e("s_lshl_b32 s93, s91, 10")
    e("s_lshl_b32 s92, s92, 9")
    e("s_add_u32 s93, s93, s92")
    e(f"s_add_u32 s93, s93, {WS_WA:#x}")
    e("s_lshr_b32 s94, s91, 3")
    e("s_lshl_b32 s94, s94, 10")
    e("s_add_u32 s94, s94, s92")
    e("s_and_b32 s91, s91, 7")
    e("s_lshl_b32 s91, s91, 1")
    e("s_add_u32 s94, s94, s91")
    e(f"s_add_u32 s94, s94, {WS_WI:#x}")
    e(f"v_mov_b32 {v(36)}, 0")
    e(f"v_mov_b32 {v(37)}, 0")
    e(f"v_mov_b32 {v(38)}, 0")
    e("s_mov_b32 s89, 0")
    e("s_waitcnt vmcnt(0)")
    a, b, c, d = 50, 51, 52, 53
    e("L_pg:")
    e("s_set_gpr_idx_on s89, 0x1")
    e("s_nop 0")
    for i in range(4):
        e(f"v_mov_b32 {v(50+i)}, {v(D+i)}")
    e("s_set_gpr_idx_off")
    for i, r in enumerate((a, b, c, d)):
        e(f"v_and_b32 {v(40+i)}, s76, {v(r)}")
    e(f"v_pk_max_u16 {v(44)}, {v(40)}, {v(41)}")
    e(f"v_pk_min_u16 {v(45)}, {v(40)}, {v(41)}")
    e(f"v_pk_max_u16 {v(46)}, {v(42)}, {v(43)}")
    e(f"v_pk_min_u16 {v(47)}, {v(42)}, {v(43)}")
    e(f"v_pk_min_u16 {v(44)}, {v(44)}, {v(46)}")
    e(f"v_pk_max_u16 {v(45)}, {v(45)}, {v(47)}")
    e(f"v_pk_max_u16 {v(44)}, {v(44)}, {v(45)}")
    e(f"v_pk_max_u16 {v(44)}, {v(44)}, s77")
    for i in range(4):
        e(f"v_pk_sub_u16 {v(40+i)}, {v(44)}, {v(40+i)} clamp")
    for i in range(4):
        e(f"v_pk_min_u16 {v(40+i)}, {v(40+i)}, s77")
    e(f"v_lshl_or_b32 {v(40)}, {v(41)}, 1, {v(40)}")
    e(f"v_lshl_or_b32 {v(40)}, {v(42)}, 2, {v(40)}")
    e(f"v_lshl_or_b32 {v(40)}, {v(43)}, 3, {v(40)}")
    e(f"v_xor_b32 {v(40)}, s78, {v(40)}")
    e("s_lshr_b32 s90, s89, 2")
    for ee in range(2):
        sel = 83 + ee
        e(f"v_bfe_u32 {v(41)}, {v(40)}, {16*ee}, 4")
        e(f"v_lshlrev_b32 {v(42)}, 2, {v(41)}")
        e(f"v_lshrrev_b64 v[{R+46}:{R+47}], {v(42)}, s[80:81]")
        e(f"v_and_b32 {v(46)}, 15, {v(46)}")
        e(f"v_lshl_or_b32 {v(36+ee)}, {v(46)}, s89, {v(36+ee)}")
        e(f"v_perm_b32 {v(48)}, {v(b)}, {v(a)}, s{sel}")
        e(f"v_perm_b32 {v(49)}, {v(d)}, {v(c)}, s{sel}")
        e(f"v_and_b32 {v(47)}, 3, {v(46)}")
        e(f"v_lshrrev_b32 {v(46)}, 2, {v(46)}")
        e(f"v_lshl_or_b32 {v(46)}, {v(46)}, 16, {v(47)}")
        e(f"v_mov_b32 {v(47)}, s85")
        e(f"v_mad_u32_u24 {v(46)}, {v(46)}, s86, {v(47)}")
        e(f"v_perm_b32 {v(54+ee)}, {v(49)}, {v(48)}, {v(46)}")
        e(f"v_lshlrev_b32 {v(42)}, 1, {v(41)}")
        e(f"v_lshrrev_b32 {v(43)}, {v(42)}, s82")
        e(f"v_and_b32 {v(43)}, 3, {v(43)}")
        if ee:
            e(f"v_lshlrev_b32 {v(43)}, 2, {v(43)}")
        e(f"v_lshl_or_b32 {v(38)}, {v(43)}, s89, {v(38)}")
    e("s_set_gpr_idx_on s90, 0x8")
    e("s_nop 0")
    e(f"v_mov_b32 {v(28)}, {v(54)}")
    e(f"v_mov_b32 {v(32)}, {v(55)}")
    e("s_set_gpr_idx_off")
    e("s_add_u32 s89, s89, 4")
    e("s_cmp_lt_u32 s89, 16")
    e("s_cbranch_scc1 L_pg")
    e(f"buffer_store_dwordx4 v[{R+28}:{R+31}], {v(24)}, s[20:23], s93 offen sc1")
    e(f"buffer_store_dwordx4 v[{R+32}:{R+35}], {v(24)}, s[20:23], s93 offen offset:16 sc1")
    e(f"buffer_store_short {v(36)}, {v(25)}, s[20:23], s94 offen sc1")
    e(f"buffer_store_short {v(37)}, {v(25)}, s[20:23], s94 offen offset:16 sc1")
    e(f"v_bcnt_u32_b32 {v(39)}, {v(38)}, 0")
    e(f"v_mov_b32 {v(40)}, {v(39)}")
    e("s_nop 1")
    for sh in (1, 2, 4, 8):
        e(f"v_add_u32_dpp {v(40)}, {v(40)}, {v(40)} row_shr:{sh} row_mask:0xf bank_mask:0xf bound_ctrl:0")
        e("s_nop 1")
    e(f"v_lshlrev_b32 {v(41)}, 8, {v(2)}")
    e("s_lshl_b32 s89, s87, 2")
    e(f"v_cmp_eq_u32 vcc, 15, {v(1)}")
    e("s_and_saveexec_b64 s[66:67], vcc")
    e(f"buffer_store_dword {v(40)}, {v(41)}, s[20:23], s89 offen offset:{WS_CNT} sc1")
    e("s_mov_b64 exec, s[66:67]")
    e(f"v_sub_u32 {v(40)}, {v(40)}, {v(39)}")
    e(f"v_lshlrev_b32 {v(41)}, 16, {v(2)}")
    e("s_lshl_b32 s93, s87, 10")
    e(f"s_add_u32 s93, s93, {WS_ENT:#x}")
    e("s_mov_b32 s89, 0")
    e("L_pe:")
    e(f"v_cmp_ne_u32 vcc, 0, {v(38)}")
    e("s_cbranch_vccz L_pe_done")
    e(f"v_and_b32 {v(42)}, 1, {v(38)}")
    e(f"v_cmp_ne_u32 vcc, 0, {v(42)}")
    e("s_and_saveexec_b64 s[66:67], vcc")
    e("s_cbranch_execz L_pe_next")
    e("s_and_b32 s90, s89, 12")
    e("s_and_b32 s91, s89, 1")
    e("s_add_u32 s92, s90, s91")
    e("s_set_gpr_idx_on s92, 0x1")
    e("s_nop 0")
    e(f"v_mov_b32 {v(43)}, {v(D+2)}")
    e("s_set_gpr_idx_off")
    e("s_bfe_u32 s92, s89, 0x10001")
    e("s_lshl_b32 s94, s92, 4")
    e(f"v_lshrrev_b32 {v(43)}, s94, {v(43)}")
    e(f"v_and_b32 {v(43)}, 0xffff, {v(43)}")
    e("s_lshl_b32 s94, s87, 18")
    e("s_lshl_b32 s90, s90, 14")
    e("s_add_u32 s94, s94, s90")
    e("s_add_u32 s91, s91, 2")
    e("s_lshl_b32 s91, s91, 24")
    e("s_add_u32 s94, s94, s91")
    e("s_lshl_b32 s92, s92, 26")
    e("s_add_u32 s94, s94, s92")
    e(f"v_or_b32 {v(43)}, s94, {v(43)}")
    e(f"v_lshl_add_u32 {v(43)}, {v(4)}, 26, {v(43)}")
    e(f"v_lshl_add_u32 {v(42)}, {v(40)}, 2, {v(41)}")
    e(f"buffer_store_dword {v(43)}, {v(42)}, s[20:23], s93 offen sc1")
    e(f"v_add_u32 {v(40)}, 1, {v(40)}")
    e("L_pe_next:")
    e("s_mov_b64 exec, s[66:67]")
    e(f"v_lshrrev_b32 {v(38)}, 1, {v(38)}")
    e("s_add_u32 s89, s89, 1")
    e("s_branch L_pe")
    e("L_pe_done:")


def gen_main():
    NB, PD, RCH, RU = cfg.NB, cfg.PD, cfg.RCH, cfg.RU
    nxt = [1]
    def alloc(n, align=1):
        while nxt[0] % align:
            nxt[0] += 1
        r = nxt[0]
        nxt[0] += n
        return r
    vTW = 0
    vLB = alloc(1); vRB = alloc(1); vDX = alloc(1); vST = alloc(1); vTC = alloc(1); vTR = alloc(1)
    IDX = alloc(32, 4)
    ACC = alloc(32, 4)
    EP = alloc(16, 4)
    BF = alloc(8 * NB, 4)
    BIA = alloc(8, 4)
    ONE = alloc(4, 4)
    RAF = alloc(2 * RCH * 4, 4)
    RIX = alloc(2 * RCH // 2, 4)
    RPK = alloc(2 * RCH * 2, 4)
    GD = alloc(16, 4)
    assert nxt[0] <= 256, nxt[0]
    assert ACC == 40 and BIA >= 64 + 56

    def A(j, s):
        b = (s * 2 + j) * 4
        return f"a[{b}:{b+3}]"
    def acc(j):
        b = ACC + j * 16
        return f"v[{b}:{b+15}]"
    def bf(s):
        return BF + (s % NB) * 8

    ds = []
    vm = []
    def is_mark(t):
        return isinstance(t, tuple) and t[0] == "Gmark"
    def ds_issue(tag, ins):
        e(ins); ds.append(tag)
    def vm_issue(tag, ins):
        e(ins); vm.append(tag)
    def ds_n(tag):
        idx = max(i for i, t in enumerate(ds) if t == tag)
        return sum(1 for t in ds[idx+1:] if not is_mark(t))
    def vm_n(tag):
        idx = max(i for i, t in enumerate(vm) if t == tag)
        return len(vm) - 1 - idx
    def wait(dtag=None, vtag=None):
        w = []
        if vtag is not None:
            w.append(f"vmcnt({min(vm_n(vtag), 63)})")
        if dtag is not None:
            w.append(f"lgkmcnt({min(ds_n(dtag), 15)})")
        e("s_waitcnt " + " ".join(w))

    name = "standalone__structured_sparse_n_m__ragged_kernel"
    e(f".globl {name}")
    e(".p2align 8")
    e(f".type {name},@function")
    e(f"{name}:")
    e("s_cmp_ge_u32 s2, 256")
    e("s_cbranch_scc1 L_main_end")
    if cfg.PROF:
        e("s_memtime s[48:49]")
        e("s_memrealtime s[96:97]")
        e("s_mov_b32 s52, 0")
    e("s_load_dwordx4 s[4:7], s[0:1], 0")
    e("s_load_dwordx4 s[8:11], s[0:1], 16")
    e("s_load_dwordx4 s[72:75], s[0:1], 32")
    e(f"v_lshrrev_b32 v{vTR}, 6, v0")
    e("s_nop 0")
    e(f"v_readfirstlane_b32 s24, v{vTR}")
    e("s_and_b32 s25, s2, 7")
    e("s_lshr_b32 s26, s2, 3")
    e("s_and_b32 s27, s26, 3")
    e("s_lshr_b32 s26, s26, 2")
    e("s_lshl_b32 s25, s25, 3")
    e("s_add_u32 s26, s26, s25")
    e("s_lshl_b32 s28, s27, 2")
    e("s_add_u32 s28, s28, s24")
    e("s_lshr_b32 s87, s2, 1")
    e("s_and_b32 s88, s2, 1")
    e("s_mov_b32 s95, 0")
    e("s_waitcnt lgkmcnt(0)")
    e("s_mov_b32 s12, s4"); e("s_and_b32 s13, s5, 0xffff"); e("s_mov_b32 s14, 0x2000000"); e("s_mov_b32 s15, 0x00020000")
    e("s_mov_b32 s16, s10"); e("s_and_b32 s17, s11, 0xffff"); e("s_mov_b32 s18, 0x2000000"); e("s_mov_b32 s19, 0x00020000")
    e("s_mov_b32 s20, s74"); e("s_and_b32 s21, s75, 0xffff"); e(f"s_mov_b32 s22, {WS_SIZE:#x}"); e("s_mov_b32 s23, 0x00020000")
    e("s_mov_b32 s44, s8"); e("s_and_b32 s45, s9, 0xffff"); e("s_mov_b32 s46, 0x800"); e("s_mov_b32 s47, 0x00020000")
    e("s_mov_b32 s68, s6"); e("s_and_b32 s69, s7, 0xffff"); e("s_mov_b32 s70, 0x200000"); e("s_mov_b32 s71, 0x00020000")
    e("s_and_b32 s73, s73, 0xffff"); e("s_mov_b32 s74, 0x100"); e("s_mov_b32 s75, 0x00020000")
    e(f"v_mov_b32 v{GD+9}, 0")
    e(f"v_mov_b32 v{GD+10}, 1")
    e("s_cmp_ge_u32 s2, 128")
    e("s_cbranch_scc1 L_prep_skip")
    e("L_prep_again:")
    gen_prep_slice()
    e("s_cmp_eq_u32 s95, 0")
    e("s_cbranch_scc1 L_prep_signal0")
    e("s_add_u32 s87, s87, 1")
    e("s_cmp_lt_u32 s87, 64")
    e("s_cbranch_scc1 L_prep_again")
    e("s_waitcnt vmcnt(0)")
    e("s_barrier")
    e("s_branch L_sync_done")
    e("L_prep_signal0:")
    e(f"s_waitcnt vmcnt(0)")
    e("s_barrier")
    e("s_cmp_lg_u32 s24, 0")
    e("s_cbranch_scc1 L_x0")
    e("s_lshl_b32 s36, s88, 6")
    e("s_add_u32 s36, s36, s87")
    e("v_cmp_eq_u32 vcc, 0, v0")
    e("s_and_saveexec_b64 s[66:67], vcc")
    e(f"buffer_store_byte v{GD+10}, v{GD+9}, s[72:75], s36 offen sc1")
    e("s_mov_b64 exec, s[66:67]")
    e("s_branch L_poll_setup")
    e("L_prep_skip:")
    e("s_cmp_lg_u32 s24, 0")
    e("s_cbranch_scc1 L_x0")
    for _ in range(cfg.SLP0 // 64):
        e("s_sleep 64")
    e("L_poll_setup:")
    e("s_lshr_b32 s36, s27, 1")
    e("s_lshl_b32 s36, s36, 6")
    e(f"v_and_b32 v{GD+12}, 15, v0")
    e(f"v_lshlrev_b32 v{GD+12}, 2, v{GD+12}")
    e("s_mov_b32 s89, 0x01010101")
    e("s_memrealtime s[90:91]")
    e("L_poll:")
    e(f"buffer_load_dword v{GD+11}, v{GD+12}, s[72:75], s36 offen sc1")
    e("s_memrealtime s[92:93]")
    e("s_waitcnt vmcnt(0) lgkmcnt(0)")
    e(f"v_cmp_ne_u32 vcc, s89, v{GD+11}")
    e("s_sub_u32 s92, s92, s90")
    e("s_cmp_eq_u64 vcc, 0")
    e("s_cbranch_scc1 L_poll_ok")
    if cfg.SLP: e(f"s_sleep {cfg.SLP}")
    e(f"s_cmp_lt_u32 s92, {cfg.TMO}")
    e("s_cbranch_scc1 L_poll")
    e(f"v_mov_b32 v{GD+9}, 1")
    e("L_poll_ok:")
    e(f"v_mov_b32 v{GD+10}, {LDS_SCR + 256}")
    e(f"ds_write_b32 v{GD+10}, v{GD+9}")
    e("s_waitcnt lgkmcnt(0)")
    e("s_branch L_sync_wait")
    e("L_x0:")
    e(f"v_and_b32 v{vDX}, 63, v0")
    e(f"v_lshlrev_b32 v{vTC}, 6, v{vDX}")
    e(f"v_lshlrev_b32 v{vDX}, 4, v{vDX}")
    e("s_sub_u32 s36, s24, 1")
    e("s_mul_i32 s38, s36, 11")
    e("s_add_u32 s39, s38, 11")
    e("s_min_u32 s39, s39, 32")
    e("s_lshl_b32 s37, s26, 19")
    e("L_x0_loop:")
    e(f"s_mul_i32 s40, s38, {RS}")
    e("s_mov_b32 m0, s40")
    e("s_lshl_b32 s40, s38, 11")
    e("s_add_u32 s40, s40, s37")
    e(f"buffer_load_dwordx4 v{vDX}, s[12:15], s40 offen lds")
    e(f"buffer_load_dwordx4 v{vDX}, s[12:15], s40 offen offset:1024 lds")
    e("s_add_u32 s38, s38, 1")
    e("s_cmp_lt_u32 s38, s39")
    e("s_cbranch_scc1 L_x0_loop")
    e(f"s_mov_b32 m0, {LDS_SCR}")
    e("s_lshl_b32 s40, s27, 14")
    e("s_add_u32 s40, s40, s37")
    e("s_lshl_b32 s38, s36, 12")
    e("s_add_u32 s40, s40, s38")
    for tb in range(1, cfg.TD):
        e(f"s_add_u32 s38, s40, {tb * 0x10000}")
        e(f"buffer_load_dword v{vTC}, s[12:15], s38 offen lds")
        e(f"s_add_u32 s38, s40, {tb * 0x10000 + 4096}")
        e(f"buffer_load_dword v{vTC}, s[12:15], s38 offen lds")
    e("L_sync_wait:")
    if cfg.PROF:
        e("s_memrealtime s[58:59]")
        e("s_waitcnt lgkmcnt(0)")
        e("s_mov_b32 s100, s58")
    e("s_barrier")
    e(f"v_mov_b32 v{GD+10}, {LDS_SCR + 256}")
    e(f"ds_read_b32 v{GD+9}, v{GD+10}")
    e("s_waitcnt lgkmcnt(0)")
    e(f"v_readfirstlane_b32 s95, v{GD+9}")
    e("s_mov_b32 s87, 0")
    e("s_lshr_b32 s88, s27, 1")
    e("s_cmp_lg_u32 s95, 0")
    e("s_cbranch_scc1 L_prep_again")
    e("L_sync_done:")
    if cfg.PROF:
        e("s_memtime s[54:55]")
        e("s_memrealtime s[60:61]")
        e("s_waitcnt lgkmcnt(0)")
        e("s_sub_u32 s53, s54, s48")
        e("s_mov_b32 s101, s60")
    T = GD
    TT = ACC
    e(f"v_and_b32 v{T}, 63, v0")
    e(f"v_lshlrev_b32 v{TT+0}, 2, v{T}")
    e(f"v_lshlrev_b32 v{TT+1}, 10, v{T}")
    e(f"v_lshlrev_b32 v{vDX}, 4, v{T}")
    for j in range(2):
        e("s_lshl_b32 s36, s28, 9")
        e(f"s_add_u32 s36, s36, {WS_CNT + j*256:#x}")
        vm_issue("ent", f"buffer_load_dword v{TT+4+12*j}, v{TT+0}, s[20:23], s36 offen sc1")
        e("s_lshl_b32 s36, s28, 17")
        e(f"s_add_u32 s36, s36, {WS_ENT + j*0x10000:#x}")
        vm_issue("ent", f"buffer_load_dwordx4 v[{TT+8+12*j}:{TT+11+12*j}], v{TT+1}, s[20:23], s36 offen sc1")
        vm_issue("ent", f"buffer_load_dwordx4 v[{TT+12+12*j}:{TT+15+12*j}], v{TT+1}, s[20:23], s36 offen offset:16 sc1")
    e(f"v_and_b32 v{T+1}, 31, v0")
    e(f"v_bfe_u32 v{T+2}, v0, 5, 1")
    e(f"v_and_b32 v{T+3}, 0x13, v{T+1}")
    e(f"v_bfe_u32 v{T+4}, v{T+1}, 2, 1")
    e(f"v_lshl_or_b32 v{T+3}, v{T+4}, 3, v{T+3}")
    e(f"v_bfe_u32 v{T+4}, v{T+1}, 3, 1")
    e(f"v_lshl_or_b32 v{T+3}, v{T+4}, 2, v{T+3}")
    e(f"v_lshlrev_b32 v{T+3}, 1, v{T+3}")
    e("s_lshl_b32 s36, s28, 7")
    vm_issue("bias", f"buffer_load_ushort v{BIA}, v{T+3}, s[44:47], s36 offen")
    vm_issue("bias", f"buffer_load_ushort v{BIA+4}, v{T+3}, s[44:47], s36 offen offset:64")
    e("s_lshl_b32 s36, s28, 13")
    e(f"s_add_u32 s36, s36, {WS_WI:#x}")
    for j in range(2):
        for u in range(4):
            b = IDX + j * 16 + u * 4
            if j == 1 and u == 0:
                e("s_add_u32 s36, s36, 0x1000")
            vm_issue("W", f"buffer_load_dwordx4 v[{b}:{b+3}], v{vDX}, s[20:23], s36 offen offset:{u*1024} sc1")
    e("s_lshl_b32 s42, s28, 16")
    e(f"s_add_u32 s42, s42, {WS_WA:#x}")
    e("s_add_u32 s43, s42, 0x8000")
    def w_loads(s0, s1):
        for s in range(s0, s1):
            if s % 4 == 0 and s:
                e("s_add_u32 s42, s42, 0x1000")
                e("s_add_u32 s43, s43, 0x1000")
            for j in range(2):
                vm_issue("W", f"buffer_load_dwordx4 {A(j,s)}, v{vDX}, s[20:23], s{42+j} offen offset:{(s%4)*1024} sc1")
    w_loads(0, 12)
    e(f"v_mul_u32_u24 v{vRB}, {RS}, v{T+1}")
    e(f"v_lshl_add_u32 v{vLB}, v{T+2}, 4, v{vRB}")
    e(f"v_lshrrev_b32 v{T+6}, 3, v{T}")
    e(f"v_and_b32 v{T+7}, 7, v{T}")
    e(f"v_lshlrev_b32 v{vST}, 11, v{T+6}")
    e(f"v_lshl_add_u32 v{vST}, v{T+7}, 4, v{vST}")
    e(f"s_mul_i32 s38, s24, {32*TRS}")
    e(f"s_add_u32 s38, s38, {LDS_TR}")
    e(f"v_mul_u32_u24 v{vTR}, {TRS}, v{T+6}")
    e(f"v_lshl_add_u32 v{vTR}, v{T+7}, 4, v{vTR}")
    e(f"v_add_u32 v{vTR}, s38, v{vTR}")
    e(f"v_mul_u32_u24 v{vTW}, {TRS}, v{T+1}")
    e(f"v_lshl_add_u32 v{vTW}, v{T+2}, 4, v{vTW}")
    e(f"v_add_u32 v{vTW}, s38, v{vTW}")
    e(f"v_lshlrev_b32 v{vTC}, 6, v{T}")
    e(f"v_lshlrev_b32 v{T+3}, 3, v{T+2}")
    e(f"s_mul_i32 s35, s24, {8*RS}")
    e(f"s_add_u32 s36, s35, {BUF1}")
    e(f"v_add_u32 v{TT+2}, s36, v{vDX}")
    e(f"v_add_u32 v{TT+3}, s38, v{vDX}")
    Z = TT + 28
    for i in range(4):
        e(f"v_mov_b32 v{Z+i}, 0")
    e(f"v_mov_b32 v{TT+32}, {PADOFF | (PADOFF << 16):#x}")
    e(f"v_add_u32 v{TT+33}, s38, v{TT+0}")
    for j in range(2):
        for c in range(RCH):
            e(f"ds_write_b128 v{TT+2}, v[{Z}:{Z+3}] offset:{(4*j + (c>>1))*RS + (c&1)*1024}")
        e(f"ds_write_b128 v{TT+3}, v[{Z}:{Z+3}] offset:{j*1024}")
    e(f"ds_write_b32 v{TT+33}, v{TT+32} offset:2048")
    e(f"v_mov_b32 v{T+6}, 0x3f803f80")
    e(f"v_mov_b32 v{T+7}, 0x3f803f80")
    e(f"ds_write_b64 v{vRB}, v[{T+6}:{T+7}] offset:{PADOFF}")
    e(f"ds_write_b64 v{vRB}, v[{T+6}:{T+7}] offset:{BUF1+PADOFF}")
    wait(vtag="ent")
    C = TT + 34; S = TT + 35; E = TT + 36; t = TT + 37
    e("s_mov_b32 s58, 0")
    e(f"s_add_u32 s59, s35, {BUF1}")
    e("s_mov_b32 s60, s38")
    e(f"s_add_u32 s61, s38, 2048")
    e("L_bj:")
    e("s_set_gpr_idx_on s58, 0x1")
    e("s_nop 0")
    e(f"v_mov_b32 v{C}, v{TT+4}")
    e("s_set_gpr_idx_off")
    e(f"v_mov_b32 v{S}, v{C}")
    e(f"v_cmp_lt_u32 vcc, 8, v{C}")
    for sh in (1, 2, 4, 8):
        e("s_nop 0")
        e(f"v_add_u32_dpp v{S}, v{S}, v{S} row_shr:{sh} row_mask:0xf bank_mask:0xf bound_ctrl:0")
        e("s_nop 0")
    e("s_nop 0")
    e(f"v_add_u32_dpp v{S}, v{S}, v{S} row_bcast:15 row_mask:0xa bank_mask:0xf")
    e("s_nop 1")
    e(f"v_add_u32_dpp v{S}, v{S}, v{S} row_bcast:31 row_mask:0xc bank_mask:0xf")
    e("s_nop 1")
    e(f"v_readlane_b32 s36, v{S}, 63")
    e(f"v_sub_u32 v{S}, v{S}, v{C}")
    e("s_cmp_lg_u64 vcc, 0")
    e("s_cselect_b32 s62, 1, 0")
    e(f"s_cmp_gt_u32 s36, {8*RCH}")
    e("s_cselect_b32 s62, 1, s62")
    e("s_add_u32 s36, s36, 7")
    e("s_lshr_b32 s36, s36, 3")
    e("s_cmp_eq_u32 s62, 0")
    e("s_cselect_b32 s36, s36, 0")
    e("s_cmp_eq_u32 s58, 0")
    e("s_cselect_b32 s30, s36, s30")
    e("s_cselect_b32 s64, s62, s64")
    e("s_mov_b32 s31, s36")
    e("s_mov_b32 s65, s62")
    e("s_cmp_lg_u32 s62, 0")
    e("s_cbranch_scc1 L_bj_next")
    e("s_mov_b32 s63, 0")
    e("L_be:")
    e(f"v_cmp_lt_u32 vcc, s63, v{C}")
    e("s_and_saveexec_b64 s[66:67], vcc")
    e("s_cbranch_execz L_be_done")
    e("s_add_u32 s36, s58, s63")
    e("s_set_gpr_idx_on s36, 0x1")
    e("s_nop 0")
    e(f"v_mov_b32 v{E}, v{TT+8}")
    e("s_set_gpr_idx_off")
    e(f"v_add_u32 v{t}, s63, v{S}")
    e(f"v_lshrrev_b32 v{t+1}, 3, v{t}")
    e(f"v_bfe_u32 v{t+2}, v{t}, 2, 1")
    e(f"v_and_b32 v{t+3}, 3, v{t}")
    e(f"v_lshrrev_b32 v{t+4}, 26, v{E}")
    e(f"v_lshl_add_u32 v{t+4}, v{t+2}, 5, v{t+4}")
    e(f"v_lshlrev_b32 v{t+4}, 4, v{t+4}")
    e(f"v_lshrrev_b32 v{t+5}, 1, v{t+1}")
    e(f"v_and_b32 v{t+6}, 1, v{t+1}")
    e(f"v_mul_u32_u24 v{t+7}, {RS}, v{t+5}")
    e(f"v_lshl_add_u32 v{t+7}, v{t+6}, 10, v{t+7}")
    e(f"v_add3_u32 v{t+7}, v{t+7}, v{t+4}, s59")
    e(f"v_lshl_add_u32 v{t+7}, v{t+3}, 2, v{t+7}")
    e(f"ds_write_b16 v{t+7}, v{E}")
    e(f"v_lshl_add_u32 v{t+8}, v{t+5}, 2, v{t+4}")
    e(f"v_add_u32 v{t+8}, s60, v{t+8}")
    e(f"v_lshlrev_b32 v{t+9}, 4, v{t+6}")
    e(f"v_lshl_add_u32 v{t+9}, v{t+3}, 2, v{t+9}")
    e(f"v_bfe_u32 v{t+10}, v{E}, 24, 2")
    e(f"v_lshlrev_b32 v{t+10}, v{t+9}, v{t+10}")
    e(f"ds_or_b32 v{t+8}, v{t+10}")
    e(f"v_lshlrev_b32 v{t+8}, 4, v{t+1}")
    e(f"v_bfe_u32 v{t+9}, v{t}, 1, 1")
    e(f"v_lshl_add_u32 v{t+8}, v{t+9}, 3, v{t+8}")
    e(f"v_lshl_add_u32 v{t+8}, v{t+2}, 2, v{t+8}")
    e(f"v_and_b32 v{t+9}, 1, v{t}")
    e(f"v_lshl_add_u32 v{t+8}, v{t+9}, 1, v{t+8}")
    e(f"v_add_u32 v{t+8}, s61, v{t+8}")
    e(f"v_bfe_u32 v{t+10}, v{E}, 16, 8")
    e(f"v_lshlrev_b32 v{t+10}, 3, v{t+10}")
    e(f"ds_write_b16 v{t+8}, v{t+10}")
    e("s_mov_b64 exec, s[66:67]")
    e("s_add_u32 s63, s63, 1")
    e("s_cmp_lt_u32 s63, 8")
    e("s_cbranch_scc1 L_be")
    e("L_be_done:")
    e("s_mov_b64 exec, s[66:67]")
    e("L_bj_next:")
    e("s_add_u32 s58, s58, 12")
    e(f"s_add_u32 s59, s59, {4*RS}")
    e("s_add_u32 s60, s60, 1024")
    e("s_add_u32 s61, s61, 128")
    e("s_cmp_lt_u32 s58, 24")
    e("s_cbranch_scc1 L_bj")
    e(f"v_add_u32 v{TT+33}, s38, v{T+3}")
    for j in range(2):
        for c in range(RCH):
            b = RAF + (j * RCH + c) * 4
            e(f"ds_read_b128 v[{b}:{b+3}], v{TT+2} offset:{(4*j + (c>>1))*RS + (c&1)*1024}")
            b = RPK + (j * RCH + c) * 2
            e(f"ds_read_b64 v[{b}:{b+1}], v{TT+33} offset:{2048 + j*128 + c*16}")
        e(f"ds_read_b128 v[{RIX+j*4}:{RIX+j*4+3}], v{TT+3} offset:{j*1024}")
    w_loads(12, 32)
    e("s_lshl_b32 s37, s26, 19")
    e("s_lshl_b32 s33, s24, 14")
    e("s_add_u32 s37, s37, s33")
    e("s_add_u32 s37, s37, 0x10000")
    e("s_lshl_b32 s41, s26, 19")
    e("s_lshl_b32 s33, s27, 14")
    e("s_add_u32 s41, s41, s33")
    e("s_lshl_b32 s33, s24, 12")
    e("s_add_u32 s41, s41, s33")
    e(f"s_add_u32 s41, s41, {cfg.TD * 0x10000}")
    e("s_lshl_b32 s33, s26, 19")
    e("s_lshl_b32 s36, s28, 7")
    e("s_add_u32 s33, s33, s36")
    e("s_mov_b32 s34, 0x40000000")
    e("s_mov_b32 s39, 0")
    e(f"s_mov_b32 s29, {BUF1}")
    e(f"s_add_u32 s32, s35, {BUF1}")
    wait(vtag="bias")
    e(f"v_cmp_eq_u32 vcc, 0, v{T+2}")
    for i in (1, 2, 3, 5, 6, 7):
        e(f"v_mov_b32 v{BIA+i}, 0")
    e(f"v_cndmask_b32 v{BIA}, 0, v{BIA}, vcc")
    e(f"v_cndmask_b32 v{BIA+4}, 0, v{BIA+4}, vcc")
    e(f"v_mov_b32 v{ONE}, 0x3f80")
    for i in (1, 2, 3):
        e(f"v_mov_b32 v{ONE+i}, 0")
    e("s_waitcnt vmcnt(0) lgkmcnt(0)")
    e("s_barrier")
    if cfg.PROF:
        e("s_memtime s[50:51]")
        e("s_waitcnt lgkmcnt(0)")
    vm.clear()

    def init_acc(j):
        return f"v_mfma_f32_32x32x16_bf16 {acc(j)}, v[{BIA+4*j}:{BIA+4*j+3}], v[{ONE}:{ONE+3}], 0"

    def b_reads(s):
        b = bf(s)
        base = 64 * s
        return [("ds", ("B", s), f"ds_read_b128 v[{b}:{b+3}], v{vLB} offset:{base}"),
                ("ds", ("B", s), f"ds_read_b128 v[{b+4}:{b+7}], v{vLB} offset:{base+32}")]

    def g_items(j, c, gs, tag):
        r = []
        pk = RPK + (j * RCH + c) * 2
        for pb in range(4):
            d = GD + gs * 8 + 2 * pb
            r.append(("raw", f"v_add_u32_sdwa v{d}, v{vRB}, v{pk + (pb>>1)} dst_sel:DWORD dst_unused:UNUSED_PAD src0_sel:DWORD src1_sel:WORD_{pb&1}"))
        for pb in range(4):
            d = GD + gs * 8 + 2 * pb
            r.append(("ds", tag, f"ds_read_b64 v[{d}:{d+1}], v{d}"))
        return r

    uid = [0]
    def gather_block(j, c, gs):
        uid[0] += 1
        lbl = f"L_g{uid[0]}"
        e(f"s_cmp_le_u32 s{30+j}, {c}")
        e(f"s_cbranch_scc1 {lbl}")
        for it in g_items(j, c, gs, None):
            e(it[-1])
        e(f"{lbl}:")
        ds.append(("Gmark", j, c))
    def mfma_block(j, c, gs):
        cond = c >= RU
        if cond:
            uid[0] += 1
            lbl = f"L_m{uid[0]}"
            e(f"s_cmp_le_u32 s{30+j}, {c}")
            e(f"s_cbranch_scc1 {lbl}")
            wait(dtag=("Gmark", j, c))
        else:
            wait(dtag=("G", j, c))
        ra = RAF + (j * RCH + c) * 4
        e(f"v_smfmac_f32_32x32x32_bf16 {acc(j)}, v[{ra}:{ra+3}], v[{GD+gs*8}:{GD+gs*8+7}], v{RIX + j*4 + (c>>1)}" + (" abid:1" if c & 1 else ""))
        if cond:
            e(f"{lbl}:")

    def emit_items(items):
        for x in items:
            if x[0] == "raw": e(x[1])
            elif x[0] == "ds": ds_issue(x[1], x[2])
            elif x[0] == "vm": vm_issue(x[1], x[2])
            elif x[0] == "G": gather_block(*x[1:])
            elif x[0] == "M": mfma_block(*x[1:])
            elif x[0] == "W": wait(dtag=x[1])
            else: raise Exception(x)

    def epilogue_items():
        wr = [("ds", "tw", f"ds_write_b128 v{vTW}, v[{EP+4*i}:{EP+4*i+3}] offset:{32*i}") for i in range(4)]
        rb = []; st = []
        for i in range(4):
            a = EP + 4 * i
            rb.append(("ds", ("tr", i), f"ds_read_b128 v[{a}:{a+3}], v{vTR} offset:{i*8*TRS}"))
            st.append(("W", ("tr", i)))
            st.append(("raw", f"s_add_u32 s38, s34, {i*8*2048}"))
            st.append(("vm", "st", f"buffer_store_dwordx4 v[{a}:{a+3}], v{vST}, s[16:19], s38 offen"))
        return wr, rb, st

    e(init_acc(0))
    e(init_acc(1))
    for s in range(PD):
        emit_items(b_reads(s))

    e("L_loop:")
    rq = []
    def at(g, items):
        for it in items:
            rq.append((g, it))
    order = [(j, c) for c in range(RCH) for j in range(2)] if not cfg.NORES else []
    for z, (j, c) in enumerate(order):
        g0 = int(min(cfg.RPER, (2 * (32 - PD) - 1 - cfg.RLAT) * 10 // 15) * z / 10)
        if c >= RU:
            at(g0, [("G", j, c, z & 1)])
        else:
            gi = g_items(j, c, z & 1, ("G", j, c))
            at(g0, gi[:4]); at(g0 + 1, gi[4:])
        at(g0 + cfg.RLAT, [("M", j, c, z & 1)])
    if not cfg.NODMA:
        for r in range(8):
            at(cfg.DGS * r, [("raw", f"s_add_u32 m0, s32, {r*RS}"), ("raw", f"s_add_u32 s36, s40, {r*2048}"),
                             ("vm", "Xn", f"buffer_load_dwordx4 v{vDX}, s[12:15], s36 offen lds")])
            at(cfg.DGS * r + cfg.DGS // 2, [("vm", "Xn", f"buffer_load_dwordx4 v{vDX}, s[12:15], s36 offen offset:1024 lds")])
        at(cfg.DGS * 8, [("raw", f"s_mov_b32 m0, {LDS_SCR}"), ("raw", "s_nop 0"), ("vm", "touch", f"buffer_load_dword v{vTC}, s[12:15], s42 offen lds")])
    if not cfg.NOEPI:
        wr, rb, st = epilogue_items()
        for i in range(4):
            at(1 + 2 * i, [wr[i]])
        at(11, rb[:2]); at(13, rb[2:])
        for i in range(4):
            at(19 + 2 * i, st[3*i:3*i+3])
    rq.sort(key=lambda t: t[0])
    def fill(gap):
        while rq and rq[0][0] <= gap:
            emit_items([rq.pop(0)[1]])

    e("s_cmp_lt_u32 s39, 7")
    e("s_cselect_b32 s40, s37, 0x40000000")
    e(f"s_cmp_lt_u32 s39, {8 - cfg.TD}")
    e("s_cselect_b32 s42, s41, 0x40000000")
    for s in range(32):
        wait(dtag=("B", s))
        e(f"v_smfmac_f32_32x32x32_bf16 {acc(0)}, {A(0,s)}, v[{bf(s)}:{bf(s)+7}], v{IDX + (s>>1)}" + (" abid:1" if s & 1 else ""))
        sn = s + PD
        rd = b_reads(sn) if sn < 32 else []
        emit_items(rd[:1])
        fill(2 * s)
        e(f"v_smfmac_f32_32x32x32_bf16 {acc(1)}, {A(1,s)}, v[{bf(s)}:{bf(s)+7}], v{IDX + 16 + (s>>1)}" + (" abid:1" if s & 1 else ""))
        emit_items(rd[1:])
        fill(2 * s + 1)
        if s == 32 - PD - 1:
            assert not rq, len(rq)
            e("s_or_b32 s36, s64, s65")
            e("s_cbranch_scc0 L_sp_end")
            e(f"v_lshrrev_b32 v{GD+13}, 4, v{vDX}")
            for r in (2, 3, 4, 5, 6, 7, 9, 10, 11):
                e(f"v_mov_b32 v{GD+r}, 0")
            e("s_mov_b32 s58, 0")
            e("L_sp_kr:")
            e("s_cmp_lt_u32 s58, 64")
            e("s_cselect_b32 s36, s64, s65")
            e("s_cmp_eq_u32 s36, 0")
            e("s_cbranch_scc1 L_sp_nx")
            e("s_lshl_b32 s59, s28, 7")
            e("s_add_u32 s59, s59, s58")
            e("s_lshl_b32 s60, s59, 2")
            e(f"buffer_load_dword v{GD+15}, v{GD+9}, s[20:23], s60 offen offset:{WS_CNT} sc1")
            e("s_lshl_b32 s59, s59, 10")
            e(f"s_add_u32 s59, s59, {WS_ENT:#x}")
            e("s_waitcnt vmcnt(0)")
            e(f"v_readfirstlane_b32 s60, v{GD+15}")
            e("s_nop 3")
            e("s_cmp_eq_u32 s60, 0")
            e("s_cbranch_scc1 L_sp_nx")
            e("L_sp_e:")
            e(f"buffer_load_dword v{GD+15}, v{GD+9}, s[20:23], s59 offen sc1")
            e("s_waitcnt vmcnt(0)")
            e(f"v_readfirstlane_b32 s62, v{GD+15}")
            e("s_nop 3")
            e("s_lshr_b32 s63, s62, 26")
            e(f"v_cmp_eq_u32 vcc, s63, v{GD+13}")
            e("s_and_b32 s63, s62, 0xffff")
            e(f"v_mov_b32 v{GD+14}, s63")
            e("s_bfe_u32 s63, s62, 0x80010")
            e("s_lshl_b32 s63, s63, 3")
            e(f"v_add_u32 v{GD}, s63, v{vRB}")
            e(f"v_cndmask_b32 v{GD+8}, 0, v{GD+14}, vcc")
            e("s_bfe_u32 s63, s62, 0x20018")
            e(f"v_mov_b32 v{GD+12}, s63")
            e(f"ds_read_b64 v[{GD}:{GD+1}], v{GD}")
            e("s_waitcnt lgkmcnt(0)")
            e("s_cmp_lt_u32 s58, 64")
            e("s_cbranch_scc0 L_sp_j1")
            e(f"v_smfmac_f32_32x32x32_bf16 {acc(0)}, v[{GD+8}:{GD+11}], v[{GD}:{GD+7}], v{GD+12}")
            e("s_branch L_sp_jd")
            e("L_sp_j1:")
            e(f"v_smfmac_f32_32x32x32_bf16 {acc(1)}, v[{GD+8}:{GD+11}], v[{GD}:{GD+7}], v{GD+12}")
            e("L_sp_jd:")
            e("s_add_u32 s59, s59, 4")
            e("s_sub_u32 s60, s60, 1")
            e("s_cmp_lg_u32 s60, 0")
            e("s_nop 4")
            e("s_cbranch_scc1 L_sp_e")
            e("L_sp_nx:")
            e("s_add_u32 s58, s58, 1")
            e("s_cmp_lt_u32 s58, 128")
            e("s_cbranch_scc1 L_sp_kr")
            e("L_sp_end:")
        if sn >= 32:
            if sn == 32:
                if cfg.PROF:
                    e("s_memtime s[54:55]")
                if cfg.NODMA:
                    e("s_waitcnt lgkmcnt(0)")
                else:
                    e(f"s_waitcnt vmcnt({min(vm_n('Xn'),63)}) lgkmcnt(0)")
                e("s_barrier")
                if cfg.PROF:
                    e("s_memtime s[56:57]")
                    e("s_waitcnt lgkmcnt(0)")
                    e("s_sub_u32 s56, s56, s54")
                    e("s_add_u32 s52, s52, s56")
                e(f"v_add_u32 v{vLB}, s29, v{vLB}")
                e(f"v_add_u32 v{vRB}, s29, v{vRB}")
                e("s_sub_u32 s32, s32, s29")
                e("s_sub_u32 s29, 0, s29")
            emit_items(b_reads(sn - 32))
    e("s_mov_b32 s34, s33")
    e("s_add_u32 s33, s33, 0x10000")
    e("s_add_u32 s37, s37, 0x10000")
    e("s_add_u32 s41, s41, 0x10000")
    e("s_add_u32 s39, s39, 1")
    e("s_cmp_lt_u32 s39, 8")
    e("s_nop 3")
    for i in range(8):
        e(f"v_cvt_pk_bf16_f32 v{EP+i}, v{ACC+2*i}, v{ACC+2*i+1}")
    e(init_acc(0))
    e("s_nop 2")
    for i in range(8):
        e(f"v_cvt_pk_bf16_f32 v{EP+8+i}, v{ACC+16+2*i}, v{ACC+16+2*i+1}")
    e(init_acc(1))
    e("s_cbranch_scc1 L_loop")
    wr, rb, st = epilogue_items()
    emit_items(wr); emit_items(rb); emit_items(st)
    if cfg.PROF:
        e("s_memtime s[54:55]")
        e("s_memrealtime s[98:99]")
        e("s_waitcnt lgkmcnt(0)")
        e("s_sub_u32 s56, s50, s48")
        e("s_sub_u32 s57, s54, s50")
        e("s_sub_u32 s48, s98, s96")
        e("s_nop 4")
        e(f"v_mov_b32 v{GD}, s56")
        e(f"v_mov_b32 v{GD+1}, s52")
        e(f"v_mov_b32 v{GD+2}, s57")
        e(f"v_mov_b32 v{GD+3}, s48")
        e("s_lshl_b32 s36, s2, 2")
        e("s_add_u32 s36, s36, s24")
        e("s_lshl_b32 s36, s36, 4")
        e("s_add_u32 s36, s36, 0x8000000")
        e(f"v_mov_b32 v{GD+8}, 0")
        e(f"v_mov_b32 v{GD+4}, 0")
        e(f"v_mov_b32 v{GD+5}, 0")
        e(f"v_mov_b32 v{GD+6}, s53")
        e(f"v_mov_b32 v{GD+7}, 0")
        e(f"buffer_store_dwordx4 v[{GD}:{GD+3}], v{GD+8}, s[20:23], s36 offen")
        e("s_add_u32 s36, s36, 0x100000")
        e(f"buffer_store_dwordx4 v[{GD+4}:{GD+7}], v{GD+8}, s[20:23], s36 offen")
        e("s_nop 2")
        e(f"v_mov_b32 v{GD+4}, s96")
        e(f"v_mov_b32 v{GD+5}, s100")
        e(f"v_mov_b32 v{GD+6}, s101")
        e(f"v_mov_b32 v{GD+7}, s98")
        e("s_add_u32 s36, s36, 0x100000")
        e(f"buffer_store_dwordx4 v[{GD+4}:{GD+7}], v{GD+8}, s[20:23], s36 offen")
    e("L_main_end:")
    e("s_endpgm")


gen_main()

tail = """
.section .rodata,"a"
.p2align 6
.amdhsa_kernel standalone__structured_sparse_n_m__ragged_kernel
  .amdhsa_next_free_vgpr 512
  .amdhsa_next_free_sgpr 102
  .amdhsa_accum_offset 256
  .amdhsa_group_segment_fixed_size 0
  .amdhsa_kernarg_size 48
  .amdhsa_user_sgpr_count 2
  .amdhsa_user_sgpr_kernarg_segment_ptr 1
  .amdhsa_system_sgpr_workgroup_id_x 1
.end_amdhsa_kernel
"""
open(OUT, "w").write(hdr + "\n".join(L) + "\n" + tail)
print("wrote", OUT, len(L), "lines")
```

```python
import sys, os

OUT = os.environ.get("GEN_OUT", "standalone__structured_sparse_n_m__ragged.s")

WS_CNT = 0x0
WS_WI = 0x4000
WS_WA = 0x40000
WS_ENT = 0x200000
WS_SIZE = 0x10000000

class Cfg:
    NB = 4
    PD = 3
    RCH = 8
    RU = 6
    TD = 2
    RPER = 33
    RLAT = 6
    DGS = 4
    TMO = 20000
    SLP = 32
    SLP0 = 64
    PROF = 0
    DBG = 0
    NODMA = 0
    NORES = 0
    NOEPI = 0

cfg = Cfg()
for a in sys.argv[1:]:
    k, v = a.split("=")
    setattr(cfg, k, int(v))

RS = 4144
BUF1 = 2064
PADOFF = 2048
LDS_X = 32 * RS
LDS_TR = LDS_X
TRS = 144
LDS_SCR = LDS_TR + 4 * 32 * TRS
LDS_TOTAL = LDS_SCR + 256 + 16

L = []
def e(s=""):
    L.append("    " + s if s and not s.endswith(":") else s)

hdr = f"""; 2:4 structured-sparse GEMM  out = x @ prune24(w) + b   (B*S=16384, D=1024), bf16
; @launch grid=(256,1,1) block=(256,1,1) lds={LDS_TOTAL}
.amdgcn_target "amdgcn-amd-amdhsa--gfx950"
.text
"""


def gen_prep_slice():
    TBL = {0: 4, 1: 4, 2: 4, 4: 8, 8: 12, 3: 4, 5: 8, 6: 9, 7: 4, 9: 12, 10: 13, 11: 4, 12: 14, 13: 8, 14: 9, 15: 4}
    T64 = 0
    for k, v in TBL.items():
        T64 |= v << (4 * k)
    ET = {7: 1, 11: 2, 13: 2, 14: 2, 15: 3}
    E32 = 0
    for k, v in ET.items():
        E32 |= v << (2 * k)
    R = 64
    def v(n): return f"v{R+n}"
    e(f"v_lshlrev_b32 {v(3)}, 2, v0")
    e("s_lshl_b32 s89, s87, 15")
    e("s_lshl_b32 s90, s88, 10")
    e("s_add_u32 s89, s89, s90")
    D = 8
    for kk in range(0, 16, 2):
        e(f"buffer_load_dword {v(D+kk)}, {v(3)}, s[68:71], s89 offen")
        e(f"buffer_load_dword {v(D+kk+1)}, {v(3)}, s[68:71], s89 offen offset:2048")
        if kk < 14:
            e("s_add_u32 s89, s89, 4096")
    e("s_mov_b32 s76, 0x7fff7fff")
    e("s_mov_b32 s77, 0x00010001")
    e("s_mov_b32 s78, 0x000f000f")
    e(f"s_mov_b32 s80, {T64 & 0xffffffff:#x}")
    e(f"s_mov_b32 s81, {T64 >> 32:#x}")
    e(f"s_mov_b32 s82, {E32:#x}")
    e("s_mov_b32 s83, 0x05040100")
    e("s_mov_b32 s84, 0x07060302")
    e("s_mov_b32 s85, 0x01000100")
    e("s_mov_b32 s86, 0x0202")
    e(f"v_and_b32 {v(1)}, 15, v0")
    e(f"v_lshrrev_b32 {v(2)}, 4, v0")
    e("s_lshl_b32 s90, s88, 4")
    e(f"v_add_u32 {v(2)}, s90, {v(2)}")
    e(f"v_and_b32 {v(4)}, 9, {v(1)}")
    e(f"v_bfe_u32 {v(5)}, {v(1)}, 1, 1")
    e(f"v_bfe_u32 {v(6)}, {v(1)}, 2, 1")
    e(f"v_lshl_or_b32 {v(4)}, {v(5)}, 2, {v(4)}")
    e(f"v_lshl_or_b32 {v(4)}, {v(6)}, 1, {v(4)}")
    e(f"v_lshlrev_b32 {v(4)}, 1, {v(4)}")
    e(f"v_lshlrev_b32 {v(24)}, 15, {v(2)}")
    e(f"v_lshl_add_u32 {v(24)}, {v(4)}, 4, {v(24)}")
    e(f"v_lshlrev_b32 {v(25)}, 12, {v(2)}")
    e(f"v_lshl_add_u32 {v(25)}, {v(4)}, 4, {v(25)}")
    e("s_lshr_b32 s91, s87, 1")
    e("s_and_b32 s92, s87, 1")
    e("s_lshl_b32 s93, s91, 10")
    e("s_lshl_b32 s92, s92, 9")
    e("s_add_u32 s93, s93, s92")
    e(f"s_add_u32 s93, s93, {WS_WA:#x}")
    e("s_lshr_b32 s94, s91, 3")
    e("s_lshl_b32 s94, s94, 10")
    e("s_add_u32 s94, s94, s92")
    e("s_and_b32 s91, s91, 7")
    e("s_lshl_b32 s91, s91, 1")
    e("s_add_u32 s94, s94, s91")
    e(f"s_add_u32 s94, s94, {WS_WI:#x}")
    e(f"v_mov_b32 {v(36)}, 0")
    e(f"v_mov_b32 {v(37)}, 0")
    e(f"v_mov_b32 {v(38)}, 0")
    e("s_mov_b32 s89, 0")
    e("s_waitcnt vmcnt(0)")
    a, b, c, d = 50, 51, 52, 53
    e("L_pg:")
    e("s_set_gpr_idx_on s89, 0x1")
    e("s_nop 0")
    for i in range(4):
        e(f"v_mov_b32 {v(50+i)}, {v(D+i)}")
    e("s_set_gpr_idx_off")
    for i, r in enumerate((a, b, c, d)):
        e(f"v_and_b32 {v(40+i)}, s76, {v(r)}")
    e(f"v_pk_max_u16 {v(44)}, {v(40)}, {v(41)}")
    e(f"v_pk_min_u16 {v(45)}, {v(40)}, {v(41)}")
    e(f"v_pk_max_u16 {v(46)}, {v(42)}, {v(43)}")
    e(f"v_pk_min_u16 {v(47)}, {v(42)}, {v(43)}")
    e(f"v_pk_min_u16 {v(44)}, {v(44)}, {v(46)}")
    e(f"v_pk_max_u16 {v(45)}, {v(45)}, {v(47)}")
    e(f"v_pk_max_u16 {v(44)}, {v(44)}, {v(45)}")
    e(f"v_pk_max_u16 {v(44)}, {v(44)}, s77")
    for i in range(4):
        e(f"v_pk_sub_u16 {v(40+i)}, {v(44)}, {v(40+i)} clamp")
    for i in range(4):
        e(f"v_pk_min_u16 {v(40+i)}, {v(40+i)}, s77")
    e(f"v_lshl_or_b32 {v(40)}, {v(41)}, 1, {v(40)}")
    e(f"v_lshl_or_b32 {v(40)}, {v(42)}, 2, {v(40)}")
    e(f"v_lshl_or_b32 {v(40)}, {v(43)}, 3, {v(40)}")
    e(f"v_xor_b32 {v(40)}, s78, {v(40)}")
    e("s_lshr_b32 s90, s89, 2")
    for ee in range(2):
        sel = 83 + ee
        e(f"v_bfe_u32 {v(41)}, {v(40)}, {16*ee}, 4")
        e(f"v_lshlrev_b32 {v(42)}, 2, {v(41)}")
        e(f"v_lshrrev_b64 v[{R+46}:{R+47}], {v(42)}, s[80:81]")
        e(f"v_and_b32 {v(46)}, 15, {v(46)}")
        e(f"v_lshl_or_b32 {v(36+ee)}, {v(46)}, s89, {v(36+ee)}")
        e(f"v_perm_b32 {v(48)}, {v(b)}, {v(a)}, s{sel}")
        e(f"v_perm_b32 {v(49)}, {v(d)}, {v(c)}, s{sel}")
        e(f"v_and_b32 {v(47)}, 3, {v(46)}")
        e(f"v_lshrrev_b32 {v(46)}, 2, {v(46)}")
        e(f"v_lshl_or_b32 {v(46)}, {v(46)}, 16, {v(47)}")
        e(f"v_mov_b32 {v(47)}, s85")
        e(f"v_mad_u32_u24 {v(46)}, {v(46)}, s86, {v(47)}")
        e(f"v_perm_b32 {v(54+ee)}, {v(49)}, {v(48)}, {v(46)}")
        e(f"v_lshlrev_b32 {v(42)}, 1, {v(41)}")
        e(f"v_lshrrev_b32 {v(43)}, {v(42)}, s82")
        e(f"v_and_b32 {v(43)}, 3, {v(43)}")
        if ee:
            e(f"v_lshlrev_b32 {v(43)}, 2, {v(43)}")
        e(f"v_lshl_or_b32 {v(38)}, {v(43)}, s89, {v(38)}")
    e("s_set_gpr_idx_on s90, 0x8")
    e("s_nop 0")
    e(f"v_mov_b32 {v(28)}, {v(54)}")
    e(f"v_mov_b32 {v(32)}, {v(55)}")
    e("s_set_gpr_idx_off")
    e("s_add_u32 s89, s89, 4")
    e("s_cmp_lt_u32 s89, 16")
    e("s_cbranch_scc1 L_pg")
    e(f"buffer_store_dwordx4 v[{R+28}:{R+31}], {v(24)}, s[20:23], s93 offen sc1")
    e(f"buffer_store_dwordx4 v[{R+32}:{R+35}], {v(24)}, s[20:23], s93 offen offset:16 sc1")
    e(f"buffer_store_short {v(36)}, {v(25)}, s[20:23], s94 offen sc1")
    e(f"buffer_store_short {v(37)}, {v(25)}, s[20:23], s94 offen offset:16 sc1")
    e(f"v_bcnt_u32_b32 {v(39)}, {v(38)}, 0")
    e(f"v_mov_b32 {v(40)}, {v(39)}")
    e("s_nop 1")
    for sh in (1, 2, 4, 8):
        e(f"v_add_u32_dpp {v(40)}, {v(40)}, {v(40)} row_shr:{sh} row_mask:0xf bank_mask:0xf bound_ctrl:0")
        e("s_nop 1")
    e(f"v_lshlrev_b32 {v(41)}, 8, {v(2)}")
    e("s_lshl_b32 s89, s87, 2")
    e(f"v_cmp_eq_u32 vcc, 15, {v(1)}")
    e("s_and_saveexec_b64 s[66:67], vcc")
    e(f"buffer_store_dword {v(40)}, {v(41)}, s[20:23], s89 offen offset:{WS_CNT} sc1")
    e("s_mov_b64 exec, s[66:67]")
    e(f"v_sub_u32 {v(40)}, {v(40)}, {v(39)}")
    e(f"v_lshlrev_b32 {v(41)}, 16, {v(2)}")
    e("s_lshl_b32 s93, s87, 10")
    e(f"s_add_u32 s93, s93, {WS_ENT:#x}")
    e("s_mov_b32 s89, 0")
    e("L_pe:")
    e(f"v_cmp_ne_u32 vcc, 0, {v(38)}")
    e("s_cbranch_vccz L_pe_done")
    e(f"v_and_b32 {v(42)}, 1, {v(38)}")
    e(f"v_cmp_ne_u32 vcc, 0, {v(42)}")
    e("s_and_saveexec_b64 s[66:67], vcc")
    e("s_cbranch_execz L_pe_next")
    e("s_and_b32 s90, s89, 12")
    e("s_and_b32 s91, s89, 1")
    e("s_add_u32 s92, s90, s91")
    e("s_set_gpr_idx_on s92, 0x1")
    e("s_nop 0")
    e(f"v_mov_b32 {v(43)}, {v(D+2)}")
    e("s_set_gpr_idx_off")
    e("s_bfe_u32 s92, s89, 0x10001")
    e("s_lshl_b32 s94, s92, 4")
    e(f"v_lshrrev_b32 {v(43)}, s94, {v(43)}")
    e(f"v_and_b32 {v(43)}, 0xffff, {v(43)}")
    e("s_lshl_b32 s94, s87, 18")
    e("s_lshl_b32 s90, s90, 14")
    e("s_add_u32 s94, s94, s90")
    e("s_add_u32 s91, s91, 2")
    e("s_lshl_b32 s91, s91, 24")
    e("s_add_u32 s94, s94, s91")
    e("s_lshl_b32 s92, s92, 26")
    e("s_add_u32 s94, s94, s92")
    e(f"v_or_b32 {v(43)}, s94, {v(43)}")
    e(f"v_lshl_add_u32 {v(43)}, {v(4)}, 26, {v(43)}")
    e(f"v_lshl_add_u32 {v(42)}, {v(40)}, 2, {v(41)}")
    e(f"buffer_store_dword {v(43)}, {v(42)}, s[20:23], s93 offen sc1")
    e(f"v_add_u32 {v(40)}, 1, {v(40)}")
    e("L_pe_next:")
    e("s_mov_b64 exec, s[66:67]")
    e(f"v_lshrrev_b32 {v(38)}, 1, {v(38)}")
    e("s_add_u32 s89, s89, 1")
    e("s_branch L_pe")
    e("L_pe_done:")


def gen_main():
    NB, PD, RCH, RU = cfg.NB, cfg.PD, cfg.RCH, cfg.RU
    nxt = [1]
    def alloc(n, align=1):
        while nxt[0] % align:
            nxt[0] += 1
        r = nxt[0]
        nxt[0] += n
        return r
    vTW = 0
    vLB = alloc(1); vRB = alloc(1); vDX = alloc(1); vST = alloc(1); vTC = alloc(1); vTR = alloc(1)
    IDX = alloc(32, 4)
    ACC = alloc(32, 4)
    EP = alloc(16, 4)
    BF = alloc(8 * NB, 4)
    BIA = alloc(8, 4)
    ONE = alloc(4, 4)
    RAF = alloc(2 * RCH * 4, 4)
    RIX = alloc(2 * RCH // 2, 4)
    RPK = alloc(2 * RCH * 2, 4)
    GD = alloc(16, 4)
    assert nxt[0] <= 256, nxt[0]
    assert ACC == 40 and BIA >= 64 + 56

    def A(j, s):
        b = (s * 2 + j) * 4
        return f"a[{b}:{b+3}]"
    def acc(j):
        b = ACC + j * 16
        return f"v[{b}:{b+15}]"
    def bf(s):
        return BF + (s % NB) * 8

    ds = []
    vm = []
    def is_mark(t):
        return isinstance(t, tuple) and t[0] == "Gmark"
    def ds_issue(tag, ins):
        e(ins); ds.append(tag)
    def vm_issue(tag, ins):
        e(ins); vm.append(tag)
    def ds_n(tag):
        idx = max(i for i, t in enumerate(ds) if t == tag)
        return sum(1 for t in ds[idx+1:] if not is_mark(t))
    def vm_n(tag):
        idx = max(i for i, t in enumerate(vm) if t == tag)
        return len(vm) - 1 - idx
    def wait(dtag=None, vtag=None):
        w = []
        if vtag is not None:
            w.append(f"vmcnt({min(vm_n(vtag), 63)})")
        if dtag is not None:
            w.append(f"lgkmcnt({min(ds_n(dtag), 15)})")
        e("s_waitcnt " + " ".join(w))

    name = "standalone__structured_sparse_n_m__ragged_kernel"
    e(f".globl {name}")
    e(".p2align 8")
    e(f".type {name},@function")
    e(f"{name}:")
    e("s_cmp_ge_u32 s2, 256")
    e("s_cbranch_scc1 L_main_end")
    if cfg.PROF or cfg.DBG:
        e("s_memtime s[48:49]")
        e("s_memrealtime s[96:97]")
        e("s_mov_b32 s52, 0")
    e("s_load_dwordx4 s[4:7], s[0:1], 0")
    e("s_load_dwordx4 s[8:11], s[0:1], 16")
    e("s_load_dwordx4 s[72:75], s[0:1], 32")
    e(f"v_lshrrev_b32 v{vTR}, 6, v0")
    e("s_nop 0")
    e(f"v_readfirstlane_b32 s24, v{vTR}")
    e("s_and_b32 s25, s2, 7")
    e("s_lshr_b32 s26, s2, 3")
    e("s_and_b32 s27, s26, 3")
    e("s_lshr_b32 s26, s26, 2")
    e("s_lshl_b32 s25, s25, 3")
    e("s_add_u32 s26, s26, s25")
    e("s_lshl_b32 s28, s27, 2")
    e("s_add_u32 s28, s28, s24")
    e("s_lshr_b32 s87, s2, 1")
    e("s_and_b32 s88, s2, 1")
    e("s_mov_b32 s95, 0")
    e("s_waitcnt lgkmcnt(0)")
    e("s_mov_b32 s12, s4"); e("s_and_b32 s13, s5, 0xffff"); e("s_mov_b32 s14, 0x2000000"); e("s_mov_b32 s15, 0x00020000")
    e("s_mov_b32 s16, s10"); e("s_and_b32 s17, s11, 0xffff"); e("s_mov_b32 s18, 0x2000000"); e("s_mov_b32 s19, 0x00020000")
    e("s_mov_b32 s20, s74"); e("s_and_b32 s21, s75, 0xffff"); e(f"s_mov_b32 s22, {WS_SIZE:#x}"); e("s_mov_b32 s23, 0x00020000")
    e("s_mov_b32 s44, s8"); e("s_and_b32 s45, s9, 0xffff"); e("s_mov_b32 s46, 0x800"); e("s_mov_b32 s47, 0x00020000")
    e("s_mov_b32 s68, s6"); e("s_and_b32 s69, s7, 0xffff"); e("s_mov_b32 s70, 0x200000"); e("s_mov_b32 s71, 0x00020000")
    e("s_and_b32 s73, s73, 0xffff"); e("s_mov_b32 s74, 0x100"); e("s_mov_b32 s75, 0x00020000")
    e(f"v_mov_b32 v{GD+9}, 0")
    e(f"v_mov_b32 v{GD+10}, 1")
    e("s_cmp_ge_u32 s2, 128")
    e("s_cbranch_scc1 L_prep_skip")
    e("L_prep_again:")
    gen_prep_slice()
    e("s_cmp_eq_u32 s95, 0")
    e("s_cbranch_scc1 L_prep_signal0")
    e("s_add_u32 s87, s87, 1")
    e("s_cmp_lt_u32 s87, 64")
    e("s_cbranch_scc1 L_prep_again")
    e("s_waitcnt vmcnt(0)")
    e("s_barrier")
    e("s_branch L_sync_done")
    e("L_prep_signal0:")
    e(f"s_waitcnt vmcnt(0)")
    e("s_barrier")
    e("s_cmp_lg_u32 s24, 0")
    e("s_cbranch_scc1 L_x0")
    e("s_lshl_b32 s36, s88, 6")
    e("s_add_u32 s36, s36, s87")
    e("v_cmp_eq_u32 vcc, 0, v0")
    e("s_and_saveexec_b64 s[66:67], vcc")
    e(f"buffer_store_byte v{GD+10}, v{GD+9}, s[72:75], s36 offen offset:{128 if cfg.DBG else 0} sc1")
    e("s_mov_b64 exec, s[66:67]")
    e("s_branch L_poll_setup")
    e("L_prep_skip:")
    e("s_cmp_lg_u32 s24, 0")
    e("s_cbranch_scc1 L_x0")
    for _ in range(cfg.SLP0 // 64):
        e("s_sleep 64")
    e("L_poll_setup:")
    e("s_lshr_b32 s36, s27, 1")
    e("s_lshl_b32 s36, s36, 6")
    e(f"v_and_b32 v{GD+12}, 15, v0")
    e(f"v_lshlrev_b32 v{GD+12}, 2, v{GD+12}")
    e("s_mov_b32 s89, 0x01010101")
    e("s_memrealtime s[90:91]")
    e("L_poll:")
    e(f"buffer_load_dword v{GD+11}, v{GD+12}, s[72:75], s36 offen offset:{128 if cfg.DBG else 0} sc1")
    e("s_memrealtime s[92:93]")
    e("s_waitcnt vmcnt(0) lgkmcnt(0)")
    e(f"v_cmp_ne_u32 vcc, s89, v{GD+11}")
    e("s_sub_u32 s92, s92, s90")
    e("s_cmp_eq_u64 vcc, 0")
    e("s_cbranch_scc1 L_poll_ok")
    if cfg.SLP: e(f"s_sleep {cfg.SLP}")
    e(f"s_cmp_lt_u32 s92, {cfg.TMO}")
    e("s_cbranch_scc1 L_poll")
    e(f"v_mov_b32 v{GD+9}, 1")
    e("L_poll_ok:")
    e(f"v_mov_b32 v{GD+10}, {LDS_SCR + 256}")
    e(f"ds_write_b32 v{GD+10}, v{GD+9}")
    e("s_waitcnt lgkmcnt(0)")
    e("s_branch L_sync_wait")
    e("L_x0:")
    e(f"v_and_b32 v{vDX}, 63, v0")
    e(f"v_lshlrev_b32 v{vTC}, 6, v{vDX}")
    e(f"v_lshlrev_b32 v{vDX}, 4, v{vDX}")
    e("s_sub_u32 s36, s24, 1")
    e("s_mul_i32 s38, s36, 11")
    e("s_add_u32 s39, s38, 11")
    e("s_min_u32 s39, s39, 32")
    e("s_lshl_b32 s37, s26, 19")
    e("L_x0_loop:")
    e(f"s_mul_i32 s40, s38, {RS}")
    e("s_mov_b32 m0, s40")
    e("s_lshl_b32 s40, s38, 11")
    e("s_add_u32 s40, s40, s37")
    e(f"buffer_load_dwordx4 v{vDX}, s[12:15], s40 offen lds")
    e(f"buffer_load_dwordx4 v{vDX}, s[12:15], s40 offen offset:1024 lds")
    e("s_add_u32 s38, s38, 1")
    e("s_cmp_lt_u32 s38, s39")
    e("s_cbranch_scc1 L_x0_loop")
    e(f"s_mov_b32 m0, {LDS_SCR}")
    e("s_lshl_b32 s40, s27, 14")
    e("s_add_u32 s40, s40, s37")
    e("s_lshl_b32 s38, s36, 12")
    e("s_add_u32 s40, s40, s38")
    for tb in range(1, cfg.TD):
        e(f"s_add_u32 s38, s40, {tb * 0x10000}")
        e(f"buffer_load_dword v{vTC}, s[12:15], s38 offen lds")
        e(f"s_add_u32 s38, s40, {tb * 0x10000 + 4096}")
        e(f"buffer_load_dword v{vTC}, s[12:15], s38 offen lds")
    e("L_sync_wait:")
    if cfg.PROF:
        e("s_memrealtime s[58:59]")
        e("s_waitcnt lgkmcnt(0)")
        e("s_mov_b32 s100, s58")
    e("s_barrier")
    e(f"v_mov_b32 v{GD+10}, {LDS_SCR + 256}")
    e(f"ds_read_b32 v{GD+9}, v{GD+10}")
    e("s_waitcnt lgkmcnt(0)")
    e(f"v_readfirstlane_b32 s95, v{GD+9}")
    e("s_mov_b32 s87, 0")
    e("s_lshr_b32 s88, s27, 1")
    e("s_cmp_lg_u32 s95, 0")
    e("s_cbranch_scc1 L_prep_again")
    e("L_sync_done:")
    if cfg.DBG:
        e("s_memrealtime s[100:101]")
    if cfg.PROF:
        e("s_memtime s[54:55]")
        e("s_memrealtime s[60:61]")
        e("s_waitcnt lgkmcnt(0)")
        e("s_sub_u32 s53, s54, s48")
        e("s_mov_b32 s101, s60")
    T = GD
    TT = ACC
    e(f"v_and_b32 v{T}, 63, v0")
    e(f"v_lshlrev_b32 v{TT+0}, 2, v{T}")
    e(f"v_lshlrev_b32 v{TT+1}, 10, v{T}")
    e(f"v_lshlrev_b32 v{vDX}, 4, v{T}")
    for j in range(2):
        e("s_lshl_b32 s36, s28, 9")
        e(f"s_add_u32 s36, s36, {WS_CNT + j*256:#x}")
        vm_issue("ent", f"buffer_load_dword v{TT+4+12*j}, v{TT+0}, s[20:23], s36 offen sc1")
        e("s_lshl_b32 s36, s28, 17")
        e(f"s_add_u32 s36, s36, {WS_ENT + j*0x10000:#x}")
        vm_issue("ent", f"buffer_load_dwordx4 v[{TT+8+12*j}:{TT+11+12*j}], v{TT+1}, s[20:23], s36 offen sc1")
        vm_issue("ent", f"buffer_load_dwordx4 v[{TT+12+12*j}:{TT+15+12*j}], v{TT+1}, s[20:23], s36 offen offset:16 sc1")
    e(f"v_and_b32 v{T+1}, 31, v0")
    e(f"v_bfe_u32 v{T+2}, v0, 5, 1")
    e(f"v_and_b32 v{T+3}, 0x13, v{T+1}")
    e(f"v_bfe_u32 v{T+4}, v{T+1}, 2, 1")
    e(f"v_lshl_or_b32 v{T+3}, v{T+4}, 3, v{T+3}")
    e(f"v_bfe_u32 v{T+4}, v{T+1}, 3, 1")
    e(f"v_lshl_or_b32 v{T+3}, v{T+4}, 2, v{T+3}")
    e(f"v_lshlrev_b32 v{T+3}, 1, v{T+3}")
    e("s_lshl_b32 s36, s28, 7")
    vm_issue("bias", f"buffer_load_ushort v{BIA}, v{T+3}, s[44:47], s36 offen")
    vm_issue("bias", f"buffer_load_ushort v{BIA+4}, v{T+3}, s[44:47], s36 offen offset:64")
    e("s_lshl_b32 s36, s28, 13")
    e(f"s_add_u32 s36, s36, {WS_WI:#x}")
    for j in range(2):
        for u in range(4):
            b = IDX + j * 16 + u * 4
            if j == 1 and u == 0:
                e("s_add_u32 s36, s36, 0x1000")
            vm_issue("W", f"buffer_load_dwordx4 v[{b}:{b+3}], v{vDX}, s[20:23], s36 offen offset:{u*1024} sc1")
    e("s_lshl_b32 s42, s28, 16")
    e(f"s_add_u32 s42, s42, {WS_WA:#x}")
    e("s_add_u32 s43, s42, 0x8000")
    def w_loads(s0, s1):
        for s in range(s0, s1):
            if s % 4 == 0 and s:
                e("s_add_u32 s42, s42, 0x1000")
                e("s_add_u32 s43, s43, 0x1000")
            for j in range(2):
                vm_issue("W", f"buffer_load_dwordx4 {A(j,s)}, v{vDX}, s[20:23], s{42+j} offen offset:{(s%4)*1024} sc1")
    w_loads(0, 12)
    e(f"v_mul_u32_u24 v{vRB}, {RS}, v{T+1}")
    e(f"v_lshl_add_u32 v{vLB}, v{T+2}, 4, v{vRB}")
    e(f"v_lshrrev_b32 v{T+6}, 3, v{T}")
    e(f"v_and_b32 v{T+7}, 7, v{T}")
    e(f"v_lshlrev_b32 v{vST}, 11, v{T+6}")
    e(f"v_lshl_add_u32 v{vST}, v{T+7}, 4, v{vST}")
    e(f"s_mul_i32 s38, s24, {32*TRS}")
    e(f"s_add_u32 s38, s38, {LDS_TR}")
    e(f"v_mul_u32_u24 v{vTR}, {TRS}, v{T+6}")
    e(f"v_lshl_add_u32 v{vTR}, v{T+7}, 4, v{vTR}")
    e(f"v_add_u32 v{vTR}, s38, v{vTR}")
    e(f"v_mul_u32_u24 v{vTW}, {TRS}, v{T+1}")
    e(f"v_lshl_add_u32 v{vTW}, v{T+2}, 4, v{vTW}")
    e(f"v_add_u32 v{vTW}, s38, v{vTW}")
    e(f"v_lshlrev_b32 v{vTC}, 6, v{T}")
    e(f"v_lshlrev_b32 v{T+3}, 3, v{T+2}")
    e(f"s_mul_i32 s35, s24, {8*RS}")
    e(f"s_add_u32 s36, s35, {BUF1}")
    e(f"v_add_u32 v{TT+2}, s36, v{vDX}")
    e(f"v_add_u32 v{TT+3}, s38, v{vDX}")
    Z = TT + 28
    for i in range(4):
        e(f"v_mov_b32 v{Z+i}, 0")
    e(f"v_mov_b32 v{TT+32}, {PADOFF | (PADOFF << 16):#x}")
    e(f"v_add_u32 v{TT+33}, s38, v{TT+0}")
    for j in range(2):
        for c in range(RCH):
            e(f"ds_write_b128 v{TT+2}, v[{Z}:{Z+3}] offset:{(4*j + (c>>1))*RS + (c&1)*1024}")
        e(f"ds_write_b128 v{TT+3}, v[{Z}:{Z+3}] offset:{j*1024}")
    e(f"ds_write_b32 v{TT+33}, v{TT+32} offset:2048")
    e(f"v_mov_b32 v{T+6}, 0x3f803f80")
    e(f"v_mov_b32 v{T+7}, 0x3f803f80")
    e(f"ds_write_b64 v{vRB}, v[{T+6}:{T+7}] offset:{PADOFF}")
    e(f"ds_write_b64 v{vRB}, v[{T+6}:{T+7}] offset:{BUF1+PADOFF}")
    wait(vtag="ent")
    C = TT + 34; S = TT + 35; E = TT + 36; t = TT + 37
    e("s_mov_b32 s58, 0")
    e(f"s_add_u32 s59, s35, {BUF1}")
    e("s_mov_b32 s60, s38")
    e(f"s_add_u32 s61, s38, 2048")
    e("L_bj:")
    e("s_set_gpr_idx_on s58, 0x1")
    e("s_nop 0")
    e(f"v_mov_b32 v{C}, v{TT+4}")
    e("s_set_gpr_idx_off")
    e(f"v_mov_b32 v{S}, v{C}")
    e(f"v_cmp_lt_u32 vcc, 8, v{C}")
    for sh in (1, 2, 4, 8):
        e("s_nop 0")
        e(f"v_add_u32_dpp v{S}, v{S}, v{S} row_shr:{sh} row_mask:0xf bank_mask:0xf bound_ctrl:0")
        e("s_nop 0")
    e("s_nop 0")
    e(f"v_add_u32_dpp v{S}, v{S}, v{S} row_bcast:15 row_mask:0xa bank_mask:0xf")
    e("s_nop 1")
    e(f"v_add_u32_dpp v{S}, v{S}, v{S} row_bcast:31 row_mask:0xc bank_mask:0xf")
    e("s_nop 1")
    e(f"v_readlane_b32 s36, v{S}, 63")
    e(f"v_sub_u32 v{S}, v{S}, v{C}")
    e("s_cmp_lg_u64 vcc, 0")
    e("s_cselect_b32 s62, 1, 0")
    e(f"s_cmp_gt_u32 s36, {8*RCH}")
    e("s_cselect_b32 s62, 1, s62")
    e("s_add_u32 s36, s36, 7")
    e("s_lshr_b32 s36, s36, 3")
    e("s_cmp_eq_u32 s62, 0")
    e("s_cselect_b32 s36, s36, 0")
    e("s_cmp_eq_u32 s58, 0")
    e("s_cselect_b32 s30, s36, s30")
    e("s_cselect_b32 s64, s62, s64")
    e("s_mov_b32 s31, s36")
    e("s_mov_b32 s65, s62")
    e("s_cmp_lg_u32 s62, 0")
    e("s_cbranch_scc1 L_bj_next")
    e("s_mov_b32 s63, 0")
    e("L_be:")
    e(f"v_cmp_lt_u32 vcc, s63, v{C}")
    e("s_and_saveexec_b64 s[66:67], vcc")
    e("s_cbranch_execz L_be_done")
    e("s_add_u32 s36, s58, s63")
    e("s_set_gpr_idx_on s36, 0x1")
    e("s_nop 0")
    e(f"v_mov_b32 v{E}, v{TT+8}")
    e("s_set_gpr_idx_off")
    e(f"v_add_u32 v{t}, s63, v{S}")
    e(f"v_lshrrev_b32 v{t+1}, 3, v{t}")
    e(f"v_bfe_u32 v{t+2}, v{t}, 2, 1")
    e(f"v_and_b32 v{t+3}, 3, v{t}")
    e(f"v_lshrrev_b32 v{t+4}, 26, v{E}")
    e(f"v_lshl_add_u32 v{t+4}, v{t+2}, 5, v{t+4}")
    e(f"v_lshlrev_b32 v{t+4}, 4, v{t+4}")
    e(f"v_lshrrev_b32 v{t+5}, 1, v{t+1}")
    e(f"v_and_b32 v{t+6}, 1, v{t+1}")
    e(f"v_mul_u32_u24 v{t+7}, {RS}, v{t+5}")
    e(f"v_lshl_add_u32 v{t+7}, v{t+6}, 10, v{t+7}")
    e(f"v_add3_u32 v{t+7}, v{t+7}, v{t+4}, s59")
    e(f"v_lshl_add_u32 v{t+7}, v{t+3}, 2, v{t+7}")
    e(f"ds_write_b16 v{t+7}, v{E}")
    e(f"v_lshl_add_u32 v{t+8}, v{t+5}, 2, v{t+4}")
    e(f"v_add_u32 v{t+8}, s60, v{t+8}")
    e(f"v_lshlrev_b32 v{t+9}, 4, v{t+6}")
    e(f"v_lshl_add_u32 v{t+9}, v{t+3}, 2, v{t+9}")
    e(f"v_bfe_u32 v{t+10}, v{E}, 24, 2")
    e(f"v_lshlrev_b32 v{t+10}, v{t+9}, v{t+10}")
    e(f"ds_or_b32 v{t+8}, v{t+10}")
    e(f"v_lshlrev_b32 v{t+8}, 4, v{t+1}")
    e(f"v_bfe_u32 v{t+9}, v{t}, 1, 1")
    e(f"v_lshl_add_u32 v{t+8}, v{t+9}, 3, v{t+8}")
    e(f"v_lshl_add_u32 v{t+8}, v{t+2}, 2, v{t+8}")
    e(f"v_and_b32 v{t+9}, 1, v{t}")
    e(f"v_lshl_add_u32 v{t+8}, v{t+9}, 1, v{t+8}")
    e(f"v_add_u32 v{t+8}, s61, v{t+8}")
    e(f"v_bfe_u32 v{t+10}, v{E}, 16, 8")
    e(f"v_lshlrev_b32 v{t+10}, 3, v{t+10}")
    e(f"ds_write_b16 v{t+8}, v{t+10}")
    e("s_mov_b64 exec, s[66:67]")
    e("s_add_u32 s63, s63, 1")
    e("s_cmp_lt_u32 s63, 8")
    e("s_cbranch_scc1 L_be")
    e("L_be_done:")
    e("s_mov_b64 exec, s[66:67]")
    e("L_bj_next:")
    e("s_add_u32 s58, s58, 12")
    e(f"s_add_u32 s59, s59, {4*RS}")
    e("s_add_u32 s60, s60, 1024")
    e("s_add_u32 s61, s61, 128")
    e("s_cmp_lt_u32 s58, 24")
    e("s_cbranch_scc1 L_bj")
    e(f"v_add_u32 v{TT+33}, s38, v{T+3}")
    for j in range(2):
        for c in range(RCH):
            b = RAF + (j * RCH + c) * 4
            e(f"ds_read_b128 v[{b}:{b+3}], v{TT+2} offset:{(4*j + (c>>1))*RS + (c&1)*1024}")
            b = RPK + (j * RCH + c) * 2
            e(f"ds_read_b64 v[{b}:{b+1}], v{TT+33} offset:{2048 + j*128 + c*16}")
        e(f"ds_read_b128 v[{RIX+j*4}:{RIX+j*4+3}], v{TT+3} offset:{j*1024}")
    w_loads(12, 32)
    e("s_lshl_b32 s37, s26, 19")
    e("s_lshl_b32 s33, s24, 14")
    e("s_add_u32 s37, s37, s33")
    e("s_add_u32 s37, s37, 0x10000")
    e("s_lshl_b32 s41, s26, 19")
    e("s_lshl_b32 s33, s27, 14")
    e("s_add_u32 s41, s41, s33")
    e("s_lshl_b32 s33, s24, 12")
    e("s_add_u32 s41, s41, s33")
    e(f"s_add_u32 s41, s41, {cfg.TD * 0x10000}")
    e("s_lshl_b32 s33, s26, 19")
    e("s_lshl_b32 s36, s28, 7")
    e("s_add_u32 s33, s33, s36")
    e("s_mov_b32 s34, 0x40000000")
    e("s_mov_b32 s39, 0")
    e(f"s_mov_b32 s29, {BUF1}")
    e(f"s_add_u32 s32, s35, {BUF1}")
    wait(vtag="bias")
    e(f"v_cmp_eq_u32 vcc, 0, v{T+2}")
    for i in (1, 2, 3, 5, 6, 7):
        e(f"v_mov_b32 v{BIA+i}, 0")
    e(f"v_cndmask_b32 v{BIA}, 0, v{BIA}, vcc")
    e(f"v_cndmask_b32 v{BIA+4}, 0, v{BIA+4}, vcc")
    e(f"v_mov_b32 v{ONE}, 0x3f80")
    for i in (1, 2, 3):
        e(f"v_mov_b32 v{ONE+i}, 0")
    e("s_waitcnt vmcnt(0) lgkmcnt(0)")
    e("s_barrier")
    if cfg.PROF:
        e("s_memtime s[50:51]")
        e("s_waitcnt lgkmcnt(0)")
    vm.clear()

    def init_acc(j):
        return f"v_mfma_f32_32x32x16_bf16 {acc(j)}, v[{BIA+4*j}:{BIA+4*j+3}], v[{ONE}:{ONE+3}], 0"

    def b_reads(s):
        b = bf(s)
        base = 64 * s
        return [("ds", ("B", s), f"ds_read_b128 v[{b}:{b+3}], v{vLB} offset:{base}"),
                ("ds", ("B", s), f"ds_read_b128 v[{b+4}:{b+7}], v{vLB} offset:{base+32}")]

    def g_items(j, c, gs, tag):
        r = []
        pk = RPK + (j * RCH + c) * 2
        for pb in range(4):
            d = GD + gs * 8 + 2 * pb
            r.append(("raw", f"v_add_u32_sdwa v{d}, v{vRB}, v{pk + (pb>>1)} dst_sel:DWORD dst_unused:UNUSED_PAD src0_sel:DWORD src1_sel:WORD_{pb&1}"))
        for pb in range(4):
            d = GD + gs * 8 + 2 * pb
            r.append(("ds", tag, f"ds_read_b64 v[{d}:{d+1}], v{d}"))
        return r

    uid = [0]
    def gather_block(j, c, gs):
        uid[0] += 1
        lbl = f"L_g{uid[0]}"
        e(f"s_cmp_le_u32 s{30+j}, {c}")
        e(f"s_cbranch_scc1 {lbl}")
        for it in g_items(j, c, gs, None):
            e(it[-1])
        e(f"{lbl}:")
        ds.append(("Gmark", j, c))
    def mfma_block(j, c, gs):
        cond = c >= RU
        if cond:
            uid[0] += 1
            lbl = f"L_m{uid[0]}"
            e(f"s_cmp_le_u32 s{30+j}, {c}")
            e(f"s_cbranch_scc1 {lbl}")
            wait(dtag=("Gmark", j, c))
        else:
            wait(dtag=("G", j, c))
        ra = RAF + (j * RCH + c) * 4
        e(f"v_smfmac_f32_32x32x32_bf16 {acc(j)}, v[{ra}:{ra+3}], v[{GD+gs*8}:{GD+gs*8+7}], v{RIX + j*4 + (c>>1)}" + (" abid:1" if c & 1 else ""))
        if cond:
            e(f"{lbl}:")

    def emit_items(items):
        for x in items:
            if x[0] == "raw": e(x[1])
            elif x[0] == "ds": ds_issue(x[1], x[2])
            elif x[0] == "vm": vm_issue(x[1], x[2])
            elif x[0] == "G": gather_block(*x[1:])
            elif x[0] == "M": mfma_block(*x[1:])
            elif x[0] == "W": wait(dtag=x[1])
            else: raise Exception(x)

    def epilogue_items():
        wr = [("ds", "tw", f"ds_write_b128 v{vTW}, v[{EP+4*i}:{EP+4*i+3}] offset:{32*i}") for i in range(4)]
        rb = []; st = []
        for i in range(4):
            a = EP + 4 * i
            rb.append(("ds", ("tr", i), f"ds_read_b128 v[{a}:{a+3}], v{vTR} offset:{i*8*TRS}"))
            st.append(("W", ("tr", i)))
            st.append(("raw", f"s_add_u32 s38, s34, {i*8*2048}"))
            st.append(("vm", "st", f"buffer_store_dwordx4 v[{a}:{a+3}], v{vST}, s[16:19], s38 offen"))
        return wr, rb, st

    e(init_acc(0))
    e(init_acc(1))
    for s in range(PD):
        emit_items(b_reads(s))

    e("L_loop:")
    rq = []
    def at(g, items):
        for it in items:
            rq.append((g, it))
    order = [(j, c) for c in range(RCH) for j in range(2)] if not cfg.NORES else []
    for z, (j, c) in enumerate(order):
        g0 = int(min(cfg.RPER, (2 * (32 - PD) - 1 - cfg.RLAT) * 10 // 15) * z / 10)
        if c >= RU:
            at(g0, [("G", j, c, z & 1)])
        else:
            gi = g_items(j, c, z & 1, ("G", j, c))
            at(g0, gi[:4]); at(g0 + 1, gi[4:])
        at(g0 + cfg.RLAT, [("M", j, c, z & 1)])
    if not cfg.NODMA:
        for r in range(8):
            at(cfg.DGS * r, [("raw", f"s_add_u32 m0, s32, {r*RS}"), ("raw", f"s_add_u32 s36, s40, {r*2048}"),
                             ("vm", "Xn", f"buffer_load_dwordx4 v{vDX}, s[12:15], s36 offen lds")])
            at(cfg.DGS * r + cfg.DGS // 2, [("vm", "Xn", f"buffer_load_dwordx4 v{vDX}, s[12:15], s36 offen offset:1024 lds")])
        at(cfg.DGS * 8, [("raw", f"s_mov_b32 m0, {LDS_SCR}"), ("raw", "s_nop 0"), ("vm", "touch", f"buffer_load_dword v{vTC}, s[12:15], s42 offen lds")])
    if not cfg.NOEPI:
        wr, rb, st = epilogue_items()
        for i in range(4):
            at(1 + 2 * i, [wr[i]])
        at(11, rb[:2]); at(13, rb[2:])
        for i in range(4):
            at(19 + 2 * i, st[3*i:3*i+3])
    rq.sort(key=lambda t: t[0])
    def fill(gap):
        while rq and rq[0][0] <= gap:
            emit_items([rq.pop(0)[1]])

    e("s_cmp_lt_u32 s39, 7")
    e("s_cselect_b32 s40, s37, 0x40000000")
    e(f"s_cmp_lt_u32 s39, {8 - cfg.TD}")
    e("s_cselect_b32 s42, s41, 0x40000000")
    for s in range(32):
        wait(dtag=("B", s))
        e(f"v_smfmac_f32_32x32x32_bf16 {acc(0)}, {A(0,s)}, v[{bf(s)}:{bf(s)+7}], v{IDX + (s>>1)}" + (" abid:1" if s & 1 else ""))
        sn = s + PD
        rd = b_reads(sn) if sn < 32 else []
        emit_items(rd[:1])
        fill(2 * s)
        e(f"v_smfmac_f32_32x32x32_bf16 {acc(1)}, {A(1,s)}, v[{bf(s)}:{bf(s)+7}], v{IDX + 16 + (s>>1)}" + (" abid:1" if s & 1 else ""))
        emit_items(rd[1:])
        fill(2 * s + 1)
        if s == 32 - PD - 1:
            assert not rq, len(rq)
            e("s_or_b32 s36, s64, s65")
            e("s_cbranch_scc0 L_sp_end")
            e(f"v_lshrrev_b32 v{GD+13}, 4, v{vDX}")
            for r in (2, 3, 4, 5, 6, 7, 9, 10, 11):
                e(f"v_mov_b32 v{GD+r}, 0")
            e("s_mov_b32 s58, 0")
            e("L_sp_kr:")
            e("s_cmp_lt_u32 s58, 64")
            e("s_cselect_b32 s36, s64, s65")
            e("s_cmp_eq_u32 s36, 0")
            e("s_cbranch_scc1 L_sp_nx")
            e("s_lshl_b32 s59, s28, 7")
            e("s_add_u32 s59, s59, s58")
            e("s_lshl_b32 s60, s59, 2")
            e(f"buffer_load_dword v{GD+15}, v{GD+9}, s[20:23], s60 offen offset:{WS_CNT} sc1")
            e("s_lshl_b32 s59, s59, 10")
            e(f"s_add_u32 s59, s59, {WS_ENT:#x}")
            e("s_waitcnt vmcnt(0)")
            e(f"v_readfirstlane_b32 s60, v{GD+15}")
            e("s_nop 3")
            e("s_cmp_eq_u32 s60, 0")
            e("s_cbranch_scc1 L_sp_nx")
            e("L_sp_e:")
            e(f"buffer_load_dword v{GD+15}, v{GD+9}, s[20:23], s59 offen sc1")
            e("s_waitcnt vmcnt(0)")
            e(f"v_readfirstlane_b32 s62, v{GD+15}")
            e("s_nop 3")
            e("s_lshr_b32 s63, s62, 26")
            e(f"v_cmp_eq_u32 vcc, s63, v{GD+13}")
            e("s_and_b32 s63, s62, 0xffff")
            e(f"v_mov_b32 v{GD+14}, s63")
            e("s_bfe_u32 s63, s62, 0x80010")
            e("s_lshl_b32 s63, s63, 3")
            e(f"v_add_u32 v{GD}, s63, v{vRB}")
            e(f"v_cndmask_b32 v{GD+8}, 0, v{GD+14}, vcc")
            e("s_bfe_u32 s63, s62, 0x20018")
            e(f"v_mov_b32 v{GD+12}, s63")
            e(f"ds_read_b64 v[{GD}:{GD+1}], v{GD}")
            e("s_waitcnt lgkmcnt(0)")
            e("s_cmp_lt_u32 s58, 64")
            e("s_cbranch_scc0 L_sp_j1")
            e(f"v_smfmac_f32_32x32x32_bf16 {acc(0)}, v[{GD+8}:{GD+11}], v[{GD}:{GD+7}], v{GD+12}")
            e("s_branch L_sp_jd")
            e("L_sp_j1:")
            e(f"v_smfmac_f32_32x32x32_bf16 {acc(1)}, v[{GD+8}:{GD+11}], v[{GD}:{GD+7}], v{GD+12}")
            e("L_sp_jd:")
            e("s_add_u32 s59, s59, 4")
            e("s_sub_u32 s60, s60, 1")
            e("s_cmp_lg_u32 s60, 0")
            e("s_nop 4")
            e("s_cbranch_scc1 L_sp_e")
            e("L_sp_nx:")
            e("s_add_u32 s58, s58, 1")
            e("s_cmp_lt_u32 s58, 128")
            e("s_cbranch_scc1 L_sp_kr")
            e("L_sp_end:")
        if sn >= 32:
            if sn == 32:
                if cfg.PROF:
                    e("s_memtime s[54:55]")
                if cfg.NODMA:
                    e("s_waitcnt lgkmcnt(0)")
                else:
                    e(f"s_waitcnt vmcnt({min(vm_n('Xn'),63)}) lgkmcnt(0)")
                e("s_barrier")
                if cfg.PROF:
                    e("s_memtime s[56:57]")
                    e("s_waitcnt lgkmcnt(0)")
                    e("s_sub_u32 s56, s56, s54")
                    e("s_add_u32 s52, s52, s56")
                e(f"v_add_u32 v{vLB}, s29, v{vLB}")
                e(f"v_add_u32 v{vRB}, s29, v{vRB}")
                e("s_sub_u32 s32, s32, s29")
                e("s_sub_u32 s29, 0, s29")
            emit_items(b_reads(sn - 32))
    e("s_mov_b32 s34, s33")
    e("s_add_u32 s33, s33, 0x10000")
    e("s_add_u32 s37, s37, 0x10000")
    e("s_add_u32 s41, s41, 0x10000")
    e("s_add_u32 s39, s39, 1")
    e("s_cmp_lt_u32 s39, 8")
    e("s_nop 3")
    for i in range(8):
        e(f"v_cvt_pk_bf16_f32 v{EP+i}, v{ACC+2*i}, v{ACC+2*i+1}")
    e(init_acc(0))
    e("s_nop 2")
    for i in range(8):
        e(f"v_cvt_pk_bf16_f32 v{EP+8+i}, v{ACC+16+2*i}, v{ACC+16+2*i+1}")
    e(init_acc(1))
    e("s_cbranch_scc1 L_loop")
    wr, rb, st = epilogue_items()
    emit_items(wr); emit_items(rb); emit_items(st)
    if cfg.PROF:
        e("s_memtime s[54:55]")
        e("s_memrealtime s[98:99]")
        e("s_waitcnt lgkmcnt(0)")
        e("s_sub_u32 s56, s50, s48")
        e("s_sub_u32 s57, s54, s50")
        e("s_sub_u32 s48, s98, s96")
        e("s_nop 4")
        e(f"v_mov_b32 v{GD}, s56")
        e(f"v_mov_b32 v{GD+1}, s52")
        e(f"v_mov_b32 v{GD+2}, s57")
        e(f"v_mov_b32 v{GD+3}, s48")
        e("s_lshl_b32 s36, s2, 2")
        e("s_add_u32 s36, s36, s24")
        e("s_lshl_b32 s36, s36, 4")
        e("s_add_u32 s36, s36, 0x8000000")
        e(f"v_mov_b32 v{GD+8}, 0")
        e(f"v_mov_b32 v{GD+4}, 0")
        e(f"v_mov_b32 v{GD+5}, 0")
        e(f"v_mov_b32 v{GD+6}, s53")
        e(f"v_mov_b32 v{GD+7}, 0")
        e(f"buffer_store_dwordx4 v[{GD}:{GD+3}], v{GD+8}, s[20:23], s36 offen")
        e("s_add_u32 s36, s36, 0x100000")
        e(f"buffer_store_dwordx4 v[{GD+4}:{GD+7}], v{GD+8}, s[20:23], s36 offen")
        e("s_nop 2")
        e(f"v_mov_b32 v{GD+4}, s96")
        e(f"v_mov_b32 v{GD+5}, s100")
        e(f"v_mov_b32 v{GD+6}, s101")
        e(f"v_mov_b32 v{GD+7}, s98")
        e("s_add_u32 s36, s36, 0x100000")
        e(f"buffer_store_dwordx4 v[{GD+4}:{GD+7}], v{GD+8}, s[20:23], s36 offen")
    if cfg.DBG:
        e("s_waitcnt vmcnt(0)")
        e("s_memtime s[54:55]")
        e("s_memrealtime s[98:99]")
        e("s_waitcnt lgkmcnt(0)")
        e("s_sub_u32 s54, s54, s48")
        e("s_sub_u32 s98, s98, s96")
        e("s_sub_u32 s100, s100, s96")
        e(f"v_mov_b32 v{GD}, s98")
        e(f"v_mov_b32 v{GD+1}, s54")
        e(f"v_mov_b32 v{GD+2}, s100")
        e(f"v_mov_b32 v{GD+3}, 0")
        e(f"v_mov_b32 v{GD+4}, 4")
        e(f"v_mov_b32 v{GD+5}, 8")
        e(f"v_cmp_eq_u32 vcc, 0, v{vDX}")
        e("s_and_saveexec_b64 s[66:67], vcc")
        e(f"buffer_atomic_umax v{GD}, v{GD+3}, s[72:75], 0 offen")
        e(f"buffer_atomic_umax v{GD+1}, v{GD+4}, s[72:75], 0 offen")
        e(f"buffer_atomic_umax v{GD+2}, v{GD+5}, s[72:75], 0 offen")
    e("L_main_end:")
    e("s_endpgm")


gen_main()

tail = """
.section .rodata,"a"
.p2align 6
.amdhsa_kernel standalone__structured_sparse_n_m__ragged_kernel
  .amdhsa_next_free_vgpr 512
  .amdhsa_next_free_sgpr 102
  .amdhsa_accum_offset 256
  .amdhsa_group_segment_fixed_size 0
  .amdhsa_kernarg_size 48
  .amdhsa_user_sgpr_count 2
  .amdhsa_user_sgpr_kernarg_segment_ptr 1
  .amdhsa_system_sgpr_workgroup_id_x 1
.end_amdhsa_kernel
"""
open(OUT, "w").write(hdr + "\n".join(L) + "\n" + tail)
print("wrote", OUT, len(L), "lines")
```

```python
import sys, os

OUT = os.environ.get("GEN_OUT", "standalone__structured_sparse_n_m__ragged.s")

WS_CNT = 0x0
WS_WI = 0x4000
WS_WA = 0x40000
WS_ENT = 0x200000
WS_SIZE = 0x10000000

class Cfg:
    NB = 4
    PD = 3
    RCH = 8
    RU = 6
    TD = 2
    RPER = 33
    RLAT = 6
    DGS = 4
    TMO = 20000
    SLP = 32
    SLP0 = 64
    PROF = 0
    STM = 0
    DBG = 0
    NODMA = 0
    NORES = 0
    NOEPI = 0

cfg = Cfg()
for a in sys.argv[1:]:
    k, v = a.split("=")
    setattr(cfg, k, int(v))

RS = 4144
BUF1 = 2064
PADOFF = 2048
LDS_X = 32 * RS
LDS_TR = LDS_X
TRS = 144
LDS_SCR = LDS_TR + 4 * 32 * TRS
LDS_TOTAL = LDS_SCR + 256 + 16

L = []
def e(s=""):
    L.append("    " + s if s and not s.endswith(":") else s)

hdr = f"""; 2:4 structured-sparse GEMM  out = x @ prune24(w) + b   (B*S=16384, D=1024), bf16
; @launch grid=(256,1,1) block=(256,1,1) lds={LDS_TOTAL}
.amdgcn_target "amdgcn-amd-amdhsa--gfx950"
.text
"""


def gen_prep_slice():
    TBL = {0: 4, 1: 4, 2: 4, 4: 8, 8: 12, 3: 4, 5: 8, 6: 9, 7: 4, 9: 12, 10: 13, 11: 4, 12: 14, 13: 8, 14: 9, 15: 4}
    T64 = 0
    for k, v in TBL.items():
        T64 |= v << (4 * k)
    ET = {7: 1, 11: 2, 13: 2, 14: 2, 15: 3}
    E32 = 0
    for k, v in ET.items():
        E32 |= v << (2 * k)
    R = 64
    def v(n): return f"v{R+n}"
    e(f"v_lshlrev_b32 {v(3)}, 2, v0")
    e("s_lshl_b32 s89, s87, 15")
    e("s_lshl_b32 s90, s88, 10")
    e("s_add_u32 s89, s89, s90")
    D = 8
    for kk in range(0, 16, 2):
        e(f"buffer_load_dword {v(D+kk)}, {v(3)}, s[68:71], s89 offen")
        e(f"buffer_load_dword {v(D+kk+1)}, {v(3)}, s[68:71], s89 offen offset:2048")
        if kk < 14:
            e("s_add_u32 s89, s89, 4096")
    e("s_mov_b32 s76, 0x7fff7fff")
    e("s_mov_b32 s77, 0x00010001")
    e("s_mov_b32 s78, 0x000f000f")
    e(f"s_mov_b32 s80, {T64 & 0xffffffff:#x}")
    e(f"s_mov_b32 s81, {T64 >> 32:#x}")
    e(f"s_mov_b32 s82, {E32:#x}")
    e("s_mov_b32 s83, 0x05040100")
    e("s_mov_b32 s84, 0x07060302")
    e("s_mov_b32 s85, 0x01000100")
    e("s_mov_b32 s86, 0x0202")
    e(f"v_and_b32 {v(1)}, 15, v0")
    e(f"v_lshrrev_b32 {v(2)}, 4, v0")
    e("s_lshl_b32 s90, s88, 4")
    e(f"v_add_u32 {v(2)}, s90, {v(2)}")
    e(f"v_and_b32 {v(4)}, 9, {v(1)}")
    e(f"v_bfe_u32 {v(5)}, {v(1)}, 1, 1")
    e(f"v_bfe_u32 {v(6)}, {v(1)}, 2, 1")
    e(f"v_lshl_or_b32 {v(4)}, {v(5)}, 2, {v(4)}")
    e(f"v_lshl_or_b32 {v(4)}, {v(6)}, 1, {v(4)}")
    e(f"v_lshlrev_b32 {v(4)}, 1, {v(4)}")
    e(f"v_lshlrev_b32 {v(24)}, 15, {v(2)}")
    e(f"v_lshl_add_u32 {v(24)}, {v(4)}, 4, {v(24)}")
    e(f"v_lshlrev_b32 {v(25)}, 12, {v(2)}")
    e(f"v_lshl_add_u32 {v(25)}, {v(4)}, 4, {v(25)}")
    e("s_lshr_b32 s91, s87, 1")
    e("s_and_b32 s92, s87, 1")
    e("s_lshl_b32 s93, s91, 10")
    e("s_lshl_b32 s92, s92, 9")
    e("s_add_u32 s93, s93, s92")
    e(f"s_add_u32 s93, s93, {WS_WA:#x}")
    e("s_lshr_b32 s94, s91, 3")
    e("s_lshl_b32 s94, s94, 10")
    e("s_add_u32 s94, s94, s92")
    e("s_and_b32 s91, s91, 7")
    e("s_lshl_b32 s91, s91, 1")
    e("s_add_u32 s94, s94, s91")
    e(f"s_add_u32 s94, s94, {WS_WI:#x}")
    e(f"v_mov_b32 {v(36)}, 0")
    e(f"v_mov_b32 {v(37)}, 0")
    e(f"v_mov_b32 {v(38)}, 0")
    e("s_mov_b32 s89, 0")
    e("s_waitcnt vmcnt(0)")
    a, b, c, d = 50, 51, 52, 53
    e("L_pg:")
    e("s_set_gpr_idx_on s89, 0x1")
    e("s_nop 0")
    for i in range(4):
        e(f"v_mov_b32 {v(50+i)}, {v(D+i)}")
    e("s_set_gpr_idx_off")
    for i, r in enumerate((a, b, c, d)):
        e(f"v_and_b32 {v(40+i)}, s76, {v(r)}")
    e(f"v_pk_max_u16 {v(44)}, {v(40)}, {v(41)}")
    e(f"v_pk_min_u16 {v(45)}, {v(40)}, {v(41)}")
    e(f"v_pk_max_u16 {v(46)}, {v(42)}, {v(43)}")
    e(f"v_pk_min_u16 {v(47)}, {v(42)}, {v(43)}")
    e(f"v_pk_min_u16 {v(44)}, {v(44)}, {v(46)}")
    e(f"v_pk_max_u16 {v(45)}, {v(45)}, {v(47)}")
    e(f"v_pk_max_u16 {v(44)}, {v(44)}, {v(45)}")
    e(f"v_pk_max_u16 {v(44)}, {v(44)}, s77")
    for i in range(4):
        e(f"v_pk_sub_u16 {v(40+i)}, {v(44)}, {v(40+i)} clamp")
    for i in range(4):
        e(f"v_pk_min_u16 {v(40+i)}, {v(40+i)}, s77")
    e(f"v_lshl_or_b32 {v(40)}, {v(41)}, 1, {v(40)}")
    e(f"v_lshl_or_b32 {v(40)}, {v(42)}, 2, {v(40)}")
    e(f"v_lshl_or_b32 {v(40)}, {v(43)}, 3, {v(40)}")
    e(f"v_xor_b32 {v(40)}, s78, {v(40)}")
    e("s_lshr_b32 s90, s89, 2")
    for ee in range(2):
        sel = 83 + ee
        e(f"v_bfe_u32 {v(41)}, {v(40)}, {16*ee}, 4")
        e(f"v_lshlrev_b32 {v(42)}, 2, {v(41)}")
        e(f"v_lshrrev_b64 v[{R+46}:{R+47}], {v(42)}, s[80:81]")
        e(f"v_and_b32 {v(46)}, 15, {v(46)}")
        e(f"v_lshl_or_b32 {v(36+ee)}, {v(46)}, s89, {v(36+ee)}")
        e(f"v_perm_b32 {v(48)}, {v(b)}, {v(a)}, s{sel}")
        e(f"v_perm_b32 {v(49)}, {v(d)}, {v(c)}, s{sel}")
        e(f"v_and_b32 {v(47)}, 3, {v(46)}")
        e(f"v_lshrrev_b32 {v(46)}, 2, {v(46)}")
        e(f"v_lshl_or_b32 {v(46)}, {v(46)}, 16, {v(47)}")
        e(f"v_mov_b32 {v(47)}, s85")
        e(f"v_mad_u32_u24 {v(46)}, {v(46)}, s86, {v(47)}")
        e(f"v_perm_b32 {v(54+ee)}, {v(49)}, {v(48)}, {v(46)}")
        e(f"v_lshlrev_b32 {v(42)}, 1, {v(41)}")
        e(f"v_lshrrev_b32 {v(43)}, {v(42)}, s82")
        e(f"v_and_b32 {v(43)}, 3, {v(43)}")
        if ee:
            e(f"v_lshlrev_b32 {v(43)}, 2, {v(43)}")
        e(f"v_lshl_or_b32 {v(38)}, {v(43)}, s89, {v(38)}")
    e("s_set_gpr_idx_on s90, 0x8")
    e("s_nop 0")
    e(f"v_mov_b32 {v(28)}, {v(54)}")
    e(f"v_mov_b32 {v(32)}, {v(55)}")
    e("s_set_gpr_idx_off")
    e("s_add_u32 s89, s89, 4")
    e("s_cmp_lt_u32 s89, 16")
    e("s_cbranch_scc1 L_pg")
    e(f"buffer_store_dwordx4 v[{R+28}:{R+31}], {v(24)}, s[20:23], s93 offen sc1")
    e(f"buffer_store_dwordx4 v[{R+32}:{R+35}], {v(24)}, s[20:23], s93 offen offset:16 sc1")
    e(f"buffer_store_short {v(36)}, {v(25)}, s[20:23], s94 offen sc1")
    e(f"buffer_store_short {v(37)}, {v(25)}, s[20:23], s94 offen offset:16 sc1")
    e(f"v_bcnt_u32_b32 {v(39)}, {v(38)}, 0")
    e(f"v_mov_b32 {v(40)}, {v(39)}")
    e("s_nop 1")
    for sh in (1, 2, 4, 8):
        e(f"v_add_u32_dpp {v(40)}, {v(40)}, {v(40)} row_shr:{sh} row_mask:0xf bank_mask:0xf bound_ctrl:0")
        e("s_nop 1")
    e(f"v_lshlrev_b32 {v(41)}, 8, {v(2)}")
    e("s_lshl_b32 s89, s87, 2")
    e(f"v_cmp_eq_u32 vcc, 15, {v(1)}")
    e("s_and_saveexec_b64 s[66:67], vcc")
    e(f"buffer_store_dword {v(40)}, {v(41)}, s[20:23], s89 offen offset:{WS_CNT} sc1")
    e("s_mov_b64 exec, s[66:67]")
    e(f"v_sub_u32 {v(40)}, {v(40)}, {v(39)}")
    e(f"v_lshlrev_b32 {v(41)}, 16, {v(2)}")
    e("s_lshl_b32 s93, s87, 10")
    e(f"s_add_u32 s93, s93, {WS_ENT:#x}")
    e("s_mov_b32 s89, 0")
    e("L_pe:")
    e(f"v_cmp_ne_u32 vcc, 0, {v(38)}")
    e("s_cbranch_vccz L_pe_done")
    e(f"v_and_b32 {v(42)}, 1, {v(38)}")
    e(f"v_cmp_ne_u32 vcc, 0, {v(42)}")
    e("s_and_saveexec_b64 s[66:67], vcc")
    e("s_cbranch_execz L_pe_next")
    e("s_and_b32 s90, s89, 12")
    e("s_and_b32 s91, s89, 1")
    e("s_add_u32 s92, s90, s91")
    e("s_set_gpr_idx_on s92, 0x1")
    e("s_nop 0")
    e(f"v_mov_b32 {v(43)}, {v(D+2)}")
    e("s_set_gpr_idx_off")
    e("s_bfe_u32 s92, s89, 0x10001")
    e("s_lshl_b32 s94, s92, 4")
    e(f"v_lshrrev_b32 {v(43)}, s94, {v(43)}")
    e(f"v_and_b32 {v(43)}, 0xffff, {v(43)}")
    e("s_lshl_b32 s94, s87, 18")
    e("s_lshl_b32 s90, s90, 14")
    e("s_add_u32 s94, s94, s90")
    e("s_add_u32 s91, s91, 2")
    e("s_lshl_b32 s91, s91, 24")
    e("s_add_u32 s94, s94, s91")
    e("s_lshl_b32 s92, s92, 26")
    e("s_add_u32 s94, s94, s92")
    e(f"v_or_b32 {v(43)}, s94, {v(43)}")
    e(f"v_lshl_add_u32 {v(43)}, {v(4)}, 26, {v(43)}")
    e(f"v_lshl_add_u32 {v(42)}, {v(40)}, 2, {v(41)}")
    e(f"buffer_store_dword {v(43)}, {v(42)}, s[20:23], s93 offen sc1")
    e(f"v_add_u32 {v(40)}, 1, {v(40)}")
    e("L_pe_next:")
    e("s_mov_b64 exec, s[66:67]")
    e(f"v_lshrrev_b32 {v(38)}, 1, {v(38)}")
    e("s_add_u32 s89, s89, 1")
    e("s_branch L_pe")
    e("L_pe_done:")


def gen_main():
    NB, PD, RCH, RU = cfg.NB, cfg.PD, cfg.RCH, cfg.RU
    nxt = [1]
    def alloc(n, align=1):
        while nxt[0] % align:
            nxt[0] += 1
        r = nxt[0]
        nxt[0] += n
        return r
    vTW = 0
    vLB = alloc(1); vRB = alloc(1); vDX = alloc(1); vST = alloc(1); vTC = alloc(1); vTR = alloc(1)
    IDX = alloc(32, 4)
    ACC = alloc(32, 4)
    EP = alloc(16, 4)
    BF = alloc(8 * NB, 4)
    BIA = alloc(8, 4)
    ONE = alloc(4, 4)
    RAF = alloc(2 * RCH * 4, 4)
    RIX = alloc(2 * RCH // 2, 4)
    RPK = alloc(2 * RCH * 2, 4)
    GD = alloc(16, 4)
    assert nxt[0] <= 256, nxt[0]
    assert ACC == 40 and BIA >= 64 + 56

    def A(j, s):
        b = (s * 2 + j) * 4
        return f"a[{b}:{b+3}]"
    def acc(j):
        b = ACC + j * 16
        return f"v[{b}:{b+15}]"
    def bf(s):
        return BF + (s % NB) * 8

    ds = []
    vm = []
    def is_mark(t):
        return isinstance(t, tuple) and t[0] == "Gmark"
    def ds_issue(tag, ins):
        e(ins); ds.append(tag)
    def vm_issue(tag, ins):
        e(ins); vm.append(tag)
    def ds_n(tag):
        idx = max(i for i, t in enumerate(ds) if t == tag)
        return sum(1 for t in ds[idx+1:] if not is_mark(t))
    def vm_n(tag):
        idx = max(i for i, t in enumerate(vm) if t == tag)
        return len(vm) - 1 - idx
    def wait(dtag=None, vtag=None):
        w = []
        if vtag is not None:
            w.append(f"vmcnt({min(vm_n(vtag), 63)})")
        if dtag is not None:
            w.append(f"lgkmcnt({min(ds_n(dtag), 15)})")
        e("s_waitcnt " + " ".join(w))

    name = "standalone__structured_sparse_n_m__ragged_kernel"
    e(f".globl {name}")
    e(".p2align 8")
    e(f".type {name},@function")
    e(f"{name}:")
    e("s_cmp_ge_u32 s2, 256")
    e("s_cbranch_scc1 L_main_end")
    if cfg.PROF or cfg.DBG:
        e("s_memtime s[48:49]")
        e("s_memrealtime s[96:97]")
        e("s_mov_b32 s52, 0")
    e("s_load_dwordx4 s[4:7], s[0:1], 0")
    e("s_load_dwordx4 s[8:11], s[0:1], 16")
    e("s_load_dwordx4 s[72:75], s[0:1], 32")
    e(f"v_lshrrev_b32 v{vTR}, 6, v0")
    e("s_nop 0")
    e(f"v_readfirstlane_b32 s24, v{vTR}")
    e("s_and_b32 s25, s2, 7")
    e("s_lshr_b32 s26, s2, 3")
    e("s_and_b32 s27, s26, 3")
    e("s_lshr_b32 s26, s26, 2")
    e("s_lshl_b32 s25, s25, 3")
    e("s_add_u32 s26, s26, s25")
    e("s_lshl_b32 s28, s27, 2")
    e("s_add_u32 s28, s28, s24")
    e("s_lshr_b32 s87, s2, 1")
    e("s_and_b32 s88, s2, 1")
    e("s_mov_b32 s95, 0")
    e("s_waitcnt lgkmcnt(0)")
    e("s_mov_b32 s12, s4"); e("s_and_b32 s13, s5, 0xffff"); e("s_mov_b32 s14, 0x2000000"); e("s_mov_b32 s15, 0x00020000")
    e("s_mov_b32 s16, s10"); e("s_and_b32 s17, s11, 0xffff"); e("s_mov_b32 s18, 0x2000000"); e("s_mov_b32 s19, 0x00020000")
    e("s_mov_b32 s20, s74"); e("s_and_b32 s21, s75, 0xffff"); e(f"s_mov_b32 s22, {WS_SIZE:#x}"); e("s_mov_b32 s23, 0x00020000")
    e("s_mov_b32 s44, s8"); e("s_and_b32 s45, s9, 0xffff"); e("s_mov_b32 s46, 0x800"); e("s_mov_b32 s47, 0x00020000")
    e("s_mov_b32 s68, s6"); e("s_and_b32 s69, s7, 0xffff"); e("s_mov_b32 s70, 0x200000"); e("s_mov_b32 s71, 0x00020000")
    e("s_and_b32 s73, s73, 0xffff"); e("s_mov_b32 s74, 0x100"); e("s_mov_b32 s75, 0x00020000")
    e(f"v_mov_b32 v{GD+9}, 0")
    e(f"v_mov_b32 v{GD+10}, 1")
    e("s_cmp_ge_u32 s2, 128")
    e("s_cbranch_scc1 L_prep_skip")
    e("L_prep_again:")
    gen_prep_slice()
    e("s_cmp_eq_u32 s95, 0")
    e("s_cbranch_scc1 L_prep_signal0")
    e("s_add_u32 s87, s87, 1")
    e("s_cmp_lt_u32 s87, 64")
    e("s_cbranch_scc1 L_prep_again")
    e("s_waitcnt vmcnt(0)")
    e("s_barrier")
    e("s_branch L_sync_done")
    e("L_prep_signal0:")
    e(f"s_waitcnt vmcnt(0)")
    e("s_barrier")
    e("s_cmp_lg_u32 s24, 0")
    e("s_cbranch_scc1 L_x0")
    e("s_lshl_b32 s36, s88, 6")
    e("s_add_u32 s36, s36, s87")
    e("v_cmp_eq_u32 vcc, 0, v0")
    e("s_and_saveexec_b64 s[66:67], vcc")
    e(f"buffer_store_byte v{GD+10}, v{GD+9}, s[72:75], s36 offen offset:{128 if cfg.DBG else 0} sc1")
    e("s_mov_b64 exec, s[66:67]")
    e("s_branch L_poll_setup")
    e("L_prep_skip:")
    e("s_cmp_lg_u32 s24, 0")
    e("s_cbranch_scc1 L_x0")
    for _ in range(cfg.SLP0 // 64):
        e("s_sleep 64")
    e("L_poll_setup:")
    e("s_lshr_b32 s36, s27, 1")
    e("s_lshl_b32 s36, s36, 6")
    e(f"v_and_b32 v{GD+12}, 15, v0")
    e(f"v_lshlrev_b32 v{GD+12}, 2, v{GD+12}")
    e("s_mov_b32 s89, 0x01010101")
    e("s_memrealtime s[90:91]")
    e("L_poll:")
    e(f"buffer_load_dword v{GD+11}, v{GD+12}, s[72:75], s36 offen offset:{128 if cfg.DBG else 0} sc1")
    e("s_memrealtime s[92:93]")
    e("s_waitcnt vmcnt(0) lgkmcnt(0)")
    e(f"v_cmp_ne_u32 vcc, s89, v{GD+11}")
    e("s_sub_u32 s92, s92, s90")
    e("s_cmp_eq_u64 vcc, 0")
    e("s_cbranch_scc1 L_poll_ok")
    if cfg.SLP: e(f"s_sleep {cfg.SLP}")
    e(f"s_cmp_lt_u32 s92, {cfg.TMO}")
    e("s_cbranch_scc1 L_poll")
    e(f"v_mov_b32 v{GD+9}, 1")
    e("L_poll_ok:")
    e(f"v_mov_b32 v{GD+10}, {LDS_SCR + 256}")
    e(f"ds_write_b32 v{GD+10}, v{GD+9}")
    e("s_waitcnt lgkmcnt(0)")
    e("s_branch L_sync_wait")
    e("L_x0:")
    e(f"v_and_b32 v{vDX}, 63, v0")
    e(f"v_lshlrev_b32 v{vTC}, 6, v{vDX}")
    e(f"v_lshlrev_b32 v{vDX}, 4, v{vDX}")
    e("s_sub_u32 s36, s24, 1")
    e("s_mul_i32 s38, s36, 11")
    e("s_add_u32 s39, s38, 11")
    e("s_min_u32 s39, s39, 32")
    e("s_lshl_b32 s37, s26, 19")
    e("L_x0_loop:")
    e(f"s_mul_i32 s40, s38, {RS}")
    e("s_mov_b32 m0, s40")
    e("s_lshl_b32 s40, s38, 11")
    e("s_add_u32 s40, s40, s37")
    e(f"buffer_load_dwordx4 v{vDX}, s[12:15], s40 offen lds")
    e(f"buffer_load_dwordx4 v{vDX}, s[12:15], s40 offen offset:1024 lds")
    e("s_add_u32 s38, s38, 1")
    e("s_cmp_lt_u32 s38, s39")
    e("s_cbranch_scc1 L_x0_loop")
    e(f"s_mov_b32 m0, {LDS_SCR}")
    e("s_lshl_b32 s40, s27, 14")
    e("s_add_u32 s40, s40, s37")
    e("s_lshl_b32 s38, s36, 12")
    e("s_add_u32 s40, s40, s38")
    for tb in range(1, cfg.TD):
        e(f"s_add_u32 s38, s40, {tb * 0x10000}")
        e(f"buffer_load_dword v{vTC}, s[12:15], s38 offen lds")
        e(f"s_add_u32 s38, s40, {tb * 0x10000 + 4096}")
        e(f"buffer_load_dword v{vTC}, s[12:15], s38 offen lds")
    e("L_sync_wait:")
    if cfg.PROF:
        e("s_memrealtime s[58:59]")
        e("s_waitcnt lgkmcnt(0)")
        e("s_mov_b32 s100, s58")
    e("s_barrier")
    e(f"v_mov_b32 v{GD+10}, {LDS_SCR + 256}")
    e(f"ds_read_b32 v{GD+9}, v{GD+10}")
    e("s_waitcnt lgkmcnt(0)")
    e(f"v_readfirstlane_b32 s95, v{GD+9}")
    e("s_mov_b32 s87, 0")
    e("s_lshr_b32 s88, s27, 1")
    e("s_cmp_lg_u32 s95, 0")
    e("s_cbranch_scc1 L_prep_again")
    e("L_sync_done:")
    if cfg.DBG:
        e("s_memrealtime s[100:101]")
    if cfg.PROF:
        e("s_memtime s[54:55]")
        e("s_memrealtime s[60:61]")
        e("s_waitcnt lgkmcnt(0)")
        e("s_sub_u32 s53, s54, s48")
        e("s_mov_b32 s101, s60")
    T = GD
    TT = ACC
    e(f"v_and_b32 v{T}, 63, v0")
    e(f"v_lshlrev_b32 v{TT+0}, 2, v{T}")
    e(f"v_lshlrev_b32 v{TT+1}, 10, v{T}")
    e(f"v_lshlrev_b32 v{vDX}, 4, v{T}")
    for j in range(2):
        e("s_lshl_b32 s36, s28, 9")
        e(f"s_add_u32 s36, s36, {WS_CNT + j*256:#x}")
        vm_issue("ent", f"buffer_load_dword v{TT+4+12*j}, v{TT+0}, s[20:23], s36 offen sc1")
        e("s_lshl_b32 s36, s28, 17")
        e(f"s_add_u32 s36, s36, {WS_ENT + j*0x10000:#x}")
        vm_issue("ent", f"buffer_load_dwordx4 v[{TT+8+12*j}:{TT+11+12*j}], v{TT+1}, s[20:23], s36 offen sc1")
        vm_issue("ent", f"buffer_load_dwordx4 v[{TT+12+12*j}:{TT+15+12*j}], v{TT+1}, s[20:23], s36 offen offset:16 sc1")
    e(f"v_and_b32 v{T+1}, 31, v0")
    e(f"v_bfe_u32 v{T+2}, v0, 5, 1")
    e(f"v_and_b32 v{T+3}, 0x13, v{T+1}")
    e(f"v_bfe_u32 v{T+4}, v{T+1}, 2, 1")
    e(f"v_lshl_or_b32 v{T+3}, v{T+4}, 3, v{T+3}")
    e(f"v_bfe_u32 v{T+4}, v{T+1}, 3, 1")
    e(f"v_lshl_or_b32 v{T+3}, v{T+4}, 2, v{T+3}")
    e(f"v_lshlrev_b32 v{T+3}, 1, v{T+3}")
    e("s_lshl_b32 s36, s28, 7")
    vm_issue("bias", f"buffer_load_ushort v{BIA}, v{T+3}, s[44:47], s36 offen")
    vm_issue("bias", f"buffer_load_ushort v{BIA+4}, v{T+3}, s[44:47], s36 offen offset:64")
    e("s_lshl_b32 s36, s28, 13")
    e(f"s_add_u32 s36, s36, {WS_WI:#x}")
    for j in range(2):
        for u in range(4):
            b = IDX + j * 16 + u * 4
            if j == 1 and u == 0:
                e("s_add_u32 s36, s36, 0x1000")
            vm_issue("W", f"buffer_load_dwordx4 v[{b}:{b+3}], v{vDX}, s[20:23], s36 offen offset:{u*1024} sc1")
    e("s_lshl_b32 s42, s28, 16")
    e(f"s_add_u32 s42, s42, {WS_WA:#x}")
    e("s_add_u32 s43, s42, 0x8000")
    def w_loads(s0, s1):
        for s in range(s0, s1):
            if s % 4 == 0 and s:
                e("s_add_u32 s42, s42, 0x1000")
                e("s_add_u32 s43, s43, 0x1000")
            for j in range(2):
                vm_issue("W", f"buffer_load_dwordx4 {A(j,s)}, v{vDX}, s[20:23], s{42+j} offen offset:{(s%4)*1024} sc1")
    w_loads(0, 12)
    e(f"v_mul_u32_u24 v{vRB}, {RS}, v{T+1}")
    e(f"v_lshl_add_u32 v{vLB}, v{T+2}, 4, v{vRB}")
    e(f"v_lshrrev_b32 v{T+6}, 3, v{T}")
    e(f"v_and_b32 v{T+7}, 7, v{T}")
    e(f"v_lshlrev_b32 v{vST}, 11, v{T+6}")
    e(f"v_lshl_add_u32 v{vST}, v{T+7}, 4, v{vST}")
    e(f"s_mul_i32 s38, s24, {32*TRS}")
    e(f"s_add_u32 s38, s38, {LDS_TR}")
    e(f"v_mul_u32_u24 v{vTR}, {TRS}, v{T+6}")
    e(f"v_lshl_add_u32 v{vTR}, v{T+7}, 4, v{vTR}")
    e(f"v_add_u32 v{vTR}, s38, v{vTR}")
    e(f"v_mul_u32_u24 v{vTW}, {TRS}, v{T+1}")
    e(f"v_lshl_add_u32 v{vTW}, v{T+2}, 4, v{vTW}")
    e(f"v_add_u32 v{vTW}, s38, v{vTW}")
    e(f"v_lshlrev_b32 v{vTC}, 6, v{T}")
    e(f"v_lshlrev_b32 v{T+3}, 3, v{T+2}")
    e(f"s_mul_i32 s35, s24, {8*RS}")
    e(f"s_add_u32 s36, s35, {BUF1}")
    e(f"v_add_u32 v{TT+2}, s36, v{vDX}")
    e(f"v_add_u32 v{TT+3}, s38, v{vDX}")
    Z = TT + 28
    for i in range(4):
        e(f"v_mov_b32 v{Z+i}, 0")
    e(f"v_mov_b32 v{TT+32}, {PADOFF | (PADOFF << 16):#x}")
    e(f"v_add_u32 v{TT+33}, s38, v{TT+0}")
    for j in range(2):
        for c in range(RCH):
            e(f"ds_write_b128 v{TT+2}, v[{Z}:{Z+3}] offset:{(4*j + (c>>1))*RS + (c&1)*1024}")
        e(f"ds_write_b128 v{TT+3}, v[{Z}:{Z+3}] offset:{j*1024}")
    e(f"ds_write_b32 v{TT+33}, v{TT+32} offset:2048")
    e(f"v_mov_b32 v{T+6}, 0x3f803f80")
    e(f"v_mov_b32 v{T+7}, 0x3f803f80")
    e(f"ds_write_b64 v{vRB}, v[{T+6}:{T+7}] offset:{PADOFF}")
    e(f"ds_write_b64 v{vRB}, v[{T+6}:{T+7}] offset:{BUF1+PADOFF}")
    wait(vtag="ent")
    C = TT + 34; S = TT + 35; E = TT + 36; t = TT + 37
    e("s_mov_b32 s58, 0")
    e(f"s_add_u32 s59, s35, {BUF1}")
    e("s_mov_b32 s60, s38")
    e(f"s_add_u32 s61, s38, 2048")
    e("L_bj:")
    e("s_set_gpr_idx_on s58, 0x1")
    e("s_nop 0")
    e(f"v_mov_b32 v{C}, v{TT+4}")
    e("s_set_gpr_idx_off")
    e(f"v_mov_b32 v{S}, v{C}")
    e(f"v_cmp_lt_u32 vcc, 8, v{C}")
    for sh in (1, 2, 4, 8):
        e("s_nop 0")
        e(f"v_add_u32_dpp v{S}, v{S}, v{S} row_shr:{sh} row_mask:0xf bank_mask:0xf bound_ctrl:0")
        e("s_nop 0")
    e("s_nop 0")
    e(f"v_add_u32_dpp v{S}, v{S}, v{S} row_bcast:15 row_mask:0xa bank_mask:0xf")
    e("s_nop 1")
    e(f"v_add_u32_dpp v{S}, v{S}, v{S} row_bcast:31 row_mask:0xc bank_mask:0xf")
    e("s_nop 1")
    e(f"v_readlane_b32 s36, v{S}, 63")
    e(f"v_sub_u32 v{S}, v{S}, v{C}")
    e("s_cmp_lg_u64 vcc, 0")
    e("s_cselect_b32 s62, 1, 0")
    e(f"s_cmp_gt_u32 s36, {8*RCH}")
    e("s_cselect_b32 s62, 1, s62")
    e("s_add_u32 s36, s36, 7")
    e("s_lshr_b32 s36, s36, 3")
    e("s_cmp_eq_u32 s62, 0")
    e("s_cselect_b32 s36, s36, 0")
    e("s_cmp_eq_u32 s58, 0")
    e("s_cselect_b32 s30, s36, s30")
    e("s_cselect_b32 s64, s62, s64")
    e("s_mov_b32 s31, s36")
    e("s_mov_b32 s65, s62")
    e("s_cmp_lg_u32 s62, 0")
    e("s_cbranch_scc1 L_bj_next")
    e("s_mov_b32 s63, 0")
    e("L_be:")
    e(f"v_cmp_lt_u32 vcc, s63, v{C}")
    e("s_and_saveexec_b64 s[66:67], vcc")
    e("s_cbranch_execz L_be_done")
    e("s_add_u32 s36, s58, s63")
    e("s_set_gpr_idx_on s36, 0x1")
    e("s_nop 0")
    e(f"v_mov_b32 v{E}, v{TT+8}")
    e("s_set_gpr_idx_off")
    e(f"v_add_u32 v{t}, s63, v{S}")
    e(f"v_lshrrev_b32 v{t+1}, 3, v{t}")
    e(f"v_bfe_u32 v{t+2}, v{t}, 2, 1")
    e(f"v_and_b32 v{t+3}, 3, v{t}")
    e(f"v_lshrrev_b32 v{t+4}, 26, v{E}")
    e(f"v_lshl_add_u32 v{t+4}, v{t+2}, 5, v{t+4}")
    e(f"v_lshlrev_b32 v{t+4}, 4, v{t+4}")
    e(f"v_lshrrev_b32 v{t+5}, 1, v{t+1}")
    e(f"v_and_b32 v{t+6}, 1, v{t+1}")
    e(f"v_mul_u32_u24 v{t+7}, {RS}, v{t+5}")
    e(f"v_lshl_add_u32 v{t+7}, v{t+6}, 10, v{t+7}")
    e(f"v_add3_u32 v{t+7}, v{t+7}, v{t+4}, s59")
    e(f"v_lshl_add_u32 v{t+7}, v{t+3}, 2, v{t+7}")
    e(f"ds_write_b16 v{t+7}, v{E}")
    e(f"v_lshl_add_u32 v{t+8}, v{t+5}, 2, v{t+4}")
    e(f"v_add_u32 v{t+8}, s60, v{t+8}")
    e(f"v_lshlrev_b32 v{t+9}, 4, v{t+6}")
    e(f"v_lshl_add_u32 v{t+9}, v{t+3}, 2, v{t+9}")
    e(f"v_bfe_u32 v{t+10}, v{E}, 24, 2")
    e(f"v_lshlrev_b32 v{t+10}, v{t+9}, v{t+10}")
    e(f"ds_or_b32 v{t+8}, v{t+10}")
    e(f"v_lshlrev_b32 v{t+8}, 4, v{t+1}")
    e(f"v_bfe_u32 v{t+9}, v{t}, 1, 1")
    e(f"v_lshl_add_u32 v{t+8}, v{t+9}, 3, v{t+8}")
    e(f"v_lshl_add_u32 v{t+8}, v{t+2}, 2, v{t+8}")
    e(f"v_and_b32 v{t+9}, 1, v{t}")
    e(f"v_lshl_add_u32 v{t+8}, v{t+9}, 1, v{t+8}")
    e(f"v_add_u32 v{t+8}, s61, v{t+8}")
    e(f"v_bfe_u32 v{t+10}, v{E}, 16, 8")
    e(f"v_lshlrev_b32 v{t+10}, 3, v{t+10}")
    e(f"ds_write_b16 v{t+8}, v{t+10}")
    e("s_mov_b64 exec, s[66:67]")
    e("s_add_u32 s63, s63, 1")
    e("s_cmp_lt_u32 s63, 8")
    e("s_cbranch_scc1 L_be")
    e("L_be_done:")
    e("s_mov_b64 exec, s[66:67]")
    e("L_bj_next:")
    e("s_add_u32 s58, s58, 12")
    e(f"s_add_u32 s59, s59, {4*RS}")
    e("s_add_u32 s60, s60, 1024")
    e("s_add_u32 s61, s61, 128")
    e("s_cmp_lt_u32 s58, 24")
    e("s_cbranch_scc1 L_bj")
    e(f"v_add_u32 v{TT+33}, s38, v{T+3}")
    for j in range(2):
        for c in range(RCH):
            b = RAF + (j * RCH + c) * 4
            e(f"ds_read_b128 v[{b}:{b+3}], v{TT+2} offset:{(4*j + (c>>1))*RS + (c&1)*1024}")
            b = RPK + (j * RCH + c) * 2
            e(f"ds_read_b64 v[{b}:{b+1}], v{TT+33} offset:{2048 + j*128 + c*16}")
        e(f"ds_read_b128 v[{RIX+j*4}:{RIX+j*4+3}], v{TT+3} offset:{j*1024}")
    w_loads(12, 32)
    e("s_lshl_b32 s37, s26, 19")
    e("s_lshl_b32 s33, s24, 14")
    e("s_add_u32 s37, s37, s33")
    e("s_add_u32 s37, s37, 0x10000")
    e("s_lshl_b32 s41, s26, 19")
    e("s_lshl_b32 s33, s27, 14")
    e("s_add_u32 s41, s41, s33")
    e("s_lshl_b32 s33, s24, 12")
    e("s_add_u32 s41, s41, s33")
    e(f"s_add_u32 s41, s41, {cfg.TD * 0x10000}")
    e("s_lshl_b32 s33, s26, 19")
    e("s_lshl_b32 s36, s28, 7")
    e("s_add_u32 s33, s33, s36")
    e("s_mov_b32 s34, 0x40000000")
    e("s_mov_b32 s39, 0")
    e(f"s_mov_b32 s29, {BUF1}")
    e(f"s_add_u32 s32, s35, {BUF1}")
    wait(vtag="bias")
    e(f"v_cmp_eq_u32 vcc, 0, v{T+2}")
    for i in (1, 2, 3, 5, 6, 7):
        e(f"v_mov_b32 v{BIA+i}, 0")
    e(f"v_cndmask_b32 v{BIA}, 0, v{BIA}, vcc")
    e(f"v_cndmask_b32 v{BIA+4}, 0, v{BIA+4}, vcc")
    e(f"v_mov_b32 v{ONE}, 0x3f80")
    for i in (1, 2, 3):
        e(f"v_mov_b32 v{ONE+i}, 0")
    e("s_waitcnt vmcnt(0) lgkmcnt(0)")
    e("s_barrier")
    if cfg.PROF:
        e("s_memtime s[50:51]")
        e("s_waitcnt lgkmcnt(0)")
    if cfg.DBG:
        e("s_memrealtime s[50:51]")
        e("s_waitcnt lgkmcnt(0)")
    vm.clear()

    def init_acc(j):
        return f"v_mfma_f32_32x32x16_bf16 {acc(j)}, v[{BIA+4*j}:{BIA+4*j+3}], v[{ONE}:{ONE+3}], 0"

    def b_reads(s):
        b = bf(s)
        base = 64 * s
        return [("ds", ("B", s), f"ds_read_b128 v[{b}:{b+3}], v{vLB} offset:{base}"),
                ("ds", ("B", s), f"ds_read_b128 v[{b+4}:{b+7}], v{vLB} offset:{base+32}")]

    def g_items(j, c, gs, tag):
        r = []
        pk = RPK + (j * RCH + c) * 2
        for pb in range(4):
            d = GD + gs * 8 + 2 * pb
            r.append(("raw", f"v_add_u32_sdwa v{d}, v{vRB}, v{pk + (pb>>1)} dst_sel:DWORD dst_unused:UNUSED_PAD src0_sel:DWORD src1_sel:WORD_{pb&1}"))
        for pb in range(4):
            d = GD + gs * 8 + 2 * pb
            r.append(("ds", tag, f"ds_read_b64 v[{d}:{d+1}], v{d}"))
        return r

    uid = [0]
    def gather_block(j, c, gs):
        uid[0] += 1
        lbl = f"L_g{uid[0]}"
        e(f"s_cmp_le_u32 s{30+j}, {c}")
        e(f"s_cbranch_scc1 {lbl}")
        for it in g_items(j, c, gs, None):
            e(it[-1])
        e(f"{lbl}:")
        ds.append(("Gmark", j, c))
    def mfma_block(j, c, gs):
        cond = c >= RU
        if cond:
            uid[0] += 1
            lbl = f"L_m{uid[0]}"
            e(f"s_cmp_le_u32 s{30+j}, {c}")
            e(f"s_cbranch_scc1 {lbl}")
            wait(dtag=("Gmark", j, c))
        else:
            wait(dtag=("G", j, c))
        ra = RAF + (j * RCH + c) * 4
        e(f"v_smfmac_f32_32x32x32_bf16 {acc(j)}, v[{ra}:{ra+3}], v[{GD+gs*8}:{GD+gs*8+7}], v{RIX + j*4 + (c>>1)}" + (" abid:1" if c & 1 else ""))
        if cond:
            e(f"{lbl}:")

    def emit_items(items):
        for x in items:
            if x[0] == "raw": e(x[1])
            elif x[0] == "ds": ds_issue(x[1], x[2])
            elif x[0] == "vm": vm_issue(x[1], x[2])
            elif x[0] == "G": gather_block(*x[1:])
            elif x[0] == "M": mfma_block(*x[1:])
            elif x[0] == "W": wait(dtag=x[1])
            else: raise Exception(x)

    def epilogue_items():
        wr = [("ds", "tw", f"ds_write_b128 v{vTW}, v[{EP+4*i}:{EP+4*i+3}] offset:{32*i}") for i in range(4)]
        rb = []; st = []
        for i in range(4):
            a = EP + 4 * i
            rb.append(("ds", ("tr", i), f"ds_read_b128 v[{a}:{a+3}], v{vTR} offset:{i*8*TRS}"))
            st.append(("W", ("tr", i)))
            st.append(("raw", f"s_add_u32 s38, s34, {i*8*2048}"))
            st.append(("vm", "st", f"buffer_store_dwordx4 v[{a}:{a+3}], v{vST}, s[16:19], s38 offen" + ["", " nt", " sc1", " sc0 sc1", " sc1 nt"][cfg.STM]))
        return wr, rb, st

    e(init_acc(0))
    e(init_acc(1))
    for s in range(PD):
        emit_items(b_reads(s))

    e("L_loop:")
    rq = []
    def at(g, items):
        for it in items:
            rq.append((g, it))
    order = [(j, c) for c in range(RCH) for j in range(2)] if not cfg.NORES else []
    for z, (j, c) in enumerate(order):
        g0 = int(min(cfg.RPER, (2 * (32 - PD) - 1 - cfg.RLAT) * 10 // 15) * z / 10)
        if c >= RU:
            at(g0, [("G", j, c, z & 1)])
        else:
            gi = g_items(j, c, z & 1, ("G", j, c))
            at(g0, gi[:4]); at(g0 + 1, gi[4:])
        at(g0 + cfg.RLAT, [("M", j, c, z & 1)])
    if not cfg.NODMA:
        for r in range(8):
            at(cfg.DGS * r, [("raw", f"s_add_u32 m0, s32, {r*RS}"), ("raw", f"s_add_u32 s36, s40, {r*2048}"),
                             ("vm", "Xn", f"buffer_load_dwordx4 v{vDX}, s[12:15], s36 offen lds")])
            at(cfg.DGS * r + cfg.DGS // 2, [("vm", "Xn", f"buffer_load_dwordx4 v{vDX}, s[12:15], s36 offen offset:1024 lds")])
        at(cfg.DGS * 8, [("raw", f"s_mov_b32 m0, {LDS_SCR}"), ("raw", "s_nop 0"), ("vm", "touch", f"buffer_load_dword v{vTC}, s[12:15], s42 offen lds")])
    if not cfg.NOEPI:
        wr, rb, st = epilogue_items()
        for i in range(4):
            at(1 + 2 * i, [wr[i]])
        at(11, rb[:2]); at(13, rb[2:])
        for i in range(4):
            at(19 + 2 * i, st[3*i:3*i+3])
    rq.sort(key=lambda t: t[0])
    def fill(gap):
        while rq and rq[0][0] <= gap:
            emit_items([rq.pop(0)[1]])

    e("s_cmp_lt_u32 s39, 7")
    e("s_cselect_b32 s40, s37, 0x40000000")
    e(f"s_cmp_lt_u32 s39, {8 - cfg.TD}")
    e("s_cselect_b32 s42, s41, 0x40000000")
    for s in range(32):
        wait(dtag=("B", s))
        e(f"v_smfmac_f32_32x32x32_bf16 {acc(0)}, {A(0,s)}, v[{bf(s)}:{bf(s)+7}], v{IDX + (s>>1)}" + (" abid:1" if s & 1 else ""))
        sn = s + PD
        rd = b_reads(sn) if sn < 32 else []
        emit_items(rd[:1])
        fill(2 * s)
        e(f"v_smfmac_f32_32x32x32_bf16 {acc(1)}, {A(1,s)}, v[{bf(s)}:{bf(s)+7}], v{IDX + 16 + (s>>1)}" + (" abid:1" if s & 1 else ""))
        emit_items(rd[1:])
        fill(2 * s + 1)
        if s == 32 - PD - 1:
            assert not rq, len(rq)
            e("s_or_b32 s36, s64, s65")
            e("s_cbranch_scc0 L_sp_end")
            e(f"v_lshrrev_b32 v{GD+13}, 4, v{vDX}")
            for r in (2, 3, 4, 5, 6, 7, 9, 10, 11):
                e(f"v_mov_b32 v{GD+r}, 0")
            e("s_mov_b32 s58, 0")
            e("L_sp_kr:")
            e("s_cmp_lt_u32 s58, 64")
            e("s_cselect_b32 s36, s64, s65")
            e("s_cmp_eq_u32 s36, 0")
            e("s_cbranch_scc1 L_sp_nx")
            e("s_lshl_b32 s59, s28, 7")
            e("s_add_u32 s59, s59, s58")
            e("s_lshl_b32 s60, s59, 2")
            e(f"buffer_load_dword v{GD+15}, v{GD+9}, s[20:23], s60 offen offset:{WS_CNT} sc1")
            e("s_lshl_b32 s59, s59, 10")
            e(f"s_add_u32 s59, s59, {WS_ENT:#x}")
            e("s_waitcnt vmcnt(0)")
            e(f"v_readfirstlane_b32 s60, v{GD+15}")
            e("s_nop 3")
            e("s_cmp_eq_u32 s60, 0")
            e("s_cbranch_scc1 L_sp_nx")
            e("L_sp_e:")
            e(f"buffer_load_dword v{GD+15}, v{GD+9}, s[20:23], s59 offen sc1")
            e("s_waitcnt vmcnt(0)")
            e(f"v_readfirstlane_b32 s62, v{GD+15}")
            e("s_nop 3")
            e("s_lshr_b32 s63, s62, 26")
            e(f"v_cmp_eq_u32 vcc, s63, v{GD+13}")
            e("s_and_b32 s63, s62, 0xffff")
            e(f"v_mov_b32 v{GD+14}, s63")
            e("s_bfe_u32 s63, s62, 0x80010")
            e("s_lshl_b32 s63, s63, 3")
            e(f"v_add_u32 v{GD}, s63, v{vRB}")
            e(f"v_cndmask_b32 v{GD+8}, 0, v{GD+14}, vcc")
            e("s_bfe_u32 s63, s62, 0x20018")
            e(f"v_mov_b32 v{GD+12}, s63")
            e(f"ds_read_b64 v[{GD}:{GD+1}], v{GD}")
            e("s_waitcnt lgkmcnt(0)")
            e("s_cmp_lt_u32 s58, 64")
            e("s_cbranch_scc0 L_sp_j1")
            e(f"v_smfmac_f32_32x32x32_bf16 {acc(0)}, v[{GD+8}:{GD+11}], v[{GD}:{GD+7}], v{GD+12}")
            e("s_branch L_sp_jd")
            e("L_sp_j1:")
            e(f"v_smfmac_f32_32x32x32_bf16 {acc(1)}, v[{GD+8}:{GD+11}], v[{GD}:{GD+7}], v{GD+12}")
            e("L_sp_jd:")
            e("s_add_u32 s59, s59, 4")
            e("s_sub_u32 s60, s60, 1")
            e("s_cmp_lg_u32 s60, 0")
            e("s_nop 4")
            e("s_cbranch_scc1 L_sp_e")
            e("L_sp_nx:")
            e("s_add_u32 s58, s58, 1")
            e("s_cmp_lt_u32 s58, 128")
            e("s_cbranch_scc1 L_sp_kr")
            e("L_sp_end:")
        if sn >= 32:
            if sn == 32:
                if cfg.PROF:
                    e("s_memtime s[54:55]")
                if cfg.NODMA:
                    e("s_waitcnt lgkmcnt(0)")
                else:
                    e(f"s_waitcnt vmcnt({min(vm_n('Xn'),63)}) lgkmcnt(0)")
                e("s_barrier")
                if cfg.PROF:
                    e("s_memtime s[56:57]")
                    e("s_waitcnt lgkmcnt(0)")
                    e("s_sub_u32 s56, s56, s54")
                    e("s_add_u32 s52, s52, s56")
                e(f"v_add_u32 v{vLB}, s29, v{vLB}")
                e(f"v_add_u32 v{vRB}, s29, v{vRB}")
                e("s_sub_u32 s32, s32, s29")
                e("s_sub_u32 s29, 0, s29")
            emit_items(b_reads(sn - 32))
    e("s_mov_b32 s34, s33")
    e("s_add_u32 s33, s33, 0x10000")
    e("s_add_u32 s37, s37, 0x10000")
    e("s_add_u32 s41, s41, 0x10000")
    e("s_add_u32 s39, s39, 1")
    e("s_cmp_lt_u32 s39, 8")
    e("s_nop 3")
    for i in range(8):
        e(f"v_cvt_pk_bf16_f32 v{EP+i}, v{ACC+2*i}, v{ACC+2*i+1}")
    e(init_acc(0))
    e("s_nop 2")
    for i in range(8):
        e(f"v_cvt_pk_bf16_f32 v{EP+8+i}, v{ACC+16+2*i}, v{ACC+16+2*i+1}")
    e(init_acc(1))
    e("s_cbranch_scc1 L_loop")
    wr, rb, st = epilogue_items()
    emit_items(wr); emit_items(rb); emit_items(st)
    if cfg.PROF:
        e("s_memtime s[54:55]")
        e("s_memrealtime s[98:99]")
        e("s_waitcnt lgkmcnt(0)")
        e("s_sub_u32 s56, s50, s48")
        e("s_sub_u32 s57, s54, s50")
        e("s_sub_u32 s48, s98, s96")
        e("s_nop 4")
        e(f"v_mov_b32 v{GD}, s56")
        e(f"v_mov_b32 v{GD+1}, s52")
        e(f"v_mov_b32 v{GD+2}, s57")
        e(f"v_mov_b32 v{GD+3}, s48")
        e("s_lshl_b32 s36, s2, 2")
        e("s_add_u32 s36, s36, s24")
        e("s_lshl_b32 s36, s36, 4")
        e("s_add_u32 s36, s36, 0x8000000")
        e(f"v_mov_b32 v{GD+8}, 0")
        e(f"v_mov_b32 v{GD+4}, 0")
        e(f"v_mov_b32 v{GD+5}, 0")
        e(f"v_mov_b32 v{GD+6}, s53")
        e(f"v_mov_b32 v{GD+7}, 0")
        e(f"buffer_store_dwordx4 v[{GD}:{GD+3}], v{GD+8}, s[20:23], s36 offen")
        e("s_add_u32 s36, s36, 0x100000")
        e(f"buffer_store_dwordx4 v[{GD+4}:{GD+7}], v{GD+8}, s[20:23], s36 offen")
        e("s_nop 2")
        e(f"v_mov_b32 v{GD+4}, s96")
        e(f"v_mov_b32 v{GD+5}, s100")
        e(f"v_mov_b32 v{GD+6}, s101")
        e(f"v_mov_b32 v{GD+7}, s98")
        e("s_add_u32 s36, s36, 0x100000")
        e(f"buffer_store_dwordx4 v[{GD+4}:{GD+7}], v{GD+8}, s[20:23], s36 offen")
    if cfg.DBG:
        e("s_memrealtime s[56:57]")
        e("s_waitcnt vmcnt(0)")
        e("s_memrealtime s[98:99]")
        e("s_waitcnt lgkmcnt(0)")
        e("s_sub_u32 s98, s98, s96")
        e("s_sub_u32 s100, s100, s96")
        e("s_sub_u32 s50, s50, s96")
        e("s_sub_u32 s56, s56, s96")
        e(f"v_mov_b32 v{GD}, s100")
        e(f"v_mov_b32 v{GD+1}, s50")
        e(f"v_mov_b32 v{GD+2}, s56")
        e(f"v_mov_b32 v{GD+3}, s98")
        e(f"v_mov_b32 v{GD+4}, 0")
        e("s_and_b32 s36, s2, 63")
        e("s_or_b32 s36, s36, s24")
        e("s_cbranch_scc1 L_main_end")
        e("s_lshr_b32 s36, s2, 6")
        e("s_lshl_b32 s36, s36, 4")
        e(f"v_cmp_eq_u32 vcc, 0, v{vDX}")
        e("s_and_saveexec_b64 s[66:67], vcc")
        e(f"buffer_store_dwordx4 v[{GD}:{GD+3}], v{GD+4}, s[72:75], s36 offen")
    e("L_main_end:")
    e("s_endpgm")


gen_main()

tail = """
.section .rodata,"a"
.p2align 6
.amdhsa_kernel standalone__structured_sparse_n_m__ragged_kernel
  .amdhsa_next_free_vgpr 512
  .amdhsa_next_free_sgpr 102
  .amdhsa_accum_offset 256
  .amdhsa_group_segment_fixed_size 0
  .amdhsa_kernarg_size 48
  .amdhsa_user_sgpr_count 2
  .amdhsa_user_sgpr_kernarg_segment_ptr 1
  .amdhsa_system_sgpr_workgroup_id_x 1
.end_amdhsa_kernel
"""
open(OUT, "w").write(hdr + "\n".join(L) + "\n" + tail)
print("wrote", OUT, len(L), "lines")
```

```python
import sys, os

OUT = os.environ.get("GEN_OUT", "standalone__structured_sparse_n_m__ragged.s")

WS_CNT = 0x0
WS_WI = 0x4000
WS_WA = 0x40000
WS_ENT = 0x200000
WS_FLG = 0x400000
WS_SIZE = 0x10000000

class Cfg:
    NB = 4
    PD = 3
    RCH = 8
    RU = 6
    TD = 2
    RPER = 33
    RLAT = 6
    DGS = 4
    TMO = 20000
    SLP = 32
    SLP0 = 64
    PROF = 0
    XEARLY = 0
    FSH = 7
    SEG = 0
    EW0 = 1
    EWS = 2
    ER0 = 11
    ERS = 1
    ES0 = 19
    ESS = 2
    DG0 = 0
    WSC = 1
    INV = 1
    GSPREAD = 1
    RNOG = 0
    RNOM = 0
    RNOA = 0
    STM = 0
    DBG = 0
    NODMA = 0
    NORES = 0
    NOEPI = 0

cfg = Cfg()
for a in sys.argv[1:]:
    k, v = a.split("=")
    setattr(cfg, k, int(v))

RS = 4144
BUF1 = 2064
PADOFF = 2048
LDS_X = 32 * RS
LDS_TR = LDS_X
TRS = 144
LDS_SCR = LDS_TR + 4 * 32 * TRS
LDS_TOTAL = LDS_SCR + 256 + 16

L = []
def e(s=""):
    L.append("    " + s if s and not s.endswith(":") else s)

hdr = f"""; 2:4 structured-sparse GEMM  out = x @ prune24(w) + b   (B*S=16384, D=1024), bf16
; @launch grid=(256,1,1) block=(256,1,1) lds={LDS_TOTAL}
.amdgcn_target "amdgcn-amd-amdhsa--gfx950"
.text
"""


def gen_prep_slice():
    TBL = {0: 4, 1: 4, 2: 4, 4: 8, 8: 12, 3: 4, 5: 8, 6: 9, 7: 4, 9: 12, 10: 13, 11: 4, 12: 14, 13: 8, 14: 9, 15: 4}
    T64 = 0
    for k, v in TBL.items():
        T64 |= v << (4 * k)
    ET = {7: 1, 11: 2, 13: 2, 14: 2, 15: 3}
    E32 = 0
    for k, v in ET.items():
        E32 |= v << (2 * k)
    R = 64
    def v(n): return f"v{R+n}"
    e(f"v_lshlrev_b32 {v(3)}, 2, v0")
    e("s_lshl_b32 s89, s87, 15")
    e("s_lshl_b32 s90, s88, 10")
    e("s_add_u32 s89, s89, s90")
    D = 8
    for kk in range(0, 16, 2):
        e(f"buffer_load_dword {v(D+kk)}, {v(3)}, s[68:71], s89 offen")
        e(f"buffer_load_dword {v(D+kk+1)}, {v(3)}, s[68:71], s89 offen offset:2048")
        if kk < 14:
            e("s_add_u32 s89, s89, 4096")
    if cfg.XEARLY:
        e("s_cmp_lg_u32 s95, 0")
        e("s_cbranch_scc1 L_prep_nox")
        e("s_lshl_b32 s38, s24, 3")
        e("s_add_u32 s39, s38, 8")
        e("X0LOOP")
        e("L_prep_nox:")
    e("s_mov_b32 s76, 0x7fff7fff")
    e("s_mov_b32 s77, 0x00010001")
    e("s_mov_b32 s78, 0x000f000f")
    e(f"s_mov_b32 s80, {T64 & 0xffffffff:#x}")
    e(f"s_mov_b32 s81, {T64 >> 32:#x}")
    e(f"s_mov_b32 s82, {E32:#x}")
    e("s_mov_b32 s83, 0x05040100")
    e("s_mov_b32 s84, 0x07060302")
    e("s_mov_b32 s85, 0x01000100")
    e("s_mov_b32 s86, 0x0202")
    e(f"v_and_b32 {v(1)}, 15, v0")
    e(f"v_lshrrev_b32 {v(2)}, 4, v0")
    e("s_lshl_b32 s90, s88, 4")
    e(f"v_add_u32 {v(2)}, s90, {v(2)}")
    e(f"v_and_b32 {v(4)}, 9, {v(1)}")
    e(f"v_bfe_u32 {v(5)}, {v(1)}, 1, 1")
    e(f"v_bfe_u32 {v(6)}, {v(1)}, 2, 1")
    e(f"v_lshl_or_b32 {v(4)}, {v(5)}, 2, {v(4)}")
    e(f"v_lshl_or_b32 {v(4)}, {v(6)}, 1, {v(4)}")
    e(f"v_lshlrev_b32 {v(4)}, 1, {v(4)}")
    e(f"v_lshlrev_b32 {v(24)}, 15, {v(2)}")
    e(f"v_lshl_add_u32 {v(24)}, {v(4)}, 4, {v(24)}")
    e(f"v_lshlrev_b32 {v(25)}, 12, {v(2)}")
    e(f"v_lshl_add_u32 {v(25)}, {v(4)}, 4, {v(25)}")
    e("s_lshr_b32 s91, s87, 1")
    e("s_and_b32 s92, s87, 1")
    e("s_lshl_b32 s93, s91, 10")
    e("s_lshl_b32 s92, s92, 9")
    e("s_add_u32 s93, s93, s92")
    e(f"s_add_u32 s93, s93, {WS_WA:#x}")
    e("s_lshr_b32 s94, s91, 3")
    e("s_lshl_b32 s94, s94, 10")
    e("s_add_u32 s94, s94, s92")
    e("s_and_b32 s91, s91, 7")
    e("s_lshl_b32 s91, s91, 1")
    e("s_add_u32 s94, s94, s91")
    e(f"s_add_u32 s94, s94, {WS_WI:#x}")
    e(f"v_mov_b32 {v(36)}, 0")
    e(f"v_mov_b32 {v(37)}, 0")
    e(f"v_mov_b32 {v(38)}, 0")
    e("s_mov_b32 s89, 0")
    if cfg.XEARLY:
        e("s_cmp_lg_u32 s95, 0")
        e("s_cbranch_scc1 L_prep_w0")
        e("s_waitcnt vmcnt(16)")
        e("s_branch L_pg")
        e("L_prep_w0:")
    e("s_waitcnt vmcnt(0)")
    a, b, c, d = 50, 51, 52, 53
    e("L_pg:")
    e("s_set_gpr_idx_on s89, 0x1")
    e("s_nop 0")
    for i in range(4):
        e(f"v_mov_b32 {v(50+i)}, {v(D+i)}")
    e("s_set_gpr_idx_off")
    for i, r in enumerate((a, b, c, d)):
        e(f"v_and_b32 {v(40+i)}, s76, {v(r)}")
    e(f"v_pk_max_u16 {v(44)}, {v(40)}, {v(41)}")
    e(f"v_pk_min_u16 {v(45)}, {v(40)}, {v(41)}")
    e(f"v_pk_max_u16 {v(46)}, {v(42)}, {v(43)}")
    e(f"v_pk_min_u16 {v(47)}, {v(42)}, {v(43)}")
    e(f"v_pk_min_u16 {v(44)}, {v(44)}, {v(46)}")
    e(f"v_pk_max_u16 {v(45)}, {v(45)}, {v(47)}")
    e(f"v_pk_max_u16 {v(44)}, {v(44)}, {v(45)}")
    e(f"v_pk_max_u16 {v(44)}, {v(44)}, s77")
    for i in range(4):
        e(f"v_pk_sub_u16 {v(40+i)}, {v(44)}, {v(40+i)} clamp")
    for i in range(4):
        e(f"v_pk_min_u16 {v(40+i)}, {v(40+i)}, s77")
    e(f"v_lshl_or_b32 {v(40)}, {v(41)}, 1, {v(40)}")
    e(f"v_lshl_or_b32 {v(40)}, {v(42)}, 2, {v(40)}")
    e(f"v_lshl_or_b32 {v(40)}, {v(43)}, 3, {v(40)}")
    e(f"v_xor_b32 {v(40)}, s78, {v(40)}")
    e("s_lshr_b32 s90, s89, 2")
    for ee in range(2):
        sel = 83 + ee
        e(f"v_bfe_u32 {v(41)}, {v(40)}, {16*ee}, 4")
        e(f"v_lshlrev_b32 {v(42)}, 2, {v(41)}")
        e(f"v_lshrrev_b64 v[{R+46}:{R+47}], {v(42)}, s[80:81]")
        e(f"v_and_b32 {v(46)}, 15, {v(46)}")
        e(f"v_lshl_or_b32 {v(36+ee)}, {v(46)}, s89, {v(36+ee)}")
        e(f"v_perm_b32 {v(48)}, {v(b)}, {v(a)}, s{sel}")
        e(f"v_perm_b32 {v(49)}, {v(d)}, {v(c)}, s{sel}")
        e(f"v_and_b32 {v(47)}, 3, {v(46)}")
        e(f"v_lshrrev_b32 {v(46)}, 2, {v(46)}")
        e(f"v_lshl_or_b32 {v(46)}, {v(46)}, 16, {v(47)}")
        e(f"v_mov_b32 {v(47)}, s85")
        e(f"v_mad_u32_u24 {v(46)}, {v(46)}, s86, {v(47)}")
        e(f"v_perm_b32 {v(54+ee)}, {v(49)}, {v(48)}, {v(46)}")
        e(f"v_lshlrev_b32 {v(42)}, 1, {v(41)}")
        e(f"v_lshrrev_b32 {v(43)}, {v(42)}, s82")
        e(f"v_and_b32 {v(43)}, 3, {v(43)}")
        if ee:
            e(f"v_lshlrev_b32 {v(43)}, 2, {v(43)}")
        e(f"v_lshl_or_b32 {v(38)}, {v(43)}, s89, {v(38)}")
    e("s_set_gpr_idx_on s90, 0x8")
    e("s_nop 0")
    e(f"v_mov_b32 {v(28)}, {v(54)}")
    e(f"v_mov_b32 {v(32)}, {v(55)}")
    e("s_set_gpr_idx_off")
    e("s_add_u32 s89, s89, 4")
    e("s_cmp_lt_u32 s89, 16")
    e("s_cbranch_scc1 L_pg")
    e(f"buffer_store_dwordx4 v[{R+28}:{R+31}], {v(24)}, s[20:23], s93 offen sc1")
    e(f"buffer_store_dwordx4 v[{R+32}:{R+35}], {v(24)}, s[20:23], s93 offen offset:16 sc1")
    e(f"buffer_store_short {v(36)}, {v(25)}, s[20:23], s94 offen sc1")
    e(f"buffer_store_short {v(37)}, {v(25)}, s[20:23], s94 offen offset:16 sc1")
    e(f"v_bcnt_u32_b32 {v(39)}, {v(38)}, 0")
    e(f"v_mov_b32 {v(40)}, {v(39)}")
    e("s_nop 1")
    for sh in (1, 2, 4, 8):
        e(f"v_add_u32_dpp {v(40)}, {v(40)}, {v(40)} row_shr:{sh} row_mask:0xf bank_mask:0xf bound_ctrl:0")
        e("s_nop 1")
    e(f"v_lshlrev_b32 {v(41)}, 8, {v(2)}")
    e("s_lshl_b32 s89, s87, 2")
    e(f"v_cmp_eq_u32 vcc, 15, {v(1)}")
    e("s_and_saveexec_b64 s[66:67], vcc")
    e(f"buffer_store_dword {v(40)}, {v(41)}, s[20:23], s89 offen offset:{WS_CNT} sc1")
    e("s_mov_b64 exec, s[66:67]")
    e(f"v_sub_u32 {v(40)}, {v(40)}, {v(39)}")
    e(f"v_lshlrev_b32 {v(41)}, 16, {v(2)}")
    e("s_lshl_b32 s93, s87, 10")
    e(f"s_add_u32 s93, s93, {WS_ENT:#x}")
    e("s_mov_b32 s89, 0")
    e("L_pe:")
    e(f"v_cmp_ne_u32 vcc, 0, {v(38)}")
    e("s_cbranch_vccz L_pe_done")
    e(f"v_and_b32 {v(42)}, 1, {v(38)}")
    e(f"v_cmp_ne_u32 vcc, 0, {v(42)}")
    e("s_and_saveexec_b64 s[66:67], vcc")
    e("s_cbranch_execz L_pe_next")
    e("s_and_b32 s90, s89, 12")
    e("s_and_b32 s91, s89, 1")
    e("s_add_u32 s92, s90, s91")
    e("s_set_gpr_idx_on s92, 0x1")
    e("s_nop 0")
    e(f"v_mov_b32 {v(43)}, {v(D+2)}")
    e("s_set_gpr_idx_off")
    e("s_bfe_u32 s92, s89, 0x10001")
    e("s_lshl_b32 s94, s92, 4")
    e(f"v_lshrrev_b32 {v(43)}, s94, {v(43)}")
    e(f"v_and_b32 {v(43)}, 0xffff, {v(43)}")
    e("s_lshl_b32 s94, s87, 18")
    e("s_lshl_b32 s90, s90, 14")
    e("s_add_u32 s94, s94, s90")
    e("s_add_u32 s91, s91, 2")
    e("s_lshl_b32 s91, s91, 24")
    e("s_add_u32 s94, s94, s91")
    e("s_lshl_b32 s92, s92, 26")
    e("s_add_u32 s94, s94, s92")
    e(f"v_or_b32 {v(43)}, s94, {v(43)}")
    e(f"v_lshl_add_u32 {v(43)}, {v(4)}, 26, {v(43)}")
    e(f"v_lshl_add_u32 {v(42)}, {v(40)}, 2, {v(41)}")
    e(f"buffer_store_dword {v(43)}, {v(42)}, s[20:23], s93 offen sc1")
    e(f"v_add_u32 {v(40)}, 1, {v(40)}")
    e("L_pe_next:")
    e("s_mov_b64 exec, s[66:67]")
    e(f"v_lshrrev_b32 {v(38)}, 1, {v(38)}")
    e("s_add_u32 s89, s89, 1")
    e("s_branch L_pe")
    e("L_pe_done:")


def gen_main():
    NB, PD, RCH, RU = cfg.NB, cfg.PD, cfg.RCH, cfg.RU
    nxt = [1]
    def alloc(n, align=1):
        while nxt[0] % align:
            nxt[0] += 1
        r = nxt[0]
        nxt[0] += n
        return r
    vTW = 0
    vLB = alloc(1); vRB = alloc(1); vDX = alloc(1); vST = alloc(1); vTC = alloc(1); vTR = alloc(1)
    IDX = alloc(32, 4)
    ACC = alloc(32, 4)
    EP = alloc(16, 4)
    BF = alloc(8 * NB, 4)
    BIA = alloc(8, 4)
    ONE = alloc(4, 4)
    RAF = alloc(2 * RCH * 4, 4)
    RIX = alloc(2 * RCH // 2, 4)
    RPK = alloc(2 * RCH * 2, 4)
    GD = alloc(16, 4)
    assert nxt[0] <= 256, nxt[0]
    assert ACC == 40 and BIA >= 64 + 56

    def A(j, s):
        b = (s * 2 + j) * 4
        return f"a[{b}:{b+3}]"
    def acc(j):
        b = ACC + j * 16
        return f"v[{b}:{b+15}]"
    def bf(s):
        return BF + (s % NB) * 8

    ds = []
    vm = []
    def is_mark(t):
        return isinstance(t, tuple) and t[0] == "Gmark"
    def ds_issue(tag, ins):
        e(ins); ds.append(tag)
    def vm_issue(tag, ins):
        e(ins); vm.append(tag)
    def ds_n(tag):
        idx = max(i for i, t in enumerate(ds) if t == tag)
        return sum(1 for t in ds[idx+1:] if not is_mark(t))
    def vm_n(tag):
        idx = max(i for i, t in enumerate(vm) if t == tag)
        return len(vm) - 1 - idx
    def wait(dtag=None, vtag=None):
        w = []
        if vtag is not None:
            w.append(f"vmcnt({min(vm_n(vtag), 63)})")
        if dtag is not None:
            w.append(f"lgkmcnt({min(ds_n(dtag), 15)})")
        e("s_waitcnt " + " ".join(w))

    name = "standalone__structured_sparse_n_m__ragged_kernel"
    e(f".globl {name}")
    e(".p2align 8")
    e(f".type {name},@function")
    e(f"{name}:")
    e("s_cmp_ge_u32 s2, 256")
    e("s_cbranch_scc1 L_main_end")
    if cfg.PROF or cfg.DBG:
        e("s_memtime s[48:49]")
        e("s_memrealtime s[96:97]")
        e("s_mov_b32 s52, 0")
    e("s_load_dwordx4 s[4:7], s[0:1], 0")
    e("s_load_dwordx4 s[8:11], s[0:1], 16")
    e("s_load_dwordx4 s[72:75], s[0:1], 32")
    e(f"v_lshrrev_b32 v{vTR}, 6, v0")
    e("s_nop 0")
    e(f"v_readfirstlane_b32 s24, v{vTR}")
    e("s_and_b32 s25, s2, 7")
    e("s_lshr_b32 s26, s2, 3")
    e("s_and_b32 s27, s26, 3")
    e("s_lshr_b32 s26, s26, 2")
    e("s_lshl_b32 s25, s25, 3")
    e("s_add_u32 s26, s26, s25")
    e("s_lshl_b32 s28, s27, 2")
    e("s_add_u32 s28, s28, s24")
    e("s_lshr_b32 s87, s2, 1")
    e("s_and_b32 s88, s2, 1")
    e("s_mov_b32 s95, 0")
    e("s_waitcnt lgkmcnt(0)")
    e("s_mov_b32 s12, s4"); e("s_and_b32 s13, s5, 0xffff"); e("s_mov_b32 s14, 0x2000000"); e("s_mov_b32 s15, 0x00020000")
    e("s_mov_b32 s16, s10"); e("s_and_b32 s17, s11, 0xffff"); e("s_mov_b32 s18, 0x2000000"); e("s_mov_b32 s19, 0x00020000")
    e("s_mov_b32 s20, s74"); e("s_and_b32 s21, s75, 0xffff"); e(f"s_mov_b32 s22, {WS_SIZE:#x}"); e("s_mov_b32 s23, 0x00020000")
    e("s_mov_b32 s44, s8"); e("s_and_b32 s45, s9, 0xffff"); e("s_mov_b32 s46, 0x800"); e("s_mov_b32 s47, 0x00020000")
    e("s_mov_b32 s68, s6"); e("s_and_b32 s69, s7, 0xffff"); e("s_mov_b32 s70, 0x200000"); e("s_mov_b32 s71, 0x00020000")
    e("s_and_b32 s73, s73, 0xffff"); e("s_mov_b32 s74, 0x100"); e("s_mov_b32 s75, 0x00020000")
    e(f"v_mov_b32 v{GD+9}, 0")
    e(f"v_mov_b32 v{GD+10}, 1")
    e(f"v_and_b32 v{vDX}, 63, v0")
    e(f"v_lshlrev_b32 v{vTC}, 6, v{vDX}")
    e(f"v_lshlrev_b32 v{vDX}, 4, v{vDX}")
    e("s_lshl_b32 s37, s26, 19")
    e("s_lshl_b32 s36, s2, 2")
    e("s_add_u32 s36, s36, s24")
    e("s_cmp_lg_u32 s36, 3")
    e("s_cbranch_scc1 L_no_nonce")
    e("s_memrealtime s[90:91]")
    e("s_waitcnt lgkmcnt(0)")
    e("s_or_b32 s90, s90, 1")
    e(f"v_mov_b32 v{GD+11}, s90")
    e(f"v_cmp_eq_u32 vcc, 0, v{vDX}")
    e("s_and_saveexec_b64 s[66:67], vcc")
    e(f"buffer_store_dword v{GD+11}, v{GD+9}, s[72:75], 0 offen sc1")
    e("s_mov_b64 exec, s[66:67]")
    e("L_no_nonce:")
    e("s_cmp_ge_u32 s2, 128")
    e("s_cbranch_scc1 L_prep_skip")
    e("L_prep_again:")
    gen_prep_slice()
    e("s_cmp_eq_u32 s95, 0")
    e("s_cbranch_scc1 L_prep_signal0")
    e("s_add_u32 s87, s87, 1")
    e("s_cmp_lt_u32 s87, 64")
    e("s_cbranch_scc1 L_prep_again")
    e("s_waitcnt vmcnt(0)")
    e("s_barrier")
    e("s_branch L_sync_done")
    e("L_prep_signal0:")
    if cfg.PROF:
        e("s_memrealtime s[56:57]")
    e(f"buffer_load_dword v{GD+11}, v{GD+9}, s[72:75], 0 offen sc1")
    e(f"s_waitcnt vmcnt(0)")
    e("s_barrier")
    if cfg.PROF:
        e("s_memrealtime s[54:55]")
        e("s_waitcnt lgkmcnt(0)")
        e("s_mov_b32 s99, s54")
        e("s_mov_b32 s57, s56")
    e("s_cmp_lg_u32 s24, 0")
    e("s_cbranch_scc1 L_x0")
    e("s_mov_b32 s38, 1")
    e("s_memrealtime s[90:91]")
    e("s_branch L_nonce_chk")
    e("L_prep_skip:")
    e("s_cmp_lg_u32 s24, 0")
    e("s_cbranch_scc1 L_x0")
    e("s_mov_b32 s38, 0")
    e("s_memrealtime s[90:91]")
    for _ in range(cfg.SLP0 // 64):
        e("s_sleep 64")
    e("L_nonce_poll:")
    e(f"buffer_load_dword v{GD+11}, v{GD+9}, s[72:75], 0 offen sc1")
    e("s_waitcnt vmcnt(0)")
    e("L_nonce_chk:")
    e(f"v_readfirstlane_b32 s89, v{GD+11}")
    e("s_memrealtime s[92:93]")
    e("s_waitcnt lgkmcnt(0)")
    e("s_sub_u32 s92, s92, s90")
    e("s_cmp_lg_u32 s89, 0")
    e("s_cbranch_scc1 L_nonce_ok")
    e("s_sleep 8")
    e(f"s_cmp_lt_u32 s92, {cfg.TMO}")
    e("s_cbranch_scc1 L_nonce_poll")
    e("s_branch L_poll_fail")
    e("L_nonce_ok:")
    e("s_cmp_eq_u32 s38, 0")
    e("s_cbranch_scc1 L_poll_setup")
    e("s_lshl_b32 s36, s88, 6")
    e("s_add_u32 s36, s36, s87")
    e("s_lshl_b32 s36, s36, 7")
    e(f"s_add_u32 s36, s36, {WS_FLG:#x}")
    e("v_cmp_eq_u32 vcc, 0, v0")
    e("s_and_saveexec_b64 s[66:67], vcc")
    e(f"buffer_store_dword v{GD+11}, v{GD+9}, s[20:23], s36 offen sc1")
    e("s_mov_b64 exec, s[66:67]")
    e("L_poll_setup:")
    e("s_lshr_b32 s36, s27, 1")
    e("s_lshl_b32 s36, s36, 13")
    e(f"s_add_u32 s36, s36, {WS_FLG:#x}")
    e(f"v_lshlrev_b32 v{GD+12}, 3, v{vDX}")
    e("L_poll:")
    e(f"buffer_load_dword v{GD+11}, v{GD+12}, s[20:23], s36 offen sc1")
    e("s_memrealtime s[92:93]")
    e("s_waitcnt vmcnt(0) lgkmcnt(0)")
    e(f"v_cmp_ne_u32 vcc, s89, v{GD+11}")
    e("s_sub_u32 s92, s92, s90")
    e("s_cmp_eq_u64 vcc, 0")
    e("s_cbranch_scc1 L_poll_ok")
    if cfg.SLP: e(f"s_sleep {cfg.SLP}")
    e(f"s_cmp_lt_u32 s92, {cfg.TMO}")
    e("s_cbranch_scc1 L_poll")
    e("L_poll_fail:")
    e(f"v_mov_b32 v{GD+9}, 1")
    e("L_poll_ok:")
    if not cfg.WSC and cfg.INV:
        e("buffer_inv sc1")
        e("s_waitcnt vmcnt(0)")
    e(f"v_mov_b32 v{GD+10}, {LDS_SCR + 256}")
    e(f"ds_write_b32 v{GD+10}, v{GD+9}")
    e("s_waitcnt lgkmcnt(0)")
    e("s_branch L_sync_wait")
    e("L_x0:")
    e("s_sub_u32 s36, s24, 1")
    if cfg.XEARLY:
        e("s_cmp_lt_u32 s2, 128")
        e("s_cbranch_scc1 L_x0_done")
    e("s_mul_i32 s38, s36, 11")
    e("s_add_u32 s39, s38, 11")
    e("s_min_u32 s39, s39, 32")
    e("X0LOOP")
    e("L_x0_done:")
    e(f"s_mov_b32 m0, {LDS_SCR}")
    e("s_lshl_b32 s40, s27, 14")
    e("s_add_u32 s40, s40, s37")
    e("s_lshl_b32 s38, s36, 12")
    e("s_add_u32 s40, s40, s38")
    for tb in range(1, cfg.TD):
        e(f"s_add_u32 s38, s40, {tb * 0x10000}")
        e(f"buffer_load_dword v{vTC}, s[12:15], s38 offen lds")
        e(f"s_add_u32 s38, s40, {tb * 0x10000 + 4096}")
        e(f"buffer_load_dword v{vTC}, s[12:15], s38 offen lds")
    e("L_sync_wait:")
    if cfg.PROF:
        e("s_memrealtime s[58:59]")
        e("s_waitcnt lgkmcnt(0)")
        e("s_mov_b32 s100, s58")
    e("s_barrier")
    e(f"v_mov_b32 v{GD+10}, {LDS_SCR + 256}")
    e(f"ds_read_b32 v{GD+9}, v{GD+10}")
    e("s_waitcnt lgkmcnt(0)")
    e(f"v_readfirstlane_b32 s95, v{GD+9}")
    e("s_mov_b32 s87, 0")
    e("s_lshr_b32 s88, s27, 1")
    e("s_cmp_lg_u32 s95, 0")
    e("s_cbranch_scc1 L_prep_again")
    e("L_sync_done:")
    if cfg.PROF:
        e("s_mov_b32 s94, s57")
        e("s_mov_b32 s95, s99")
    if cfg.DBG:
        e("s_memrealtime s[100:101]")
    if cfg.PROF:
        e("s_memtime s[54:55]")
        e("s_memrealtime s[60:61]")
        e("s_waitcnt lgkmcnt(0)")
        e("s_sub_u32 s53, s54, s48")
        e("s_mov_b32 s101, s60")
    T = GD
    TT = ACC
    e(f"v_and_b32 v{T}, 63, v0")
    e(f"v_lshlrev_b32 v{TT+0}, 2, v{T}")
    e(f"v_lshlrev_b32 v{TT+1}, 10, v{T}")
    e(f"v_lshlrev_b32 v{vDX}, 4, v{T}")
    for j in range(2):
        e("s_lshl_b32 s36, s28, 9")
        e(f"s_add_u32 s36, s36, {WS_CNT + j*256:#x}")
        vm_issue("ent", f"buffer_load_dword v{TT+4+12*j}, v{TT+0}, s[20:23], s36 offen sc1")
        e("s_lshl_b32 s36, s28, 17")
        e(f"s_add_u32 s36, s36, {WS_ENT + j*0x10000:#x}")
        vm_issue("ent", f"buffer_load_dwordx4 v[{TT+8+12*j}:{TT+11+12*j}], v{TT+1}, s[20:23], s36 offen sc1")
        vm_issue("ent", f"buffer_load_dwordx4 v[{TT+12+12*j}:{TT+15+12*j}], v{TT+1}, s[20:23], s36 offen offset:16 sc1")
    e(f"v_and_b32 v{T+1}, 31, v0")
    e(f"v_bfe_u32 v{T+2}, v0, 5, 1")
    e(f"v_and_b32 v{T+3}, 0x13, v{T+1}")
    e(f"v_bfe_u32 v{T+4}, v{T+1}, 2, 1")
    e(f"v_lshl_or_b32 v{T+3}, v{T+4}, 3, v{T+3}")
    e(f"v_bfe_u32 v{T+4}, v{T+1}, 3, 1")
    e(f"v_lshl_or_b32 v{T+3}, v{T+4}, 2, v{T+3}")
    e(f"v_lshlrev_b32 v{T+3}, 1, v{T+3}")
    e("s_lshl_b32 s36, s28, 7")
    vm_issue("bias", f"buffer_load_ushort v{BIA}, v{T+3}, s[44:47], s36 offen")
    vm_issue("bias", f"buffer_load_ushort v{BIA+4}, v{T+3}, s[44:47], s36 offen offset:64")
    e("s_lshl_b32 s36, s28, 13")
    e(f"s_add_u32 s36, s36, {WS_WI:#x}")
    for j in range(2):
        for u in range(4):
            b = IDX + j * 16 + u * 4
            if j == 1 and u == 0:
                e("s_add_u32 s36, s36, 0x1000")
            vm_issue("W", f"buffer_load_dwordx4 v[{b}:{b+3}], v{vDX}, s[20:23], s36 offen offset:{u*1024}" + (" sc1" if cfg.WSC else ""))
    e("s_lshl_b32 s42, s28, 16")
    e(f"s_add_u32 s42, s42, {WS_WA:#x}")
    e("s_add_u32 s43, s42, 0x8000")
    def w_loads(s0, s1):
        for s in range(s0, s1):
            if s % 4 == 0 and s:
                e("s_add_u32 s42, s42, 0x1000")
                e("s_add_u32 s43, s43, 0x1000")
            for j in range(2):
                vm_issue("W", f"buffer_load_dwordx4 {A(j,s)}, v{vDX}, s[20:23], s{42+j} offen offset:{(s%4)*1024}" + (" sc1" if cfg.WSC else ""))
    w_loads(0, 12)
    e(f"v_mul_u32_u24 v{vRB}, {RS}, v{T+1}")
    e(f"v_lshl_add_u32 v{vLB}, v{T+2}, 4, v{vRB}")
    e(f"v_lshrrev_b32 v{T+6}, 3, v{T}")
    e(f"v_and_b32 v{T+7}, 7, v{T}")
    e(f"v_lshlrev_b32 v{vST}, 11, v{T+6}")
    e(f"v_lshl_add_u32 v{vST}, v{T+7}, 4, v{vST}")
    e(f"s_mul_i32 s38, s24, {32*TRS}")
    e(f"s_add_u32 s38, s38, {LDS_TR}")
    e(f"v_mul_u32_u24 v{vTR}, {TRS}, v{T+6}")
    e(f"v_lshl_add_u32 v{vTR}, v{T+7}, 4, v{vTR}")
    e(f"v_add_u32 v{vTR}, s38, v{vTR}")
    e(f"v_mul_u32_u24 v{vTW}, {TRS}, v{T+1}")
    e(f"v_lshl_add_u32 v{vTW}, v{T+2}, 4, v{vTW}")
    e(f"v_add_u32 v{vTW}, s38, v{vTW}")
    e(f"v_lshlrev_b32 v{vTC}, 6, v{T}")
    e(f"v_lshlrev_b32 v{T+3}, 3, v{T+2}")
    e(f"s_mul_i32 s35, s24, {8*RS}")
    e(f"s_add_u32 s36, s35, {BUF1}")
    e(f"v_add_u32 v{TT+2}, s36, v{vDX}")
    e(f"v_add_u32 v{TT+3}, s38, v{vDX}")
    Z = TT + 28
    for i in range(4):
        e(f"v_mov_b32 v{Z+i}, 0")
    e(f"v_mov_b32 v{TT+32}, {PADOFF | (PADOFF << 16):#x}")
    e(f"v_add_u32 v{TT+33}, s38, v{TT+0}")
    for j in range(2):
        for c in range(RCH):
            e(f"ds_write_b128 v{TT+2}, v[{Z}:{Z+3}] offset:{(4*j + (c>>1))*RS + (c&1)*1024}")
        e(f"ds_write_b128 v{TT+3}, v[{Z}:{Z+3}] offset:{j*1024}")
    e(f"ds_write_b32 v{TT+33}, v{TT+32} offset:2048")
    e(f"v_mov_b32 v{T+6}, 0x3f803f80")
    e(f"v_mov_b32 v{T+7}, 0x3f803f80")
    e(f"ds_write_b64 v{vRB}, v[{T+6}:{T+7}] offset:{PADOFF}")
    e(f"ds_write_b64 v{vRB}, v[{T+6}:{T+7}] offset:{BUF1+PADOFF}")
    wait(vtag="ent")
    C = TT + 34; S = TT + 35; E = TT + 36; t = TT + 37
    e("s_mov_b32 s58, 0")
    e(f"s_add_u32 s59, s35, {BUF1}")
    e("s_mov_b32 s60, s38")
    e(f"s_add_u32 s61, s38, 2048")
    e("L_bj:")
    e("s_set_gpr_idx_on s58, 0x1")
    e("s_nop 0")
    e(f"v_mov_b32 v{C}, v{TT+4}")
    e("s_set_gpr_idx_off")
    e(f"v_mov_b32 v{S}, v{C}")
    e(f"v_cmp_lt_u32 vcc, 8, v{C}")
    for sh in (1, 2, 4, 8):
        e("s_nop 0")
        e(f"v_add_u32_dpp v{S}, v{S}, v{S} row_shr:{sh} row_mask:0xf bank_mask:0xf bound_ctrl:0")
        e("s_nop 0")
    e("s_nop 0")
    e(f"v_add_u32_dpp v{S}, v{S}, v{S} row_bcast:15 row_mask:0xa bank_mask:0xf")
    e("s_nop 1")
    e(f"v_add_u32_dpp v{S}, v{S}, v{S} row_bcast:31 row_mask:0xc bank_mask:0xf")
    e("s_nop 1")
    e(f"v_readlane_b32 s36, v{S}, 63")
    e(f"v_sub_u32 v{S}, v{S}, v{C}")
    e("s_cmp_lg_u64 vcc, 0")
    e("s_cselect_b32 s62, 1, 0")
    e(f"s_cmp_gt_u32 s36, {8*RCH}")
    e("s_cselect_b32 s62, 1, s62")
    e("s_add_u32 s36, s36, 7")
    e("s_lshr_b32 s36, s36, 3")
    e("s_cmp_eq_u32 s62, 0")
    e("s_cselect_b32 s36, s36, 0")
    e("s_cmp_eq_u32 s58, 0")
    e("s_cselect_b32 s30, s36, s30")
    e("s_cselect_b32 s64, s62, s64")
    e("s_mov_b32 s31, s36")
    e("s_mov_b32 s65, s62")
    e("s_cmp_lg_u32 s62, 0")
    e("s_cbranch_scc1 L_bj_next")
    e("s_mov_b32 s63, 0")
    e("L_be:")
    e(f"v_cmp_lt_u32 vcc, s63, v{C}")
    e("s_and_saveexec_b64 s[66:67], vcc")
    e("s_cbranch_execz L_be_done")
    e("s_add_u32 s36, s58, s63")
    e("s_set_gpr_idx_on s36, 0x1")
    e("s_nop 0")
    e(f"v_mov_b32 v{E}, v{TT+8}")
    e("s_set_gpr_idx_off")
    e(f"v_add_u32 v{t}, s63, v{S}")
    e(f"v_lshrrev_b32 v{t+1}, 3, v{t}")
    e(f"v_bfe_u32 v{t+2}, v{t}, 2, 1")
    e(f"v_and_b32 v{t+3}, 3, v{t}")
    e(f"v_lshrrev_b32 v{t+4}, 26, v{E}")
    e(f"v_lshl_add_u32 v{t+4}, v{t+2}, 5, v{t+4}")
    e(f"v_lshlrev_b32 v{t+4}, 4, v{t+4}")
    e(f"v_lshrrev_b32 v{t+5}, 1, v{t+1}")
    e(f"v_and_b32 v{t+6}, 1, v{t+1}")
    e(f"v_mul_u32_u24 v{t+7}, {RS}, v{t+5}")
    e(f"v_lshl_add_u32 v{t+7}, v{t+6}, 10, v{t+7}")
    e(f"v_add3_u32 v{t+7}, v{t+7}, v{t+4}, s59")
    e(f"v_lshl_add_u32 v{t+7}, v{t+3}, 2, v{t+7}")
    e(f"ds_write_b16 v{t+7}, v{E}")
    e(f"v_lshl_add_u32 v{t+8}, v{t+5}, 2, v{t+4}")
    e(f"v_add_u32 v{t+8}, s60, v{t+8}")
    e(f"v_lshlrev_b32 v{t+9}, 4, v{t+6}")
    e(f"v_lshl_add_u32 v{t+9}, v{t+3}, 2, v{t+9}")
    e(f"v_bfe_u32 v{t+10}, v{E}, 24, 2")
    e(f"v_lshlrev_b32 v{t+10}, v{t+9}, v{t+10}")
    e(f"ds_or_b32 v{t+8}, v{t+10}")
    e(f"v_lshlrev_b32 v{t+8}, 4, v{t+1}")
    e(f"v_bfe_u32 v{t+9}, v{t}, 1, 1")
    e(f"v_lshl_add_u32 v{t+8}, v{t+9}, 3, v{t+8}")
    e(f"v_lshl_add_u32 v{t+8}, v{t+2}, 2, v{t+8}")
    e(f"v_and_b32 v{t+9}, 1, v{t}")
    e(f"v_lshl_add_u32 v{t+8}, v{t+9}, 1, v{t+8}")
    e(f"v_add_u32 v{t+8}, s61, v{t+8}")
    e(f"v_bfe_u32 v{t+10}, v{E}, 16, 8")
    e(f"v_lshlrev_b32 v{t+10}, 3, v{t+10}")
    e(f"ds_write_b16 v{t+8}, v{t+10}")
    e("s_mov_b64 exec, s[66:67]")
    e("s_add_u32 s63, s63, 1")
    e("s_cmp_lt_u32 s63, 8")
    e("s_cbranch_scc1 L_be")
    e("L_be_done:")
    e("s_mov_b64 exec, s[66:67]")
    e("L_bj_next:")
    e("s_add_u32 s58, s58, 12")
    e(f"s_add_u32 s59, s59, {4*RS}")
    e("s_add_u32 s60, s60, 1024")
    e("s_add_u32 s61, s61, 128")
    e("s_cmp_lt_u32 s58, 24")
    e("s_cbranch_scc1 L_bj")
    e(f"v_add_u32 v{TT+33}, s38, v{T+3}")
    for j in range(2):
        for c in range(RCH):
            b = RAF + (j * RCH + c) * 4
            e(f"ds_read_b128 v[{b}:{b+3}], v{TT+2} offset:{(4*j + (c>>1))*RS + (c&1)*1024}")
            b = RPK + (j * RCH + c) * 2
            e(f"ds_read_b64 v[{b}:{b+1}], v{TT+33} offset:{2048 + j*128 + c*16}")
        e(f"ds_read_b128 v[{RIX+j*4}:{RIX+j*4+3}], v{TT+3} offset:{j*1024}")
    w_loads(12, 32)
    e("s_lshl_b32 s37, s26, 19")
    e("s_lshl_b32 s33, s24, 14")
    e("s_add_u32 s37, s37, s33")
    e("s_add_u32 s37, s37, 0x10000")
    e("s_lshl_b32 s41, s26, 19")
    e("s_lshl_b32 s33, s27, 14")
    e("s_add_u32 s41, s41, s33")
    e("s_lshl_b32 s33, s24, 12")
    e("s_add_u32 s41, s41, s33")
    e(f"s_add_u32 s41, s41, {cfg.TD * 0x10000}")
    e("s_lshl_b32 s33, s26, 19")
    e("s_lshl_b32 s36, s28, 7")
    e("s_add_u32 s33, s33, s36")
    e("s_mov_b32 s34, 0x40000000")
    e("s_mov_b32 s39, 0")
    e(f"s_mov_b32 s29, {BUF1}")
    e(f"s_add_u32 s32, s35, {BUF1}")
    wait(vtag="bias")
    e(f"v_cmp_eq_u32 vcc, 0, v{T+2}")
    for i in (1, 2, 3, 5, 6, 7):
        e(f"v_mov_b32 v{BIA+i}, 0")
    e(f"v_cndmask_b32 v{BIA}, 0, v{BIA}, vcc")
    e(f"v_cndmask_b32 v{BIA+4}, 0, v{BIA+4}, vcc")
    e(f"v_mov_b32 v{ONE}, 0x3f80")
    for i in (1, 2, 3):
        e(f"v_mov_b32 v{ONE+i}, 0")
    e("s_waitcnt vmcnt(0) lgkmcnt(0)")
    e("s_barrier")
    if cfg.PROF:
        e("s_memtime s[50:51]")
        e("s_waitcnt lgkmcnt(0)")
    if cfg.DBG:
        e("s_memrealtime s[50:51]")
        e("s_waitcnt lgkmcnt(0)")
    vm.clear()

    def init_acc(j):
        return f"v_mfma_f32_32x32x16_bf16 {acc(j)}, v[{BIA+4*j}:{BIA+4*j+3}], v[{ONE}:{ONE+3}], 0"

    def b_reads(s):
        b = bf(s)
        base = 64 * s
        return [("ds", ("B", s), f"ds_read_b128 v[{b}:{b+3}], v{vLB} offset:{base}"),
                ("ds", ("B", s), f"ds_read_b128 v[{b+4}:{b+7}], v{vLB} offset:{base+32}")]

    def g_items(j, c, gs, tag):
        r = []
        pk = RPK + (j * RCH + c) * 2
        for pb in range(4):
            d = GD + gs * 8 + 2 * pb
            r.append(("raw", f"v_add_u32_sdwa v{d}, v{vRB}, v{pk + (pb>>1)} dst_sel:DWORD dst_unused:UNUSED_PAD src0_sel:DWORD src1_sel:WORD_{pb&1}" if not cfg.RNOA else "s_nop 0"))
        for pb in range(4):
            d = GD + gs * 8 + 2 * pb
            r.append(("ds", tag, f"ds_read_b64 v[{d}:{d+1}], v{d}") if not cfg.RNOG else ("dsx", tag))
        return r

    uid = [0]
    def gather_block(j, c, gs):
        uid[0] += 1
        lbl = f"L_g{uid[0]}"
        e(f"s_cmp_le_u32 s{30+j}, {c}")
        e(f"s_cbranch_scc1 {lbl}")
        for it in g_items(j, c, gs, None):
            e(it[-1])
        e(f"{lbl}:")
        ds.append(("Gmark", j, c))
    def mfma_block(j, c, gs):
        cond = c >= RU
        if cond:
            uid[0] += 1
            lbl = f"L_m{uid[0]}"
            e(f"s_cmp_le_u32 s{30+j}, {c}")
            e(f"s_cbranch_scc1 {lbl}")
            wait(dtag=("Gmark", j, c))
        elif not cfg.RNOG:
            wait(dtag=("G", j, c))
        ra = RAF + (j * RCH + c) * 4
        if not cfg.RNOM: e(f"v_smfmac_f32_32x32x32_bf16 {acc(j)}, v[{ra}:{ra+3}], v[{GD+gs*8}:{GD+gs*8+7}], v{RIX + j*4 + (c>>1)}" + (" abid:1" if c & 1 else ""))
        if cond:
            e(f"{lbl}:")

    def emit_items(items):
        for x in items:
            if x[0] == "raw": e(x[1])
            elif x[0] == "ds": ds_issue(x[1], x[2])
            elif x[0] == "vm": vm_issue(x[1], x[2])
            elif x[0] == "G": gather_block(*x[1:])
            elif x[0] == "M": mfma_block(*x[1:])
            elif x[0] == "W": wait(dtag=x[1])
            elif x[0] == "dsx": ds.append(("Gmark", x[1])); ds.append(x[1]) if False else None
            else: raise Exception(x)

    def epilogue_items():
        wr = [("ds", "tw", f"ds_write_b128 v{vTW}, v[{EP+4*i}:{EP+4*i+3}] offset:{32*i}") for i in range(4)]
        rb = []; st = []
        for i in range(4):
            a = EP + 4 * i
            rb.append(("ds", ("tr", i), f"ds_read_b128 v[{a}:{a+3}], v{vTR} offset:{i*8*TRS}"))
            st.append(("W", ("tr", i)))
            st.append(("raw", f"s_add_u32 s38, s34, {i*8*2048}"))
            st.append(("vm", "st", f"buffer_store_dwordx4 v[{a}:{a+3}], v{vST}, s[16:19], s38 offen" + ["", " nt", " sc1", " sc0 sc1", " sc1 nt"][cfg.STM]))
        return wr, rb, st

    if cfg.SEG:
        for i in range(80, 88): e(f"s_mov_b32 s{i}, 0")
        e("s_memtime s[76:77]")
        e("s_waitcnt lgkmcnt(0)")
        e("s_mov_b32 s79, s76")
    e(init_acc(0))
    e(init_acc(1))
    for s in range(PD):
        emit_items(b_reads(s))

    e("L_loop:")
    rq = []
    def at(g, items):
        for it in items:
            rq.append((g, it))
    order = [(j, c) for c in range(RCH) for j in range(2)] if not cfg.NORES else []
    for z, (j, c) in enumerate(order):
        g0 = int(min(cfg.RPER, (2 * (32 - PD) - 1 - cfg.RLAT) * 10 // 15) * z / 10)
        if c >= RU:
            at(g0, [("G", j, c, z & 1)])
        else:
            gi = g_items(j, c, z & 1, ("G", j, c))
            if cfg.GSPREAD:
                at(g0, [gi[0], gi[1], gi[4]]); at(g0 + 1, [gi[5], gi[2]]); at(g0 + 2, [gi[6], gi[3]]); at(g0 + 3, [gi[7]])
            else:
                at(g0, gi[:4]); at(g0 + 1, gi[4:])
        at(g0 + cfg.RLAT, [("M", j, c, z & 1)])
    if not cfg.NODMA:
        for r in range(8):
            at(cfg.DG0 + cfg.DGS * r, [("raw", f"s_add_u32 m0, s32, {r*RS}"), ("raw", f"s_add_u32 s36, s40, {r*2048}"),
                             ("vm", "Xn", f"buffer_load_dwordx4 v{vDX}, s[12:15], s36 offen lds")])
            at(cfg.DG0 + cfg.DGS * r + cfg.DGS // 2, [("vm", "Xn", f"buffer_load_dwordx4 v{vDX}, s[12:15], s36 offen offset:1024 lds")])
        at(cfg.DG0 + cfg.DGS * 8, [("raw", f"s_mov_b32 m0, {LDS_SCR}"), ("raw", "s_nop 0"), ("vm", "touch", f"buffer_load_dword v{vTC}, s[12:15], s42 offen lds")])
    if not cfg.NOEPI:
        wr, rb, st = epilogue_items()
        for i in range(4):
            at(cfg.EW0 + cfg.EWS * i, [wr[i]])
        for i in range(4):
            at(cfg.ER0 + cfg.ERS * i, [rb[i]])
        for i in range(4):
            at(cfg.ES0 + cfg.ESS * i, st[3*i:3*i+3])
    rq.sort(key=lambda t: t[0])
    def fill(gap):
        while rq and rq[0][0] <= gap:
            emit_items([rq.pop(0)[1]])

    e("s_cmp_lt_u32 s39, 7")
    e("s_cselect_b32 s40, s37, 0x40000000")
    e(f"s_cmp_lt_u32 s39, {8 - cfg.TD}")
    e("s_cselect_b32 s42, s41, 0x40000000")
    for s in range(32):
        if cfg.SEG and s % 4 == 0:
            e("s_memtime s[76:77]")
            e("s_waitcnt lgkmcnt(0)")
            if s:
                e(f"s_sub_u32 s78, s76, s79")
                e(f"s_add_u32 s{80 + s//4 - 1}, s{80 + s//4 - 1}, s78")
            else:
                e(f"s_sub_u32 s78, s76, s79")
                e(f"s_add_u32 s87, s87, s78")
            e("s_mov_b32 s79, s76")
        wait(dtag=("B", s))
        e(f"v_smfmac_f32_32x32x32_bf16 {acc(0)}, {A(0,s)}, v[{bf(s)}:{bf(s)+7}], v{IDX + (s>>1)}" + (" abid:1" if s & 1 else ""))
        sn = s + PD
        rd = b_reads(sn) if sn < 32 else []
        emit_items(rd[:1])
        fill(2 * s)
        e(f"v_smfmac_f32_32x32x32_bf16 {acc(1)}, {A(1,s)}, v[{bf(s)}:{bf(s)+7}], v{IDX + 16 + (s>>1)}" + (" abid:1" if s & 1 else ""))
        emit_items(rd[1:])
        fill(2 * s + 1)
        if s == 32 - PD - 1:
            assert not rq, len(rq)
            e("s_or_b32 s36, s64, s65")
            e("s_cbranch_scc0 L_sp_end")
            e(f"v_lshrrev_b32 v{GD+13}, 4, v{vDX}")
            for r in (2, 3, 4, 5, 6, 7, 9, 10, 11):
                e(f"v_mov_b32 v{GD+r}, 0")
            e("s_mov_b32 s58, 0")
            e("L_sp_kr:")
            e("s_cmp_lt_u32 s58, 64")
            e("s_cselect_b32 s36, s64, s65")
            e("s_cmp_eq_u32 s36, 0")
            e("s_cbranch_scc1 L_sp_nx")
            e("s_lshl_b32 s59, s28, 7")
            e("s_add_u32 s59, s59, s58")
            e("s_lshl_b32 s60, s59, 2")
            e(f"buffer_load_dword v{GD+15}, v{GD+9}, s[20:23], s60 offen offset:{WS_CNT} sc1")
            e("s_lshl_b32 s59, s59, 10")
            e(f"s_add_u32 s59, s59, {WS_ENT:#x}")
            e("s_waitcnt vmcnt(0)")
            e(f"v_readfirstlane_b32 s60, v{GD+15}")
            e("s_nop 3")
            e("s_cmp_eq_u32 s60, 0")
            e("s_cbranch_scc1 L_sp_nx")
            e("L_sp_e:")
            e(f"buffer_load_dword v{GD+15}, v{GD+9}, s[20:23], s59 offen sc1")
            e("s_waitcnt vmcnt(0)")
            e(f"v_readfirstlane_b32 s62, v{GD+15}")
            e("s_nop 3")
            e("s_lshr_b32 s63, s62, 26")
            e(f"v_cmp_eq_u32 vcc, s63, v{GD+13}")
            e("s_and_b32 s63, s62, 0xffff")
            e(f"v_mov_b32 v{GD+14}, s63")
            e("s_bfe_u32 s63, s62, 0x80010")
            e("s_lshl_b32 s63, s63, 3")
            e(f"v_add_u32 v{GD}, s63, v{vRB}")
            e(f"v_cndmask_b32 v{GD+8}, 0, v{GD+14}, vcc")
            e("s_bfe_u32 s63, s62, 0x20018")
            e(f"v_mov_b32 v{GD+12}, s63")
            e(f"ds_read_b64 v[{GD}:{GD+1}], v{GD}")
            e("s_waitcnt lgkmcnt(0)")
            e("s_cmp_lt_u32 s58, 64")
            e("s_cbranch_scc0 L_sp_j1")
            e(f"v_smfmac_f32_32x32x32_bf16 {acc(0)}, v[{GD+8}:{GD+11}], v[{GD}:{GD+7}], v{GD+12}")
            e("s_branch L_sp_jd")
            e("L_sp_j1:")
            e(f"v_smfmac_f32_32x32x32_bf16 {acc(1)}, v[{GD+8}:{GD+11}], v[{GD}:{GD+7}], v{GD+12}")
            e("L_sp_jd:")
            e("s_add_u32 s59, s59, 4")
            e("s_sub_u32 s60, s60, 1")
            e("s_cmp_lg_u32 s60, 0")
            e("s_nop 4")
            e("s_cbranch_scc1 L_sp_e")
            e("L_sp_nx:")
            e("s_add_u32 s58, s58, 1")
            e("s_cmp_lt_u32 s58, 128")
            e("s_cbranch_scc1 L_sp_kr")
            e("L_sp_end:")
        if sn >= 32:
            if sn == 32:
                if cfg.PROF:
                    e("s_memtime s[54:55]")
                if cfg.NODMA:
                    e("s_waitcnt lgkmcnt(0)")
                else:
                    e(f"s_waitcnt vmcnt({min(vm_n('Xn'),63)}) lgkmcnt(0)")
                e("s_barrier")
                if cfg.PROF:
                    e("s_memtime s[56:57]")
                    e("s_waitcnt lgkmcnt(0)")
                    e("s_sub_u32 s56, s56, s54")
                    e("s_add_u32 s52, s52, s56")
                e(f"v_add_u32 v{vLB}, s29, v{vLB}")
                e(f"v_add_u32 v{vRB}, s29, v{vRB}")
                e("s_sub_u32 s32, s32, s29")
                e("s_sub_u32 s29, 0, s29")
            emit_items(b_reads(sn - 32))
    e("s_mov_b32 s34, s33")
    e("s_add_u32 s33, s33, 0x10000")
    e("s_add_u32 s37, s37, 0x10000")
    e("s_add_u32 s41, s41, 0x10000")
    e("s_add_u32 s39, s39, 1")
    e("s_cmp_lt_u32 s39, 8")
    e("s_nop 3")
    for i in range(8):
        e(f"v_cvt_pk_bf16_f32 v{EP+i}, v{ACC+2*i}, v{ACC+2*i+1}")
    e(init_acc(0))
    e("s_nop 2")
    for i in range(8):
        e(f"v_cvt_pk_bf16_f32 v{EP+8+i}, v{ACC+16+2*i}, v{ACC+16+2*i+1}")
    e(init_acc(1))
    e("s_cbranch_scc1 L_loop")
    wr, rb, st = epilogue_items()
    emit_items(wr); emit_items(rb); emit_items(st)
    if cfg.PROF:
        e("s_memtime s[54:55]")
        e("s_memrealtime s[98:99]")
        e("s_waitcnt lgkmcnt(0)")
        e("s_sub_u32 s56, s50, s48")
        e("s_sub_u32 s57, s54, s50")
        e("s_sub_u32 s48, s98, s96")
        e("s_nop 4")
        e(f"v_mov_b32 v{GD}, s56")
        e(f"v_mov_b32 v{GD+1}, s52")
        e(f"v_mov_b32 v{GD+2}, s57")
        e(f"v_mov_b32 v{GD+3}, s48")
        e("s_lshl_b32 s36, s2, 2")
        e("s_add_u32 s36, s36, s24")
        e("s_lshl_b32 s36, s36, 4")
        e("s_add_u32 s36, s36, 0x8000000")
        e(f"v_mov_b32 v{GD+8}, 0")
        e(f"v_mov_b32 v{GD+4}, s94")
        e(f"v_mov_b32 v{GD+5}, s95")
        e(f"v_mov_b32 v{GD+6}, s53")
        e(f"v_mov_b32 v{GD+7}, 0")
        e(f"buffer_store_dwordx4 v[{GD}:{GD+3}], v{GD+8}, s[20:23], s36 offen")
        e("s_add_u32 s36, s36, 0x100000")
        e(f"buffer_store_dwordx4 v[{GD+4}:{GD+7}], v{GD+8}, s[20:23], s36 offen")
        e("s_nop 2")
        e(f"v_mov_b32 v{GD+4}, s96")
        e(f"v_mov_b32 v{GD+5}, s100")
        e(f"v_mov_b32 v{GD+6}, s101")
        e(f"v_mov_b32 v{GD+7}, s98")
        e("s_add_u32 s36, s36, 0x100000")
        e(f"buffer_store_dwordx4 v[{GD+4}:{GD+7}], v{GD+8}, s[20:23], s36 offen")
        if cfg.SEG:
            e("s_nop 2")
            for i in range(8): e(f"v_mov_b32 v{GD+i}, s{80+i}")
            e("s_add_u32 s36, s36, 0x100000")
            e(f"buffer_store_dwordx4 v[{GD}:{GD+3}], v{GD+8}, s[20:23], s36 offen")
            e("s_add_u32 s36, s36, 0x100000")
            e(f"buffer_store_dwordx4 v[{GD+4}:{GD+7}], v{GD+8}, s[20:23], s36 offen")
    if cfg.DBG:
        e("s_memrealtime s[56:57]")
        e("s_waitcnt vmcnt(0)")
        e("s_memrealtime s[98:99]")
        e("s_waitcnt lgkmcnt(0)")
        e("s_sub_u32 s98, s98, s96")
        e("s_sub_u32 s100, s100, s96")
        e("s_sub_u32 s50, s50, s96")
        e("s_sub_u32 s56, s56, s96")
        e(f"v_mov_b32 v{GD}, s100")
        e(f"v_mov_b32 v{GD+1}, s50")
        e(f"v_mov_b32 v{GD+2}, s56")
        e(f"v_mov_b32 v{GD+3}, s98")
        e(f"v_mov_b32 v{GD+4}, 0")
        e("s_and_b32 s36, s2, 63")
        e("s_or_b32 s36, s36, s24")
        e("s_cbranch_scc1 L_main_end")
        e("s_lshr_b32 s36, s2, 6")
        e("s_lshl_b32 s36, s36, 4")
        e(f"v_cmp_eq_u32 vcc, 0, v{vDX}")
        e("s_and_saveexec_b64 s[66:67], vcc")
        e(f"buffer_store_dwordx4 v[{GD}:{GD+3}], v{GD+4}, s[72:75], s36 offen")
    e("L_main_end:")
    e("s_endpgm")


gen_main()
_n = 0
L2 = []
for ln in L:
    if ln.strip() == "X0LOOP":
        _n += 1
        L2 += [f"L_x0_loop{_n}:", f"    s_mul_i32 s40, s38, {RS}", "    s_mov_b32 m0, s40", "    s_lshl_b32 s40, s38, 11", "    s_add_u32 s40, s40, s37",
               "    buffer_load_dwordx4 v3, s[12:15], s40 offen lds", "    buffer_load_dwordx4 v3, s[12:15], s40 offen offset:1024 lds",
               "    s_add_u32 s38, s38, 1", "    s_cmp_lt_u32 s38, s39", f"    s_cbranch_scc1 L_x0_loop{_n}"]
    else:
        L2.append(ln)
L = L2

tail = """
.section .rodata,"a"
.p2align 6
.amdhsa_kernel standalone__structured_sparse_n_m__ragged_kernel
  .amdhsa_next_free_vgpr 512
  .amdhsa_next_free_sgpr 102
  .amdhsa_accum_offset 256
  .amdhsa_group_segment_fixed_size 0
  .amdhsa_kernarg_size 48
  .amdhsa_user_sgpr_count 2
  .amdhsa_user_sgpr_kernarg_segment_ptr 1
  .amdhsa_system_sgpr_workgroup_id_x 1
.end_amdhsa_kernel
"""
open(OUT, "w").write(hdr + "\n".join(L) + "\n" + tail)
print("wrote", OUT, len(L), "lines")
```

```python
import sys, os

OUT = os.environ.get("GEN_OUT", "standalone__structured_sparse_n_m__ragged.s")

WS_CNT = 0x0
WS_WI = 0x4000
WS_WA = 0x40000
WS_ENT = 0x200000
WS_FLG = 0x400000
WS_SIZE = 0x10000000

class Cfg:
    NB = 4
    PD = 3
    RCH = 8
    RU = 6
    TD = 2
    RPER = 34
    RLAT = 6
    DGS = 4
    TMO = 20000
    SLP = 8
    SLP0 = 64
    PROF = 0
    XMF = 0
    PERM = 1
    NOST = 0
    NOTR = 0
    XEARLY = 0
    FSH = 7
    SEG = 0
    EW0 = 4
    EWS = 2
    ER0 = 11
    ERS = 1
    ES0 = 41
    ESS = 4
    DG0 = 0
    WSC = 1
    INV = 1
    GSPREAD = 1
    RNOG = 0
    RNOM = 0
    RNOA = 0
    STM = 0
    DBG = 0
    NODMA = 0
    NORES = 0
    NOEPI = 0

cfg = Cfg()
for a in sys.argv[1:]:
    k, v = a.split("=")
    setattr(cfg, k, int(v))

RS = 4144
BUF1 = 2064
PADOFF = 2048
LDS_X = 32 * RS
LDS_TR = LDS_X
TRS = 144
LDS_SCR = LDS_TR + 4 * 32 * TRS
LDS_TOTAL = LDS_SCR + 256 + 16

L = []
def e(s=""):
    L.append("    " + s if s and not s.endswith(":") else s)

hdr = f"""; 2:4 structured-sparse GEMM  out = x @ prune24(w) + b   (B*S=16384, D=1024), bf16
; @launch grid=(256,1,1) block=(256,1,1) lds={LDS_TOTAL}
.amdgcn_target "amdgcn-amd-amdhsa--gfx950"
.text
"""


def gen_prep_slice():
    TBL = {0: 4, 1: 4, 2: 4, 4: 8, 8: 12, 3: 4, 5: 8, 6: 9, 7: 4, 9: 12, 10: 13, 11: 4, 12: 14, 13: 8, 14: 9, 15: 4}
    T64 = 0
    for k, v in TBL.items():
        T64 |= v << (4 * k)
    ET = {7: 1, 11: 2, 13: 2, 14: 2, 15: 3}
    E32 = 0
    for k, v in ET.items():
        E32 |= v << (2 * k)
    R = 64
    def v(n): return f"v{R+n}"
    e(f"v_lshlrev_b32 {v(3)}, 2, v0")
    e("s_lshl_b32 s89, s87, 15")
    e("s_lshl_b32 s90, s88, 10")
    e("s_add_u32 s89, s89, s90")
    D = 8
    for kk in range(0, 16, 2):
        e(f"buffer_load_dword {v(D+kk)}, {v(3)}, s[68:71], s89 offen")
        e(f"buffer_load_dword {v(D+kk+1)}, {v(3)}, s[68:71], s89 offen offset:2048")
        if kk < 14:
            e("s_add_u32 s89, s89, 4096")
    if cfg.XEARLY:
        e("s_cmp_lg_u32 s95, 0")
        e("s_cbranch_scc1 L_prep_nox")
        e("s_lshl_b32 s38, s24, 3")
        e("s_add_u32 s39, s38, 8")
        e("X0LOOP")
        e("L_prep_nox:")
    e("s_mov_b32 s76, 0x7fff7fff")
    e("s_mov_b32 s77, 0x00010001")
    e("s_mov_b32 s78, 0x000f000f")
    e(f"s_mov_b32 s80, {T64 & 0xffffffff:#x}")
    e(f"s_mov_b32 s81, {T64 >> 32:#x}")
    e(f"s_mov_b32 s82, {E32:#x}")
    e("s_mov_b32 s83, 0x05040100")
    e("s_mov_b32 s84, 0x07060302")
    e("s_mov_b32 s85, 0x01000100")
    e("s_mov_b32 s86, 0x0202")
    e(f"v_and_b32 {v(1)}, 15, v0")
    e(f"v_lshrrev_b32 {v(2)}, 4, v0")
    e("s_lshl_b32 s90, s88, 4")
    e(f"v_add_u32 {v(2)}, s90, {v(2)}")
    e(f"v_and_b32 {v(4)}, 9, {v(1)}")
    e(f"v_bfe_u32 {v(5)}, {v(1)}, 1, 1")
    e(f"v_bfe_u32 {v(6)}, {v(1)}, 2, 1")
    e(f"v_lshl_or_b32 {v(4)}, {v(5)}, 2, {v(4)}")
    e(f"v_lshl_or_b32 {v(4)}, {v(6)}, 1, {v(4)}")
    e(f"v_lshlrev_b32 {v(4)}, 1, {v(4)}")
    e(f"v_lshlrev_b32 {v(24)}, 15, {v(2)}")
    e(f"v_lshl_add_u32 {v(24)}, {v(4)}, 4, {v(24)}")
    e(f"v_lshlrev_b32 {v(25)}, 12, {v(2)}")
    e(f"v_lshl_add_u32 {v(25)}, {v(4)}, 4, {v(25)}")
    e("s_lshr_b32 s91, s87, 1")
    e("s_and_b32 s92, s87, 1")
    e("s_lshl_b32 s93, s91, 10")
    e("s_lshl_b32 s92, s92, 9")
    e("s_add_u32 s93, s93, s92")
    e(f"s_add_u32 s93, s93, {WS_WA:#x}")
    e("s_lshr_b32 s94, s91, 3")
    e("s_lshl_b32 s94, s94, 10")
    e("s_add_u32 s94, s94, s92")
    e("s_and_b32 s91, s91, 7")
    e("s_lshl_b32 s91, s91, 1")
    e("s_add_u32 s94, s94, s91")
    e(f"s_add_u32 s94, s94, {WS_WI:#x}")
    e(f"v_mov_b32 {v(36)}, 0")
    e(f"v_mov_b32 {v(37)}, 0")
    e(f"v_mov_b32 {v(38)}, 0")
    e("s_mov_b32 s89, 0")
    if cfg.XEARLY:
        e("s_cmp_lg_u32 s95, 0")
        e("s_cbranch_scc1 L_prep_w0")
        e("s_waitcnt vmcnt(16)")
        e("s_branch L_pg")
        e("L_prep_w0:")
    e("s_waitcnt vmcnt(0)")
    a, b, c, d = 50, 51, 52, 53
    e("L_pg:")
    e("s_set_gpr_idx_on s89, 0x1")
    e("s_nop 0")
    for i in range(4):
        e(f"v_mov_b32 {v(50+i)}, {v(D+i)}")
    e("s_set_gpr_idx_off")
    for i, r in enumerate((a, b, c, d)):
        e(f"v_and_b32 {v(40+i)}, s76, {v(r)}")
    e(f"v_pk_max_u16 {v(44)}, {v(40)}, {v(41)}")
    e(f"v_pk_min_u16 {v(45)}, {v(40)}, {v(41)}")
    e(f"v_pk_max_u16 {v(46)}, {v(42)}, {v(43)}")
    e(f"v_pk_min_u16 {v(47)}, {v(42)}, {v(43)}")
    e(f"v_pk_min_u16 {v(44)}, {v(44)}, {v(46)}")
    e(f"v_pk_max_u16 {v(45)}, {v(45)}, {v(47)}")
    e(f"v_pk_max_u16 {v(44)}, {v(44)}, {v(45)}")
    e(f"v_pk_max_u16 {v(44)}, {v(44)}, s77")
    for i in range(4):
        e(f"v_pk_sub_u16 {v(40+i)}, {v(44)}, {v(40+i)} clamp")
    for i in range(4):
        e(f"v_pk_min_u16 {v(40+i)}, {v(40+i)}, s77")
    e(f"v_lshl_or_b32 {v(40)}, {v(41)}, 1, {v(40)}")
    e(f"v_lshl_or_b32 {v(40)}, {v(42)}, 2, {v(40)}")
    e(f"v_lshl_or_b32 {v(40)}, {v(43)}, 3, {v(40)}")
    e(f"v_xor_b32 {v(40)}, s78, {v(40)}")
    e("s_lshr_b32 s90, s89, 2")
    for ee in range(2):
        sel = 83 + ee
        e(f"v_bfe_u32 {v(41)}, {v(40)}, {16*ee}, 4")
        e(f"v_lshlrev_b32 {v(42)}, 2, {v(41)}")
        e(f"v_lshrrev_b64 v[{R+46}:{R+47}], {v(42)}, s[80:81]")
        e(f"v_and_b32 {v(46)}, 15, {v(46)}")
        e(f"v_lshl_or_b32 {v(36+ee)}, {v(46)}, s89, {v(36+ee)}")
        e(f"v_perm_b32 {v(48)}, {v(b)}, {v(a)}, s{sel}")
        e(f"v_perm_b32 {v(49)}, {v(d)}, {v(c)}, s{sel}")
        e(f"v_and_b32 {v(47)}, 3, {v(46)}")
        e(f"v_lshrrev_b32 {v(46)}, 2, {v(46)}")
        e(f"v_lshl_or_b32 {v(46)}, {v(46)}, 16, {v(47)}")
        e(f"v_mov_b32 {v(47)}, s85")
        e(f"v_mad_u32_u24 {v(46)}, {v(46)}, s86, {v(47)}")
        e(f"v_perm_b32 {v(54+ee)}, {v(49)}, {v(48)}, {v(46)}")
        e(f"v_lshlrev_b32 {v(42)}, 1, {v(41)}")
        e(f"v_lshrrev_b32 {v(43)}, {v(42)}, s82")
        e(f"v_and_b32 {v(43)}, 3, {v(43)}")
        if ee:
            e(f"v_lshlrev_b32 {v(43)}, 2, {v(43)}")
        e(f"v_lshl_or_b32 {v(38)}, {v(43)}, s89, {v(38)}")
    e("s_set_gpr_idx_on s90, 0x8")
    e("s_nop 0")
    e(f"v_mov_b32 {v(28)}, {v(54)}")
    e(f"v_mov_b32 {v(32)}, {v(55)}")
    e("s_set_gpr_idx_off")
    e("s_add_u32 s89, s89, 4")
    e("s_cmp_lt_u32 s89, 16")
    e("s_cbranch_scc1 L_pg")
    e(f"buffer_store_dwordx4 v[{R+28}:{R+31}], {v(24)}, s[20:23], s93 offen sc1")
    e(f"buffer_store_dwordx4 v[{R+32}:{R+35}], {v(24)}, s[20:23], s93 offen offset:16 sc1")
    e(f"buffer_store_short {v(36)}, {v(25)}, s[20:23], s94 offen sc1")
    e(f"buffer_store_short {v(37)}, {v(25)}, s[20:23], s94 offen offset:16 sc1")
    e(f"v_bcnt_u32_b32 {v(39)}, {v(38)}, 0")
    e(f"v_mov_b32 {v(40)}, {v(39)}")
    e("s_nop 1")
    for sh in (1, 2, 4, 8):
        e(f"v_add_u32_dpp {v(40)}, {v(40)}, {v(40)} row_shr:{sh} row_mask:0xf bank_mask:0xf bound_ctrl:0")
        e("s_nop 1")
    e(f"v_lshlrev_b32 {v(41)}, 8, {v(2)}")
    e("s_lshl_b32 s89, s87, 2")
    e(f"v_cmp_eq_u32 vcc, 15, {v(1)}")
    e("s_and_saveexec_b64 s[66:67], vcc")
    e(f"buffer_store_dword {v(40)}, {v(41)}, s[20:23], s89 offen offset:{WS_CNT} sc1")
    e("s_mov_b64 exec, s[66:67]")
    e(f"v_sub_u32 {v(40)}, {v(40)}, {v(39)}")
    e(f"v_lshlrev_b32 {v(41)}, 16, {v(2)}")
    e("s_lshl_b32 s93, s87, 10")
    e(f"s_add_u32 s93, s93, {WS_ENT:#x}")
    e("s_mov_b32 s89, 0")
    e("L_pe:")
    e(f"v_cmp_ne_u32 vcc, 0, {v(38)}")
    e("s_cbranch_vccz L_pe_done")
    e(f"v_and_b32 {v(42)}, 1, {v(38)}")
    e(f"v_cmp_ne_u32 vcc, 0, {v(42)}")
    e("s_and_saveexec_b64 s[66:67], vcc")
    e("s_cbranch_execz L_pe_next")
    e("s_and_b32 s90, s89, 12")
    e("s_and_b32 s91, s89, 1")
    e("s_add_u32 s92, s90, s91")
    e("s_set_gpr_idx_on s92, 0x1")
    e("s_nop 0")
    e(f"v_mov_b32 {v(43)}, {v(D+2)}")
    e("s_set_gpr_idx_off")
    e("s_bfe_u32 s92, s89, 0x10001")
    e("s_lshl_b32 s94, s92, 4")
    e(f"v_lshrrev_b32 {v(43)}, s94, {v(43)}")
    e(f"v_and_b32 {v(43)}, 0xffff, {v(43)}")
    e("s_lshl_b32 s94, s87, 18")
    e("s_lshl_b32 s90, s90, 14")
    e("s_add_u32 s94, s94, s90")
    e("s_add_u32 s91, s91, 2")
    e("s_lshl_b32 s91, s91, 24")
    e("s_add_u32 s94, s94, s91")
    e("s_lshl_b32 s92, s92, 26")
    e("s_add_u32 s94, s94, s92")
    e(f"v_or_b32 {v(43)}, s94, {v(43)}")
    e(f"v_lshl_add_u32 {v(43)}, {v(4)}, 26, {v(43)}")
    e(f"v_lshl_add_u32 {v(42)}, {v(40)}, 2, {v(41)}")
    e(f"buffer_store_dword {v(43)}, {v(42)}, s[20:23], s93 offen sc1")
    e(f"v_add_u32 {v(40)}, 1, {v(40)}")
    e("L_pe_next:")
    e("s_mov_b64 exec, s[66:67]")
    e(f"v_lshrrev_b32 {v(38)}, 1, {v(38)}")
    e("s_add_u32 s89, s89, 1")
    e("s_branch L_pe")
    e("L_pe_done:")


def gen_main():
    NB, PD, RCH, RU = cfg.NB, cfg.PD, cfg.RCH, cfg.RU
    nxt = [1]
    def alloc(n, align=1):
        while nxt[0] % align:
            nxt[0] += 1
        r = nxt[0]
        nxt[0] += n
        return r
    vTW = 0
    vLB = alloc(1); vRB = alloc(1); vDX = alloc(1); vST = alloc(1); vTC = alloc(1); vTR = alloc(1)
    IDX = alloc(32, 4)
    ACC = alloc(32, 4)
    EP = alloc(16, 4)
    BF = alloc(8 * NB, 4)
    BIA = alloc(8, 4)
    ONE = alloc(4, 4)
    RAF = alloc(2 * RCH * 4, 4)
    RIX = alloc(2 * RCH // 2, 4)
    RPK = alloc(2 * RCH * 2, 4)
    GD = alloc(16, 4)
    assert nxt[0] <= 256, nxt[0]
    assert ACC == 40 and BIA >= 64 + 56

    def A(j, s):
        b = (s * 2 + j) * 4
        return f"a[{b}:{b+3}]"
    def acc(j):
        b = ACC + j * 16
        return f"v[{b}:{b+15}]"
    def bf(s):
        return BF + (s % NB) * 8

    ds = []
    vm = []
    def is_mark(t):
        return isinstance(t, tuple) and t[0] == "Gmark"
    def ds_issue(tag, ins):
        e(ins); ds.append(tag)
    def vm_issue(tag, ins):
        e(ins); vm.append(tag)
    def ds_n(tag):
        idx = max(i for i, t in enumerate(ds) if t == tag)
        return sum(1 for t in ds[idx+1:] if not is_mark(t))
    def vm_n(tag):
        idx = max(i for i, t in enumerate(vm) if t == tag)
        return len(vm) - 1 - idx
    def wait(dtag=None, vtag=None):
        w = []
        if vtag is not None:
            w.append(f"vmcnt({min(vm_n(vtag), 63)})")
        if dtag is not None:
            w.append(f"lgkmcnt({min(ds_n(dtag), 15)})")
        e("s_waitcnt " + " ".join(w))

    name = "standalone__structured_sparse_n_m__ragged_kernel"
    e(f".globl {name}")
    e(".p2align 8")
    e(f".type {name},@function")
    e(f"{name}:")
    e("s_cmp_ge_u32 s2, 256")
    e("s_cbranch_scc1 L_main_end")
    if cfg.PROF or cfg.DBG:
        e("s_memtime s[48:49]")
        e("s_memrealtime s[96:97]")
        e("s_mov_b32 s52, 0")
    e("s_load_dwordx4 s[4:7], s[0:1], 0")
    e("s_load_dwordx4 s[8:11], s[0:1], 16")
    e("s_load_dwordx4 s[72:75], s[0:1], 32")
    e(f"v_lshrrev_b32 v{vTR}, 6, v0")
    e("s_nop 0")
    e(f"v_readfirstlane_b32 s24, v{vTR}")
    e("s_and_b32 s25, s2, 7")
    e("s_lshr_b32 s26, s2, 3")
    e("s_and_b32 s27, s26, 3")
    e("s_lshr_b32 s26, s26, 2")
    e("s_lshl_b32 s25, s25, 3")
    e("s_add_u32 s26, s26, s25")
    e("s_lshl_b32 s28, s27, 2")
    e("s_add_u32 s28, s28, s24")
    e("s_lshr_b32 s87, s2, 1")
    e("s_and_b32 s88, s2, 1")
    e("s_mov_b32 s95, 0")
    e("s_waitcnt lgkmcnt(0)")
    e("s_mov_b32 s12, s4"); e("s_and_b32 s13, s5, 0xffff"); e("s_mov_b32 s14, 0x2000000"); e("s_mov_b32 s15, 0x00020000")
    e("s_mov_b32 s16, s10"); e("s_and_b32 s17, s11, 0xffff"); e("s_mov_b32 s18, 0x2000000"); e("s_mov_b32 s19, 0x00020000")
    e("s_mov_b32 s20, s74"); e("s_and_b32 s21, s75, 0xffff"); e(f"s_mov_b32 s22, {WS_SIZE:#x}"); e("s_mov_b32 s23, 0x00020000")
    e("s_mov_b32 s44, s8"); e("s_and_b32 s45, s9, 0xffff"); e("s_mov_b32 s46, 0x800"); e("s_mov_b32 s47, 0x00020000")
    e("s_mov_b32 s68, s6"); e("s_and_b32 s69, s7, 0xffff"); e("s_mov_b32 s70, 0x200000"); e("s_mov_b32 s71, 0x00020000")
    e("s_and_b32 s73, s73, 0xffff"); e("s_mov_b32 s74, 0x100"); e("s_mov_b32 s75, 0x00020000")
    e(f"v_mov_b32 v{GD+9}, 0")
    e(f"v_mov_b32 v{GD+10}, 1")
    e(f"v_and_b32 v{vDX}, 63, v0")
    e(f"v_lshlrev_b32 v{vTC}, 6, v{vDX}")
    e(f"v_lshlrev_b32 v{vDX}, 4, v{vDX}")
    e("s_lshl_b32 s37, s26, 19")
    e("s_lshl_b32 s36, s2, 2")
    e("s_add_u32 s36, s36, s24")
    e("s_cmp_lg_u32 s36, 3")
    e("s_cbranch_scc1 L_no_nonce")
    e("s_memrealtime s[90:91]")
    e("s_waitcnt lgkmcnt(0)")
    e("s_or_b32 s90, s90, 1")
    e(f"v_mov_b32 v{GD+11}, s90")
    e(f"v_cmp_eq_u32 vcc, 0, v{vDX}")
    e("s_and_saveexec_b64 s[66:67], vcc")
    e(f"buffer_store_dword v{GD+11}, v{GD+9}, s[72:75], 0 offen sc1")
    e("s_mov_b64 exec, s[66:67]")
    e("L_no_nonce:")
    e("s_cmp_ge_u32 s2, 128")
    e("s_cbranch_scc1 L_prep_skip")
    e("L_prep_again:")
    gen_prep_slice()
    e("s_cmp_eq_u32 s95, 0")
    e("s_cbranch_scc1 L_prep_signal0")
    e("s_add_u32 s87, s87, 1")
    e("s_cmp_lt_u32 s87, 64")
    e("s_cbranch_scc1 L_prep_again")
    e("s_waitcnt vmcnt(0)")
    e("s_barrier")
    e("s_branch L_sync_done")
    e("L_prep_signal0:")
    if cfg.PROF:
        e("s_memrealtime s[56:57]")
    e(f"buffer_load_dword v{GD+11}, v{GD+9}, s[72:75], 0 offen sc1")
    e(f"s_waitcnt vmcnt(0)")
    e("s_barrier")
    if cfg.PROF:
        e("s_memrealtime s[54:55]")
        e("s_waitcnt lgkmcnt(0)")
        e("s_mov_b32 s99, s54")
        e("s_mov_b32 s57, s56")
    e("s_cmp_lg_u32 s24, 0")
    e("s_cbranch_scc1 L_x0")
    e("s_mov_b32 s38, 1")
    e("s_memrealtime s[90:91]")
    e("s_branch L_nonce_chk")
    e("L_prep_skip:")
    e("s_cmp_lg_u32 s24, 0")
    e("s_cbranch_scc1 L_x0")
    e("s_mov_b32 s38, 0")
    e("s_memrealtime s[90:91]")
    for _ in range(cfg.SLP0 // 64):
        e("s_sleep 64")
    e("L_nonce_poll:")
    e(f"buffer_load_dword v{GD+11}, v{GD+9}, s[72:75], 0 offen sc1")
    e("s_waitcnt vmcnt(0)")
    e("L_nonce_chk:")
    e(f"v_readfirstlane_b32 s89, v{GD+11}")
    e("s_memrealtime s[92:93]")
    e("s_waitcnt lgkmcnt(0)")
    e("s_sub_u32 s92, s92, s90")
    e("s_cmp_lg_u32 s89, 0")
    e("s_cbranch_scc1 L_nonce_ok")
    e("s_sleep 8")
    e(f"s_cmp_lt_u32 s92, {cfg.TMO}")
    e("s_cbranch_scc1 L_nonce_poll")
    e("s_branch L_poll_fail")
    e("L_nonce_ok:")
    e("s_cmp_eq_u32 s38, 0")
    e("s_cbranch_scc1 L_poll_setup")
    e("s_lshl_b32 s36, s88, 6")
    e("s_add_u32 s36, s36, s87")
    e("s_lshl_b32 s36, s36, 7")
    e(f"s_add_u32 s36, s36, {WS_FLG:#x}")
    e("v_cmp_eq_u32 vcc, 0, v0")
    e("s_and_saveexec_b64 s[66:67], vcc")
    e(f"buffer_store_dword v{GD+11}, v{GD+9}, s[20:23], s36 offen sc1")
    e("s_mov_b64 exec, s[66:67]")
    e("L_poll_setup:")
    e("s_lshr_b32 s36, s27, 1")
    e("s_lshl_b32 s36, s36, 13")
    e(f"s_add_u32 s36, s36, {WS_FLG:#x}")
    e(f"v_lshlrev_b32 v{GD+12}, 3, v{vDX}")
    e("L_poll:")
    e(f"buffer_load_dword v{GD+11}, v{GD+12}, s[20:23], s36 offen sc1")
    e("s_memrealtime s[92:93]")
    e("s_waitcnt vmcnt(0) lgkmcnt(0)")
    e(f"v_cmp_ne_u32 vcc, s89, v{GD+11}")
    e("s_sub_u32 s92, s92, s90")
    e("s_cmp_eq_u64 vcc, 0")
    e("s_cbranch_scc1 L_poll_ok")
    if cfg.SLP: e(f"s_sleep {cfg.SLP}")
    e(f"s_cmp_lt_u32 s92, {cfg.TMO}")
    e("s_cbranch_scc1 L_poll")
    e("L_poll_fail:")
    e(f"v_mov_b32 v{GD+9}, 1")
    e("L_poll_ok:")
    if not cfg.WSC and cfg.INV:
        e("buffer_inv sc1")
        e("s_waitcnt vmcnt(0)")
    e(f"v_mov_b32 v{GD+10}, {LDS_SCR + 256}")
    e(f"ds_write_b32 v{GD+10}, v{GD+9}")
    e("s_waitcnt lgkmcnt(0)")
    e("s_branch L_sync_wait")
    e("L_x0:")
    e("s_sub_u32 s36, s24, 1")
    if cfg.XEARLY:
        e("s_cmp_lt_u32 s2, 128")
        e("s_cbranch_scc1 L_x0_done")
    e("s_mul_i32 s38, s36, 11")
    e("s_add_u32 s39, s38, 11")
    e("s_min_u32 s39, s39, 32")
    e("X0LOOP")
    e("L_x0_done:")
    e(f"s_mov_b32 m0, {LDS_SCR}")
    e("s_lshl_b32 s40, s27, 14")
    e("s_add_u32 s40, s40, s37")
    e("s_lshl_b32 s38, s36, 12")
    e("s_add_u32 s40, s40, s38")
    for tb in range(1, cfg.TD):
        e(f"s_add_u32 s38, s40, {tb * 0x10000}")
        e(f"buffer_load_dword v{vTC}, s[12:15], s38 offen lds")
        e(f"s_add_u32 s38, s40, {tb * 0x10000 + 4096}")
        e(f"buffer_load_dword v{vTC}, s[12:15], s38 offen lds")
    e("L_sync_wait:")
    if cfg.PROF:
        e("s_memrealtime s[58:59]")
        e("s_waitcnt lgkmcnt(0)")
        e("s_mov_b32 s100, s58")
    e("s_barrier")
    e(f"v_mov_b32 v{GD+10}, {LDS_SCR + 256}")
    e(f"ds_read_b32 v{GD+9}, v{GD+10}")
    e("s_waitcnt lgkmcnt(0)")
    e(f"v_readfirstlane_b32 s95, v{GD+9}")
    e("s_mov_b32 s87, 0")
    e("s_lshr_b32 s88, s27, 1")
    e("s_cmp_lg_u32 s95, 0")
    e("s_cbranch_scc1 L_prep_again")
    e("L_sync_done:")
    if cfg.PROF:
        e("s_mov_b32 s94, s57")
        e("s_mov_b32 s95, s99")
    if cfg.DBG:
        e("s_memrealtime s[100:101]")
    if cfg.PROF:
        e("s_memtime s[54:55]")
        e("s_memrealtime s[60:61]")
        e("s_waitcnt lgkmcnt(0)")
        e("s_sub_u32 s53, s54, s48")
        e("s_mov_b32 s101, s60")
    T = GD
    TT = ACC
    e(f"v_and_b32 v{T}, 63, v0")
    e(f"v_lshlrev_b32 v{TT+0}, 2, v{T}")
    e(f"v_lshlrev_b32 v{TT+1}, 10, v{T}")
    e(f"v_lshlrev_b32 v{vDX}, 4, v{T}")
    for j in range(2):
        e("s_lshl_b32 s36, s28, 9")
        e(f"s_add_u32 s36, s36, {WS_CNT + j*256:#x}")
        vm_issue("ent", f"buffer_load_dword v{TT+4+12*j}, v{TT+0}, s[20:23], s36 offen sc1")
        e("s_lshl_b32 s36, s28, 17")
        e(f"s_add_u32 s36, s36, {WS_ENT + j*0x10000:#x}")
        vm_issue("ent", f"buffer_load_dwordx4 v[{TT+8+12*j}:{TT+11+12*j}], v{TT+1}, s[20:23], s36 offen sc1")
        vm_issue("ent", f"buffer_load_dwordx4 v[{TT+12+12*j}:{TT+15+12*j}], v{TT+1}, s[20:23], s36 offen offset:16 sc1")
    e(f"v_and_b32 v{T+1}, 31, v0")
    e(f"v_bfe_u32 v{T+2}, v0, 5, 1")
    e(f"v_and_b32 v{T+3}, 0x13, v{T+1}")
    e(f"v_bfe_u32 v{T+4}, v{T+1}, 2, 1")
    e(f"v_lshl_or_b32 v{T+3}, v{T+4}, 3, v{T+3}")
    e(f"v_bfe_u32 v{T+4}, v{T+1}, 3, 1")
    e(f"v_lshl_or_b32 v{T+3}, v{T+4}, 2, v{T+3}")
    e(f"v_lshlrev_b32 v{T+3}, 1, v{T+3}")
    e("s_lshl_b32 s36, s28, 7")
    vm_issue("bias", f"buffer_load_ushort v{BIA}, v{T+3}, s[44:47], s36 offen")
    vm_issue("bias", f"buffer_load_ushort v{BIA+4}, v{T+3}, s[44:47], s36 offen offset:64")
    e("s_lshl_b32 s36, s28, 13")
    e(f"s_add_u32 s36, s36, {WS_WI:#x}")
    for j in range(2):
        for u in range(4):
            b = IDX + j * 16 + u * 4
            if j == 1 and u == 0:
                e("s_add_u32 s36, s36, 0x1000")
            vm_issue("W", f"buffer_load_dwordx4 v[{b}:{b+3}], v{vDX}, s[20:23], s36 offen offset:{u*1024}" + (" sc1" if cfg.WSC else ""))
    e("s_lshl_b32 s42, s28, 16")
    e(f"s_add_u32 s42, s42, {WS_WA:#x}")
    e("s_add_u32 s43, s42, 0x8000")
    def w_loads(s0, s1):
        for s in range(s0, s1):
            if s % 4 == 0 and s:
                e("s_add_u32 s42, s42, 0x1000")
                e("s_add_u32 s43, s43, 0x1000")
            for j in range(2):
                vm_issue("W", f"buffer_load_dwordx4 {A(j,s)}, v{vDX}, s[20:23], s{42+j} offen offset:{(s%4)*1024}" + (" sc1" if cfg.WSC else ""))
    w_loads(0, 12)
    e(f"v_mul_u32_u24 v{vRB}, {RS}, v{T+1}")
    e(f"v_lshl_add_u32 v{vLB}, v{T+2}, 4, v{vRB}")
    e(f"v_lshrrev_b32 v{T+6}, 3, v{T}")
    e(f"v_and_b32 v{T+7}, 7, v{T}")
    if cfg.PERM:
        e(f"v_and_b32 v{vST}, 15, v{T}")
        e(f"v_lshlrev_b32 v{vST}, 11, v{vST}")
        e(f"v_bfe_u32 v{T+4}, v{T}, 4, 1")
        e(f"v_lshl_add_u32 v{vST}, v{T+4}, 5, v{vST}")
        e(f"v_lshl_add_u32 v{vST}, v{T+2}, 4, v{vST}")
    else:
        e(f"v_lshlrev_b32 v{vST}, 11, v{T+6}")
        e(f"v_lshl_add_u32 v{vST}, v{T+7}, 4, v{vST}")
    e(f"s_mul_i32 s38, s24, {32*TRS}")
    e(f"s_add_u32 s38, s38, {LDS_TR}")
    e(f"v_mul_u32_u24 v{vTR}, {TRS}, v{T+6}")
    e(f"v_lshl_add_u32 v{vTR}, v{T+7}, 4, v{vTR}")
    e(f"v_add_u32 v{vTR}, s38, v{vTR}")
    e(f"v_mul_u32_u24 v{vTW}, {TRS}, v{T+1}")
    e(f"v_lshl_add_u32 v{vTW}, v{T+2}, 4, v{vTW}")
    e(f"v_add_u32 v{vTW}, s38, v{vTW}")
    e(f"v_lshlrev_b32 v{vTC}, 6, v{T}")
    e(f"v_lshlrev_b32 v{T+3}, 3, v{T+2}")
    e(f"s_mul_i32 s35, s24, {8*RS}")
    e(f"s_add_u32 s36, s35, {BUF1}")
    e(f"v_add_u32 v{TT+2}, s36, v{vDX}")
    e(f"v_add_u32 v{TT+3}, s38, v{vDX}")
    Z = TT + 28
    for i in range(4):
        e(f"v_mov_b32 v{Z+i}, 0")
    e(f"v_mov_b32 v{TT+32}, {PADOFF | (PADOFF << 16):#x}")
    e(f"v_add_u32 v{TT+33}, s38, v{TT+0}")
    for j in range(2):
        for c in range(RCH):
            e(f"ds_write_b128 v{TT+2}, v[{Z}:{Z+3}] offset:{(4*j + (c>>1))*RS + (c&1)*1024}")
        e(f"ds_write_b128 v{TT+3}, v[{Z}:{Z+3}] offset:{j*1024}")
    e(f"ds_write_b32 v{TT+33}, v{TT+32} offset:2048")
    e(f"v_mov_b32 v{T+6}, 0x3f803f80")
    e(f"v_mov_b32 v{T+7}, 0x3f803f80")
    e(f"ds_write_b64 v{vRB}, v[{T+6}:{T+7}] offset:{PADOFF}")
    e(f"ds_write_b64 v{vRB}, v[{T+6}:{T+7}] offset:{BUF1+PADOFF}")
    wait(vtag="ent")
    C = TT + 34; S = TT + 35; E = TT + 36; t = TT + 37
    e("s_mov_b32 s58, 0")
    e(f"s_add_u32 s59, s35, {BUF1}")
    e("s_mov_b32 s60, s38")
    e(f"s_add_u32 s61, s38, 2048")
    e("L_bj:")
    e("s_set_gpr_idx_on s58, 0x1")
    e("s_nop 0")
    e(f"v_mov_b32 v{C}, v{TT+4}")
    e("s_set_gpr_idx_off")
    e(f"v_mov_b32 v{S}, v{C}")
    e(f"v_cmp_lt_u32 vcc, 8, v{C}")
    for sh in (1, 2, 4, 8):
        e("s_nop 0")
        e(f"v_add_u32_dpp v{S}, v{S}, v{S} row_shr:{sh} row_mask:0xf bank_mask:0xf bound_ctrl:0")
        e("s_nop 0")
    e("s_nop 0")
    e(f"v_add_u32_dpp v{S}, v{S}, v{S} row_bcast:15 row_mask:0xa bank_mask:0xf")
    e("s_nop 1")
    e(f"v_add_u32_dpp v{S}, v{S}, v{S} row_bcast:31 row_mask:0xc bank_mask:0xf")
    e("s_nop 1")
    e(f"v_readlane_b32 s36, v{S}, 63")
    e(f"v_sub_u32 v{S}, v{S}, v{C}")
    e("s_cmp_lg_u64 vcc, 0")
    e("s_cselect_b32 s62, 1, 0")
    e(f"s_cmp_gt_u32 s36, {8*RCH}")
    e("s_cselect_b32 s62, 1, s62")
    e("s_add_u32 s36, s36, 7")
    e("s_lshr_b32 s36, s36, 3")
    e("s_cmp_eq_u32 s62, 0")
    e("s_cselect_b32 s36, s36, 0")
    e("s_cmp_eq_u32 s58, 0")
    e("s_cselect_b32 s30, s36, s30")
    e("s_cselect_b32 s64, s62, s64")
    e("s_mov_b32 s31, s36")
    e("s_mov_b32 s65, s62")
    e("s_cmp_lg_u32 s62, 0")
    e("s_cbranch_scc1 L_bj_next")
    e("s_mov_b32 s63, 0")
    e("L_be:")
    e(f"v_cmp_lt_u32 vcc, s63, v{C}")
    e("s_and_saveexec_b64 s[66:67], vcc")
    e("s_cbranch_execz L_be_done")
    e("s_add_u32 s36, s58, s63")
    e("s_set_gpr_idx_on s36, 0x1")
    e("s_nop 0")
    e(f"v_mov_b32 v{E}, v{TT+8}")
    e("s_set_gpr_idx_off")
    e(f"v_add_u32 v{t}, s63, v{S}")
    e(f"v_lshrrev_b32 v{t+1}, 3, v{t}")
    e(f"v_bfe_u32 v{t+2}, v{t}, 2, 1")
    e(f"v_and_b32 v{t+3}, 3, v{t}")
    e(f"v_lshrrev_b32 v{t+4}, 26, v{E}")
    e(f"v_lshl_add_u32 v{t+4}, v{t+2}, 5, v{t+4}")
    e(f"v_lshlrev_b32 v{t+4}, 4, v{t+4}")
    e(f"v_lshrrev_b32 v{t+5}, 1, v{t+1}")
    e(f"v_and_b32 v{t+6}, 1, v{t+1}")
    e(f"v_mul_u32_u24 v{t+7}, {RS}, v{t+5}")
    e(f"v_lshl_add_u32 v{t+7}, v{t+6}, 10, v{t+7}")
    e(f"v_add3_u32 v{t+7}, v{t+7}, v{t+4}, s59")
    e(f"v_lshl_add_u32 v{t+7}, v{t+3}, 2, v{t+7}")
    e(f"ds_write_b16 v{t+7}, v{E}")
    e(f"v_lshl_add_u32 v{t+8}, v{t+5}, 2, v{t+4}")
    e(f"v_add_u32 v{t+8}, s60, v{t+8}")
    e(f"v_lshlrev_b32 v{t+9}, 4, v{t+6}")
    e(f"v_lshl_add_u32 v{t+9}, v{t+3}, 2, v{t+9}")
    e(f"v_bfe_u32 v{t+10}, v{E}, 24, 2")
    e(f"v_lshlrev_b32 v{t+10}, v{t+9}, v{t+10}")
    e(f"ds_or_b32 v{t+8}, v{t+10}")
    e(f"v_lshlrev_b32 v{t+8}, 4, v{t+1}")
    e(f"v_bfe_u32 v{t+9}, v{t}, 1, 1")
    e(f"v_lshl_add_u32 v{t+8}, v{t+9}, 3, v{t+8}")
    e(f"v_lshl_add_u32 v{t+8}, v{t+2}, 2, v{t+8}")
    e(f"v_and_b32 v{t+9}, 1, v{t}")
    e(f"v_lshl_add_u32 v{t+8}, v{t+9}, 1, v{t+8}")
    e(f"v_add_u32 v{t+8}, s61, v{t+8}")
    e(f"v_bfe_u32 v{t+10}, v{E}, 16, 8")
    e(f"v_lshlrev_b32 v{t+10}, 3, v{t+10}")
    e(f"ds_write_b16 v{t+8}, v{t+10}")
    e("s_mov_b64 exec, s[66:67]")
    e("s_add_u32 s63, s63, 1")
    e("s_cmp_lt_u32 s63, 8")
    e("s_cbranch_scc1 L_be")
    e("L_be_done:")
    e("s_mov_b64 exec, s[66:67]")
    e("L_bj_next:")
    e("s_add_u32 s58, s58, 12")
    e(f"s_add_u32 s59, s59, {4*RS}")
    e("s_add_u32 s60, s60, 1024")
    e("s_add_u32 s61, s61, 128")
    e("s_cmp_lt_u32 s58, 24")
    e("s_cbranch_scc1 L_bj")
    e(f"v_add_u32 v{TT+33}, s38, v{T+3}")
    for j in range(2):
        for c in range(RCH):
            b = RAF + (j * RCH + c) * 4
            e(f"ds_read_b128 v[{b}:{b+3}], v{TT+2} offset:{(4*j + (c>>1))*RS + (c&1)*1024}")
            b = RPK + (j * RCH + c) * 2
            e(f"ds_read_b64 v[{b}:{b+1}], v{TT+33} offset:{2048 + j*128 + c*16}")
        e(f"ds_read_b128 v[{RIX+j*4}:{RIX+j*4+3}], v{TT+3} offset:{j*1024}")
    w_loads(12, 32)
    e("s_lshl_b32 s37, s26, 19")
    e("s_lshl_b32 s33, s24, 14")
    e("s_add_u32 s37, s37, s33")
    e("s_add_u32 s37, s37, 0x10000")
    e("s_lshl_b32 s41, s26, 19")
    e("s_lshl_b32 s33, s27, 14")
    e("s_add_u32 s41, s41, s33")
    e("s_lshl_b32 s33, s24, 12")
    e("s_add_u32 s41, s41, s33")
    e(f"s_add_u32 s41, s41, {cfg.TD * 0x10000}")
    e("s_lshl_b32 s33, s26, 19")
    e("s_lshl_b32 s36, s28, 7")
    e("s_add_u32 s33, s33, s36")
    e("s_mov_b32 s34, 0x40000000")
    e("s_mov_b32 s39, 0")
    e(f"s_mov_b32 s29, {BUF1}")
    e(f"s_add_u32 s32, s35, {BUF1}")
    wait(vtag="bias")
    e(f"v_cmp_eq_u32 vcc, 0, v{T+2}")
    for i in (1, 2, 3, 5, 6, 7):
        e(f"v_mov_b32 v{BIA+i}, 0")
    e(f"v_cndmask_b32 v{BIA}, 0, v{BIA}, vcc")
    e(f"v_cndmask_b32 v{BIA+4}, 0, v{BIA+4}, vcc")
    e(f"v_mov_b32 v{ONE}, 0x3f80")
    for i in (1, 2, 3):
        e(f"v_mov_b32 v{ONE+i}, 0")
    e("s_waitcnt vmcnt(0) lgkmcnt(0)")
    e("s_barrier")
    if cfg.PROF:
        e("s_memtime s[50:51]")
        e("s_waitcnt lgkmcnt(0)")
    if cfg.DBG:
        e("s_memrealtime s[50:51]")
        e("s_waitcnt lgkmcnt(0)")
    vm.clear()

    def init_acc(j):
        return f"v_mfma_f32_32x32x16_bf16 {acc(j)}, v[{BIA+4*j}:{BIA+4*j+3}], v[{ONE}:{ONE+3}], 0"

    def b_reads(s):
        b = bf(s)
        base = 64 * s
        return [("ds", ("B", s), f"ds_read_b128 v[{b}:{b+3}], v{vLB} offset:{base}"),
                ("ds", ("B", s), f"ds_read_b128 v[{b+4}:{b+7}], v{vLB} offset:{base+32}")]

    def g_items(j, c, gs, tag):
        r = []
        pk = RPK + (j * RCH + c) * 2
        for pb in range(4):
            d = GD + gs * 8 + 2 * pb
            r.append(("raw", f"v_add_u32_sdwa v{d}, v{vRB}, v{pk + (pb>>1)} dst_sel:DWORD dst_unused:UNUSED_PAD src0_sel:DWORD src1_sel:WORD_{pb&1}" if not cfg.RNOA else "s_nop 0"))
        for pb in range(4):
            d = GD + gs * 8 + 2 * pb
            r.append(("ds", tag, f"ds_read_b64 v[{d}:{d+1}], v{d}") if not cfg.RNOG else ("dsx", tag))
        return r

    uid = [0]
    def gather_block(j, c, gs):
        uid[0] += 1
        lbl = f"L_g{uid[0]}"
        e(f"s_cmp_le_u32 s{30+j}, {c}")
        e(f"s_cbranch_scc1 {lbl}")
        for it in g_items(j, c, gs, None):
            e(it[-1])
        e(f"{lbl}:")
        ds.append(("Gmark", j, c))
    def mfma_block(j, c, gs):
        cond = c >= RU
        if cond:
            uid[0] += 1
            lbl = f"L_m{uid[0]}"
            e(f"s_cmp_le_u32 s{30+j}, {c}")
            e(f"s_cbranch_scc1 {lbl}")
            wait(dtag=("Gmark", j, c))
        elif not cfg.RNOG:
            wait(dtag=("G", j, c))
        ra = RAF + (j * RCH + c) * 4
        if not cfg.RNOM: e(f"v_smfmac_f32_32x32x32_bf16 {acc(j)}, v[{ra}:{ra+3}], v[{GD+gs*8}:{GD+gs*8+7}], v{RIX + j*4 + (c>>1)}" + (" abid:1" if c & 1 else ""))
        if cond:
            e(f"{lbl}:")

    def emit_items(items):
        for x in items:
            if x[0] == "raw": e(x[1])
            elif x[0] == "ds": ds_issue(x[1], x[2])
            elif x[0] == "vm": vm_issue(x[1], x[2])
            elif x[0] == "G": gather_block(*x[1:])
            elif x[0] == "M": mfma_block(*x[1:])
            elif x[0] == "W": wait(dtag=x[1])
            elif x[0] == "dsx": ds.append(("Gmark", x[1])); ds.append(x[1]) if False else None
            else: raise Exception(x)

    def epilogue_items():
        if cfg.PERM:
            wr = [("raw", f"v_permlane16_swap_b32 v{EP + 8*(i>>2) + (i&3)}, v{EP + 8*(i>>2) + 4 + (i&3)}") for i in range(8)]
            st = []
            for i in range(4):
                a = EP + 4 * i
                st.append(("raw", f"s_add_u32 s38, s34, {(i&1)*16*2048}"))
                st.append(("vm", "st", f"buffer_store_dwordx4 v[{a}:{a+3}], v{vST}, s[16:19], s38 offen offset:{64*(i>>1)}" + ["", " nt", " sc1", " sc0 sc1", " sc1 nt"][cfg.STM]))
            return wr, [], st
        wr = [("ds", "tw", f"ds_write_b128 v{vTW}, v[{EP+4*i}:{EP+4*i+3}] offset:{32*i}") for i in range(4)]
        rb = []; st = []
        for i in range(4):
            a = EP + 4 * i
            rb.append(("ds", ("tr", i), f"ds_read_b128 v[{a}:{a+3}], v{vTR} offset:{i*8*TRS}"))
            st.append(("W", ("tr", i)))
            st.append(("raw", f"s_add_u32 s38, s34, {i*8*2048}"))
            st.append(("vm", "st", f"buffer_store_dwordx4 v[{a}:{a+3}], v{vST}, s[16:19], s38 offen" + ["", " nt", " sc1", " sc0 sc1", " sc1 nt"][cfg.STM]))
        return wr, rb, st

    if cfg.SEG:
        for i in range(80, 88): e(f"s_mov_b32 s{i}, 0")
        e("s_memtime s[76:77]")
        e("s_waitcnt lgkmcnt(0)")
        e("s_mov_b32 s79, s76")
    e(init_acc(0))
    for s in range(PD):
        emit_items(b_reads(s))

    e("L_loop:")
    rq = []
    def at(g, items):
        for it in items:
            rq.append((g, it))
    order = [(j, c) for c in range(RCH) for j in range(2)] if not cfg.NORES else []
    for z, (j, c) in enumerate(order):
        g0 = int(min(cfg.RPER, (2 * (32 - PD) - 1 - cfg.RLAT) * 10 // 15) * z / 10)
        if c >= RU:
            at(g0, [("G", j, c, z & 1)])
        else:
            gi = g_items(j, c, z & 1, ("G", j, c))
            if cfg.GSPREAD:
                at(g0, [gi[0], gi[1], gi[4]]); at(g0 + 1, [gi[5], gi[2]]); at(g0 + 2, [gi[6], gi[3]]); at(g0 + 3, [gi[7]])
            else:
                at(g0, gi[:4]); at(g0 + 1, gi[4:])
        at(g0 + cfg.RLAT, [("M", j, c, z & 1)])
    if not cfg.NODMA:
        for r in range(8):
            at(cfg.DG0 + cfg.DGS * r, [("raw", f"s_add_u32 m0, s32, {r*RS}"), ("raw", f"s_add_u32 s36, s40, {r*2048}"),
                             ("vm", "Xn", f"buffer_load_dwordx4 v{vDX}, s[12:15], s36 offen lds")])
            at(cfg.DG0 + cfg.DGS * r + cfg.DGS // 2, [("vm", "Xn", f"buffer_load_dwordx4 v{vDX}, s[12:15], s36 offen offset:1024 lds")])
        at(cfg.DG0 + cfg.DGS * 8, [("raw", f"s_mov_b32 m0, {LDS_SCR}"), ("raw", "s_nop 0"), ("vm", "touch", f"buffer_load_dword v{vTC}, s[12:15], s42 offen lds")])
    if not cfg.NOEPI:
        wr, rb, st = epilogue_items()
        if cfg.PERM:
            at(cfg.EW0, wr[:4]); at(cfg.EW0 + 1, wr[4:])
            for i in range(4):
                at(cfg.ES0 + cfg.ESS * i, st[2*i:2*i+2])
        elif not cfg.NOTR:
            for i in range(4):
                at(cfg.EW0 + cfg.EWS * i, [wr[i]])
            for i in range(4):
                at(cfg.ER0 + cfg.ERS * i, [rb[i]])
        for i in range(4):
            if not cfg.NOST and not cfg.PERM:
                at(cfg.ES0 + cfg.ESS * i, st[3*i + (1 if cfg.NOTR else 0):3*i+3])
    rq.sort(key=lambda t: t[0])
    def fill(gap):
        while rq and rq[0][0] <= gap:
            emit_items([rq.pop(0)[1]])

    e("s_cmp_lt_u32 s39, 7")
    e("s_cselect_b32 s40, s37, 0x40000000")
    e(f"s_cmp_lt_u32 s39, {8 - cfg.TD}")
    e("s_cselect_b32 s42, s41, 0x40000000")
    def M(j, s):
        e(f"v_smfmac_f32_32x32x32_bf16 {acc(j)}, {A(j,s)}, v[{bf(s)}:{bf(s)+7}], v{IDX + 16*j + (s>>1)}" + (" abid:1" if s & 1 else ""))
    def cvt(j, lo, hi):
        for i in range(lo, hi):
            e(f"v_cvt_pk_bf16_f32 v{EP+8*j+i}, v{ACC+16*j+2*i}, v{ACC+16*j+2*i+1}")
    def slow_path():
        e("s_or_b32 s36, s64, s65")
        e("s_cbranch_scc0 L_sp_end")
        e(f"v_lshrrev_b32 v{GD+13}, 4, v{vDX}")
        for r in (2, 3, 4, 5, 6, 7, 9, 10, 11):
            e(f"v_mov_b32 v{GD+r}, 0")
        e("s_mov_b32 s58, 0")
        e("L_sp_kr:")
        e("s_cmp_lt_u32 s58, 64")
        e("s_cselect_b32 s36, s64, s65")
        e("s_cmp_eq_u32 s36, 0")
        e("s_cbranch_scc1 L_sp_nx")
        e("s_lshl_b32 s59, s28, 7")
        e("s_add_u32 s59, s59, s58")
        e("s_lshl_b32 s60, s59, 2")
        e(f"buffer_load_dword v{GD+15}, v{GD+9}, s[20:23], s60 offen offset:{WS_CNT} sc1")
        e("s_lshl_b32 s59, s59, 10")
        e(f"s_add_u32 s59, s59, {WS_ENT:#x}")
        e("s_waitcnt vmcnt(0)")
        e(f"v_readfirstlane_b32 s60, v{GD+15}")
        e("s_nop 3")
        e("s_cmp_eq_u32 s60, 0")
        e("s_cbranch_scc1 L_sp_nx")
        e("L_sp_e:")
        e(f"buffer_load_dword v{GD+15}, v{GD+9}, s[20:23], s59 offen sc1")
        e("s_waitcnt vmcnt(0)")
        e(f"v_readfirstlane_b32 s62, v{GD+15}")
        e("s_nop 3")
        e("s_lshr_b32 s63, s62, 26")
        e(f"v_cmp_eq_u32 vcc, s63, v{GD+13}")
        e("s_and_b32 s63, s62, 0xffff")
        e(f"v_mov_b32 v{GD+14}, s63")
        e("s_bfe_u32 s63, s62, 0x80010")
        e("s_lshl_b32 s63, s63, 3")
        e(f"v_add_u32 v{GD}, s63, v{vRB}")
        e(f"v_cndmask_b32 v{GD+8}, 0, v{GD+14}, vcc")
        e("s_bfe_u32 s63, s62, 0x20018")
        e(f"v_mov_b32 v{GD+12}, s63")
        e(f"ds_read_b64 v[{GD}:{GD+1}], v{GD}")
        e("s_waitcnt lgkmcnt(0)")
        e("s_cmp_lt_u32 s58, 64")
        e("s_cbranch_scc0 L_sp_j1")
        e(f"v_smfmac_f32_32x32x32_bf16 {acc(0)}, v[{GD+8}:{GD+11}], v[{GD}:{GD+7}], v{GD+12}")
        e("s_branch L_sp_jd")
        e("L_sp_j1:")
        e(f"v_smfmac_f32_32x32x32_bf16 {acc(1)}, v[{GD+8}:{GD+11}], v[{GD}:{GD+7}], v{GD+12}")
        e("L_sp_jd:")
        e("s_add_u32 s59, s59, 4")
        e("s_sub_u32 s60, s60, 1")
        e("s_cmp_lg_u32 s60, 0")
        e("s_nop 4")
        e("s_cbranch_scc1 L_sp_e")
        e("L_sp_nx:")
        e("s_add_u32 s58, s58, 1")
        e("s_cmp_lt_u32 s58, 128")
        e("s_cbranch_scc1 L_sp_kr")
        e("L_sp_end:")
    assert PD == 3 and NB == 4
    wait(dtag=("B", 0))
    M(0, 0)
    cvt(1, 0, 4)
    emit_items(b_reads(3)[:1])
    wait(dtag=("B", 1))
    M(0, 1)
    cvt(1, 4, 8)
    emit_items(b_reads(3)[1:])
    e(init_acc(1))
    fill(0); fill(1)
    M(1, 0)
    emit_items(b_reads(4)[:1])
    fill(2)
    M(1, 1)
    emit_items(b_reads(4)[1:])
    fill(3)
    for s in range(2, 30):
        wait(dtag=("B", s))
        M(0, s)
        sn = s + PD
        rd = b_reads(sn) if sn < 32 else []
        emit_items(rd[:1])
        fill(2 * s)
        M(1, s)
        for _ in range(cfg.XMF):
            e(f"v_mfma_f32_32x32x16_bf16 {acc(1)}, v[{ONE}:{ONE+3}], v[{BIA+1}:{BIA+4}], {acc(1)}" if False else f"v_mfma_f32_16x16x32_bf16 v[{BIA+0}:{BIA+3}], v[{ONE}:{ONE+3}], v[{ONE}:{ONE+3}], v[{BIA+0}:{BIA+3}]" if False else f"v_smfmac_f32_32x32x32_bf16 {acc(1)}, v[{BIA+1-1+0}:{BIA+3}], v[{bf(s)}:{bf(s)+7}], v{RIX}" if False else "s_sleep 1")
        emit_items(rd[1:])
        fill(2 * s + 1)
        if s == 28:
            assert not rq, len(rq)
            slow_path()
        if s == 29:
            if cfg.PROF:
                e("s_memtime s[54:55]")
            if cfg.NODMA:
                e("s_waitcnt lgkmcnt(0)")
            else:
                e(f"s_waitcnt vmcnt({min(vm_n('Xn'),63)}) lgkmcnt(0)")
            e("s_barrier")
            if cfg.PROF:
                e("s_memtime s[56:57]")
                e("s_waitcnt lgkmcnt(0)")
                e("s_sub_u32 s56, s56, s54")
                e("s_add_u32 s52, s52, s56")
            e(f"v_add_u32 v{vLB}, s29, v{vLB}")
            e(f"v_add_u32 v{vRB}, s29, v{vRB}")
            emit_items(b_reads(0))
    M(0, 30)
    emit_items(b_reads(1))
    e("s_sub_u32 s32, s32, s29")
    e("s_sub_u32 s29, 0, s29")
    M(0, 31)
    e("s_mov_b32 s34, s33")
    e("s_add_u32 s33, s33, 0x10000")
    e("s_add_u32 s37, s37, 0x10000")
    e("s_add_u32 s41, s41, 0x10000")
    e("s_add_u32 s39, s39, 1")
    M(1, 30)
    emit_items(b_reads(2))
    e("s_cmp_lt_u32 s39, 8")
    e("s_nop 2")
    M(1, 31)
    cvt(0, 0, 8)
    e(init_acc(0))
    e("s_cbranch_scc1 L_loop")
    e("s_nop 7")
    cvt(1, 0, 8)
    wr, rb, st = epilogue_items()
    e("s_nop 1")
    emit_items(wr); emit_items(rb); emit_items(st)
    if cfg.PROF:
        e("s_memtime s[54:55]")
        e("s_memrealtime s[98:99]")
        e("s_waitcnt lgkmcnt(0)")
        e("s_sub_u32 s56, s50, s48")
        e("s_sub_u32 s57, s54, s50")
        e("s_sub_u32 s48, s98, s96")
        e("s_nop 4")
        e(f"v_mov_b32 v{GD}, s56")
        e(f"v_mov_b32 v{GD+1}, s52")
        e(f"v_mov_b32 v{GD+2}, s57")
        e(f"v_mov_b32 v{GD+3}, s48")
        e("s_lshl_b32 s36, s2, 2")
        e("s_add_u32 s36, s36, s24")
        e("s_lshl_b32 s36, s36, 4")
        e("s_add_u32 s36, s36, 0x8000000")
        e(f"v_mov_b32 v{GD+8}, 0")
        e(f"v_mov_b32 v{GD+4}, s94")
        e(f"v_mov_b32 v{GD+5}, s95")
        e(f"v_mov_b32 v{GD+6}, s53")
        e(f"v_mov_b32 v{GD+7}, 0")
        e(f"buffer_store_dwordx4 v[{GD}:{GD+3}], v{GD+8}, s[20:23], s36 offen")
        e("s_add_u32 s36, s36, 0x100000")
        e(f"buffer_store_dwordx4 v[{GD+4}:{GD+7}], v{GD+8}, s[20:23], s36 offen")
        e("s_nop 2")
        e(f"v_mov_b32 v{GD+4}, s96")
        e(f"v_mov_b32 v{GD+5}, s100")
        e(f"v_mov_b32 v{GD+6}, s101")
        e(f"v_mov_b32 v{GD+7}, s98")
        e("s_add_u32 s36, s36, 0x100000")
        e(f"buffer_store_dwordx4 v[{GD+4}:{GD+7}], v{GD+8}, s[20:23], s36 offen")
        if cfg.SEG:
            e("s_nop 2")
            for i in range(8): e(f"v_mov_b32 v{GD+i}, s{80+i}")
            e("s_add_u32 s36, s36, 0x100000")
            e(f"buffer_store_dwordx4 v[{GD}:{GD+3}], v{GD+8}, s[20:23], s36 offen")
            e("s_add_u32 s36, s36, 0x100000")
            e(f"buffer_store_dwordx4 v[{GD+4}:{GD+7}], v{GD+8}, s[20:23], s36 offen")
    if cfg.DBG:
        e("s_memrealtime s[56:57]")
        e("s_waitcnt vmcnt(0)")
        e("s_memrealtime s[98:99]")
        e("s_waitcnt lgkmcnt(0)")
        e("s_sub_u32 s98, s98, s96")
        e("s_sub_u32 s100, s100, s96")
        e("s_sub_u32 s50, s50, s96")
        e("s_sub_u32 s56, s56, s96")
        e(f"v_mov_b32 v{GD}, s100")
        e(f"v_mov_b32 v{GD+1}, s50")
        e(f"v_mov_b32 v{GD+2}, s56")
        e(f"v_mov_b32 v{GD+3}, s98")
        e(f"v_mov_b32 v{GD+4}, 0")
        e("s_and_b32 s36, s2, 63")
        e("s_or_b32 s36, s36, s24")
        e("s_cbranch_scc1 L_main_end")
        e("s_lshr_b32 s36, s2, 6")
        e("s_lshl_b32 s36, s36, 4")
        e(f"v_cmp_eq_u32 vcc, 0, v{vDX}")
        e("s_and_saveexec_b64 s[66:67], vcc")
        e(f"buffer_store_dwordx4 v[{GD}:{GD+3}], v{GD+4}, s[72:75], s36 offen")
    e("L_main_end:")
    e("s_endpgm")


gen_main()
_n = 0
L2 = []
for ln in L:
    if ln.strip() == "X0LOOP":
        _n += 1
        L2 += [f"L_x0_loop{_n}:", f"    s_mul_i32 s40, s38, {RS}", "    s_mov_b32 m0, s40", "    s_lshl_b32 s40, s38, 11", "    s_add_u32 s40, s40, s37",
               "    buffer_load_dwordx4 v3, s[12:15], s40 offen lds", "    buffer_load_dwordx4 v3, s[12:15], s40 offen offset:1024 lds",
               "    s_add_u32 s38, s38, 1", "    s_cmp_lt_u32 s38, s39", f"    s_cbranch_scc1 L_x0_loop{_n}"]
    else:
        L2.append(ln)
L = L2

tail = """
.section .rodata,"a"
.p2align 6
.amdhsa_kernel standalone__structured_sparse_n_m__ragged_kernel
  .amdhsa_next_free_vgpr 512
  .amdhsa_next_free_sgpr 102
  .amdhsa_accum_offset 256
  .amdhsa_group_segment_fixed_size 0
  .amdhsa_kernarg_size 48
  .amdhsa_user_sgpr_count 2
  .amdhsa_user_sgpr_kernarg_segment_ptr 1
  .amdhsa_system_sgpr_workgroup_id_x 1
.end_amdhsa_kernel
"""
open(OUT, "w").write(hdr + "\n".join(L) + "\n" + tail)
print("wrote", OUT, len(L), "lines")
```

```python
import sys, os

OUT = os.environ.get("GEN_OUT", "standalone__structured_sparse_n_m__ragged.s")

WS_CNT = 0x0
WS_WI = 0x4000
WS_WA = 0x40000
WS_ENT = 0x200000
WS_FLG = 0x400000
WS_SIZE = 0x10000000

class Cfg:
    NB = 4
    PD = 3
    RCH = 8
    RU = 6
    TD = 2
    RPER = 34
    RLAT = 6
    DGS = 4
    TMO = 20000
    SLP = 8
    SLP0 = 64
    PROF = 0
    XMF = 0
    PERM = 1
    NOST = 0
    NOTR = 0
    XEARLY = 0
    FSH = 7
    SEG = 0
    EW0 = 4
    EWS = 2
    ER0 = 11
    ERS = 1
    ES0 = 41
    ESS = 4
    DG0 = 0
    WSC = 1
    INV = 1
    GSPREAD = 1
    RNOG = 0
    RNOM = 0
    RNOA = 0
    STM = 0
    DBG = 0
    NODMA = 0
    NORES = 0
    NOEPI = 0

cfg = Cfg()
for a in sys.argv[1:]:
    k, v = a.split("=")
    setattr(cfg, k, int(v))

RS = 4144
BUF1 = 2064
PADOFF = 2048
LDS_X = 32 * RS
LDS_TR = LDS_X
TRS = 144
LDS_SCR = LDS_TR + 4 * 32 * TRS
LDS_TOTAL = LDS_SCR + 256 + 16

L = []
def e(s=""):
    L.append("    " + s if s and not s.endswith(":") else s)

hdr = f"""; 2:4 structured-sparse GEMM  out = x @ prune24(w) + b   (B*S=16384, D=1024), bf16
; @launch grid=(256,1,1) block=(256,1,1) lds={LDS_TOTAL}
.amdgcn_target "amdgcn-amd-amdhsa--gfx950"
.text
"""


def gen_prep_slice():
    TBL = {0: 4, 1: 4, 2: 4, 4: 8, 8: 12, 3: 4, 5: 8, 6: 9, 7: 4, 9: 12, 10: 13, 11: 4, 12: 14, 13: 8, 14: 9, 15: 4}
    T64 = 0
    for k, v in TBL.items():
        T64 |= v << (4 * k)
    ET = {7: 1, 11: 2, 13: 2, 14: 2, 15: 3}
    E32 = 0
    for k, v in ET.items():
        E32 |= v << (2 * k)
    R = 64
    def v(n): return f"v{R+n}"
    e(f"v_lshlrev_b32 {v(3)}, 2, v0")
    e("s_lshl_b32 s89, s87, 15")
    e("s_lshl_b32 s90, s88, 10")
    e("s_add_u32 s89, s89, s90")
    D = 8
    for kk in range(0, 16, 2):
        e(f"buffer_load_dword {v(D+kk)}, {v(3)}, s[68:71], s89 offen")
        e(f"buffer_load_dword {v(D+kk+1)}, {v(3)}, s[68:71], s89 offen offset:2048")
        if kk < 14:
            e("s_add_u32 s89, s89, 4096")
    if cfg.XEARLY:
        e("s_cmp_lg_u32 s95, 0")
        e("s_cbranch_scc1 L_prep_nox")
        e("s_lshl_b32 s38, s24, 3")
        e("s_add_u32 s39, s38, 8")
        e("X0LOOP")
        e("L_prep_nox:")
    e("s_mov_b32 s76, 0x7fff7fff")
    e("s_mov_b32 s77, 0x00010001")
    e("s_mov_b32 s78, 0x000f000f")
    e(f"s_mov_b32 s80, {T64 & 0xffffffff:#x}")
    e(f"s_mov_b32 s81, {T64 >> 32:#x}")
    e(f"s_mov_b32 s82, {E32:#x}")
    e("s_mov_b32 s83, 0x05040100")
    e("s_mov_b32 s84, 0x07060302")
    e("s_mov_b32 s85, 0x01000100")
    e("s_mov_b32 s86, 0x0202")
    e(f"v_and_b32 {v(1)}, 15, v0")
    e(f"v_lshrrev_b32 {v(2)}, 4, v0")
    e("s_lshl_b32 s90, s88, 4")
    e(f"v_add_u32 {v(2)}, s90, {v(2)}")
    e(f"v_and_b32 {v(4)}, 9, {v(1)}")
    e(f"v_bfe_u32 {v(5)}, {v(1)}, 1, 1")
    e(f"v_bfe_u32 {v(6)}, {v(1)}, 2, 1")
    e(f"v_lshl_or_b32 {v(4)}, {v(5)}, 2, {v(4)}")
    e(f"v_lshl_or_b32 {v(4)}, {v(6)}, 1, {v(4)}")
    e(f"v_lshlrev_b32 {v(4)}, 1, {v(4)}")
    e(f"v_lshlrev_b32 {v(24)}, 15, {v(2)}")
    e(f"v_lshl_add_u32 {v(24)}, {v(4)}, 4, {v(24)}")
    e(f"v_lshlrev_b32 {v(25)}, 12, {v(2)}")
    e(f"v_lshl_add_u32 {v(25)}, {v(4)}, 4, {v(25)}")
    e("s_lshr_b32 s91, s87, 1")
    e("s_and_b32 s92, s87, 1")
    e("s_lshl_b32 s93, s91, 10")
    e("s_lshl_b32 s92, s92, 9")
    e("s_add_u32 s93, s93, s92")
    e(f"s_add_u32 s93, s93, {WS_WA:#x}")
    e("s_lshr_b32 s94, s91, 3")
    e("s_lshl_b32 s94, s94, 10")
    e("s_add_u32 s94, s94, s92")
    e("s_and_b32 s91, s91, 7")
    e("s_lshl_b32 s91, s91, 1")
    e("s_add_u32 s94, s94, s91")
    e(f"s_add_u32 s94, s94, {WS_WI:#x}")
    e(f"v_mov_b32 {v(36)}, 0")
    e(f"v_mov_b32 {v(37)}, 0")
    e(f"v_mov_b32 {v(38)}, 0")
    e("s_mov_b32 s89, 0")
    if cfg.XEARLY:
        e("s_cmp_lg_u32 s95, 0")
        e("s_cbranch_scc1 L_prep_w0")
        e("s_waitcnt vmcnt(16)")
        e("s_branch L_pg")
        e("L_prep_w0:")
    e("s_waitcnt vmcnt(0)")
    a, b, c, d = 50, 51, 52, 53
    e("L_pg:")
    e("s_set_gpr_idx_on s89, 0x1")
    e("s_nop 0")
    for i in range(4):
        e(f"v_mov_b32 {v(50+i)}, {v(D+i)}")
    e("s_set_gpr_idx_off")
    for i, r in enumerate((a, b, c, d)):
        e(f"v_and_b32 {v(40+i)}, s76, {v(r)}")
    e(f"v_pk_max_u16 {v(44)}, {v(40)}, {v(41)}")
    e(f"v_pk_min_u16 {v(45)}, {v(40)}, {v(41)}")
    e(f"v_pk_max_u16 {v(46)}, {v(42)}, {v(43)}")
    e(f"v_pk_min_u16 {v(47)}, {v(42)}, {v(43)}")
    e(f"v_pk_min_u16 {v(44)}, {v(44)}, {v(46)}")
    e(f"v_pk_max_u16 {v(45)}, {v(45)}, {v(47)}")
    e(f"v_pk_max_u16 {v(44)}, {v(44)}, {v(45)}")
    e(f"v_pk_max_u16 {v(44)}, {v(44)}, s77")
    for i in range(4):
        e(f"v_pk_sub_u16 {v(40+i)}, {v(44)}, {v(40+i)} clamp")
    for i in range(4):
        e(f"v_pk_min_u16 {v(40+i)}, {v(40+i)}, s77")
    e(f"v_lshl_or_b32 {v(40)}, {v(41)}, 1, {v(40)}")
    e(f"v_lshl_or_b32 {v(40)}, {v(42)}, 2, {v(40)}")
    e(f"v_lshl_or_b32 {v(40)}, {v(43)}, 3, {v(40)}")
    e(f"v_xor_b32 {v(40)}, s78, {v(40)}")
    e("s_lshr_b32 s90, s89, 2")
    for ee in range(2):
        sel = 83 + ee
        e(f"v_bfe_u32 {v(41)}, {v(40)}, {16*ee}, 4")
        e(f"v_lshlrev_b32 {v(42)}, 2, {v(41)}")
        e(f"v_lshrrev_b64 v[{R+46}:{R+47}], {v(42)}, s[80:81]")
        e(f"v_and_b32 {v(46)}, 15, {v(46)}")
        e(f"v_lshl_or_b32 {v(36+ee)}, {v(46)}, s89, {v(36+ee)}")
        e(f"v_perm_b32 {v(48)}, {v(b)}, {v(a)}, s{sel}")
        e(f"v_perm_b32 {v(49)}, {v(d)}, {v(c)}, s{sel}")
        e(f"v_and_b32 {v(47)}, 3, {v(46)}")
        e(f"v_lshrrev_b32 {v(46)}, 2, {v(46)}")
        e(f"v_lshl_or_b32 {v(46)}, {v(46)}, 16, {v(47)}")
        e(f"v_mov_b32 {v(47)}, s85")
        e(f"v_mad_u32_u24 {v(46)}, {v(46)}, s86, {v(47)}")
        e(f"v_perm_b32 {v(54+ee)}, {v(49)}, {v(48)}, {v(46)}")
        e(f"v_lshlrev_b32 {v(42)}, 1, {v(41)}")
        e(f"v_lshrrev_b32 {v(43)}, {v(42)}, s82")
        e(f"v_and_b32 {v(43)}, 3, {v(43)}")
        if ee:
            e(f"v_lshlrev_b32 {v(43)}, 2, {v(43)}")
        e(f"v_lshl_or_b32 {v(38)}, {v(43)}, s89, {v(38)}")
    e("s_set_gpr_idx_on s90, 0x8")
    e("s_nop 0")
    e(f"v_mov_b32 {v(28)}, {v(54)}")
    e(f"v_mov_b32 {v(32)}, {v(55)}")
    e("s_set_gpr_idx_off")
    e("s_add_u32 s89, s89, 4")
    e("s_cmp_lt_u32 s89, 16")
    e("s_cbranch_scc1 L_pg")
    e(f"buffer_store_dwordx4 v[{R+28}:{R+31}], {v(24)}, s[20:23], s93 offen sc1")
    e(f"buffer_store_dwordx4 v[{R+32}:{R+35}], {v(24)}, s[20:23], s93 offen offset:16 sc1")
    e(f"buffer_store_short {v(36)}, {v(25)}, s[20:23], s94 offen sc1")
    e(f"buffer_store_short {v(37)}, {v(25)}, s[20:23], s94 offen offset:16 sc1")
    e(f"v_bcnt_u32_b32 {v(39)}, {v(38)}, 0")
    e(f"v_mov_b32 {v(40)}, {v(39)}")
    e("s_nop 1")
    for sh in (1, 2, 4, 8):
        e(f"v_add_u32_dpp {v(40)}, {v(40)}, {v(40)} row_shr:{sh} row_mask:0xf bank_mask:0xf bound_ctrl:0")
        e("s_nop 1")
    e(f"v_lshlrev_b32 {v(41)}, 8, {v(2)}")
    e("s_lshl_b32 s89, s87, 2")
    e(f"v_cmp_eq_u32 vcc, 15, {v(1)}")
    e("s_and_saveexec_b64 s[66:67], vcc")
    e(f"buffer_store_dword {v(40)}, {v(41)}, s[20:23], s89 offen offset:{WS_CNT} sc1")
    e("s_mov_b64 exec, s[66:67]")
    e(f"v_sub_u32 {v(40)}, {v(40)}, {v(39)}")
    e(f"v_lshlrev_b32 {v(41)}, 16, {v(2)}")
    e("s_lshl_b32 s93, s87, 10")
    e(f"s_add_u32 s93, s93, {WS_ENT:#x}")
    e("s_mov_b32 s89, 0")
    e("L_pe:")
    e(f"v_cmp_ne_u32 vcc, 0, {v(38)}")
    e("s_cbranch_vccz L_pe_done")
    e(f"v_and_b32 {v(42)}, 1, {v(38)}")
    e(f"v_cmp_ne_u32 vcc, 0, {v(42)}")
    e("s_and_saveexec_b64 s[66:67], vcc")
    e("s_cbranch_execz L_pe_next")
    e("s_and_b32 s90, s89, 12")
    e("s_and_b32 s91, s89, 1")
    e("s_add_u32 s92, s90, s91")
    e("s_set_gpr_idx_on s92, 0x1")
    e("s_nop 0")
    e(f"v_mov_b32 {v(43)}, {v(D+2)}")
    e("s_set_gpr_idx_off")
    e("s_bfe_u32 s92, s89, 0x10001")
    e("s_lshl_b32 s94, s92, 4")
    e(f"v_lshrrev_b32 {v(43)}, s94, {v(43)}")
    e(f"v_and_b32 {v(43)}, 0xffff, {v(43)}")
    e("s_lshl_b32 s94, s87, 18")
    e("s_lshl_b32 s90, s90, 14")
    e("s_add_u32 s94, s94, s90")
    e("s_add_u32 s91, s91, 2")
    e("s_lshl_b32 s91, s91, 24")
    e("s_add_u32 s94, s94, s91")
    e("s_lshl_b32 s92, s92, 26")
    e("s_add_u32 s94, s94, s92")
    e(f"v_or_b32 {v(43)}, s94, {v(43)}")
    e(f"v_lshl_add_u32 {v(43)}, {v(4)}, 26, {v(43)}")
    e(f"v_lshl_add_u32 {v(42)}, {v(40)}, 2, {v(41)}")
    e(f"buffer_store_dword {v(43)}, {v(42)}, s[20:23], s93 offen sc1")
    e(f"v_add_u32 {v(40)}, 1, {v(40)}")
    e("L_pe_next:")
    e("s_mov_b64 exec, s[66:67]")
    e(f"v_lshrrev_b32 {v(38)}, 1, {v(38)}")
    e("s_add_u32 s89, s89, 1")
    e("s_branch L_pe")
    e("L_pe_done:")


def gen_main():
    NB, PD, RCH, RU = cfg.NB, cfg.PD, cfg.RCH, cfg.RU
    nxt = [1]
    def alloc(n, align=1):
        while nxt[0] % align:
            nxt[0] += 1
        r = nxt[0]
        nxt[0] += n
        return r
    vTW = 0
    vLB = alloc(1); vRB = alloc(1); vDX = alloc(1); vST = alloc(1); vTC = alloc(1); vTR = alloc(1)
    IDX = alloc(32, 4)
    ACC = alloc(32, 4)
    EP = alloc(16, 4)
    BF = alloc(8 * NB, 4)
    BIA = alloc(8, 4)
    ONE = alloc(4, 4)
    RAF = alloc(2 * RCH * 4, 4)
    RIX = alloc(2 * RCH // 2, 4)
    RPK = alloc(2 * RCH * 2, 4)
    GD = alloc(16, 4)
    TMP = alloc(4)
    assert nxt[0] <= 256, nxt[0]
    assert ACC == 40 and BIA >= 64 + 56

    def A(j, s):
        b = (s * 2 + j) * 4
        return f"a[{b}:{b+3}]"
    def acc(j):
        b = ACC + j * 16
        return f"v[{b}:{b+15}]"
    def bf(s):
        return BF + (s % NB) * 8

    ds = []
    vm = []
    def is_mark(t):
        return isinstance(t, tuple) and t[0] == "Gmark"
    def ds_issue(tag, ins):
        e(ins); ds.append(tag)
    def vm_issue(tag, ins):
        e(ins); vm.append(tag)
    def ds_n(tag):
        idx = max(i for i, t in enumerate(ds) if t == tag)
        return sum(1 for t in ds[idx+1:] if not is_mark(t))
    def vm_n(tag):
        idx = max(i for i, t in enumerate(vm) if t == tag)
        return len(vm) - 1 - idx
    def wait(dtag=None, vtag=None):
        w = []
        if vtag is not None:
            w.append(f"vmcnt({min(vm_n(vtag), 63)})")
        if dtag is not None:
            w.append(f"lgkmcnt({min(ds_n(dtag), 15)})")
        e("s_waitcnt " + " ".join(w))

    name = "standalone__structured_sparse_n_m__ragged_kernel"
    e(f".globl {name}")
    e(".p2align 8")
    e(f".type {name},@function")
    e(f"{name}:")
    e("s_cmp_ge_u32 s2, 256")
    e("s_cbranch_scc1 L_main_end")
    if cfg.PROF or cfg.DBG:
        e("s_memtime s[48:49]")
        e("s_memrealtime s[96:97]")
        e("s_mov_b32 s52, 0")
    e("s_load_dwordx4 s[4:7], s[0:1], 0")
    e("s_load_dwordx4 s[8:11], s[0:1], 16")
    e("s_load_dwordx4 s[72:75], s[0:1], 32")
    e(f"v_lshrrev_b32 v{vTR}, 6, v0")
    e("s_nop 0")
    e(f"v_readfirstlane_b32 s24, v{vTR}")
    e("s_and_b32 s25, s2, 7")
    e("s_lshr_b32 s26, s2, 3")
    e("s_and_b32 s27, s26, 3")
    e("s_lshr_b32 s26, s26, 2")
    e("s_lshl_b32 s25, s25, 3")
    e("s_add_u32 s26, s26, s25")
    e("s_lshl_b32 s28, s27, 2")
    e("s_add_u32 s28, s28, s24")
    e("s_lshr_b32 s87, s2, 1")
    e("s_and_b32 s88, s2, 1")
    e("s_mov_b32 s95, 0")
    e("s_waitcnt lgkmcnt(0)")
    e("s_mov_b32 s12, s4"); e("s_and_b32 s13, s5, 0xffff"); e("s_mov_b32 s14, 0x2000000"); e("s_mov_b32 s15, 0x00020000")
    e("s_mov_b32 s16, s10"); e("s_and_b32 s17, s11, 0xffff"); e("s_mov_b32 s18, 0x2000000"); e("s_mov_b32 s19, 0x00020000")
    e("s_mov_b32 s20, s74"); e("s_and_b32 s21, s75, 0xffff"); e(f"s_mov_b32 s22, {WS_SIZE:#x}"); e("s_mov_b32 s23, 0x00020000")
    e("s_mov_b32 s44, s8"); e("s_and_b32 s45, s9, 0xffff"); e("s_mov_b32 s46, 0x800"); e("s_mov_b32 s47, 0x00020000")
    e("s_mov_b32 s68, s6"); e("s_and_b32 s69, s7, 0xffff"); e("s_mov_b32 s70, 0x200000"); e("s_mov_b32 s71, 0x00020000")
    e("s_and_b32 s73, s73, 0xffff"); e("s_mov_b32 s74, 0x100"); e("s_mov_b32 s75, 0x00020000")
    e(f"v_mov_b32 v{GD+9}, 0")
    e(f"v_mov_b32 v{GD+10}, 1")
    e(f"v_and_b32 v{vDX}, 63, v0")
    e(f"v_lshlrev_b32 v{vTC}, 6, v{vDX}")
    e(f"v_lshlrev_b32 v{vDX}, 4, v{vDX}")
    e("s_lshl_b32 s37, s26, 19")
    e("s_lshl_b32 s36, s2, 2")
    e("s_add_u32 s36, s36, s24")
    e("s_cmp_lg_u32 s36, 3")
    e("s_cbranch_scc1 L_no_nonce")
    e("s_memrealtime s[90:91]")
    e("s_waitcnt lgkmcnt(0)")
    e("s_or_b32 s90, s90, 1")
    e(f"v_mov_b32 v{GD+11}, s90")
    e(f"v_cmp_eq_u32 vcc, 0, v{vDX}")
    e("s_and_saveexec_b64 s[66:67], vcc")
    e(f"buffer_store_dword v{GD+11}, v{GD+9}, s[72:75], 0 offen sc1")
    e("s_mov_b64 exec, s[66:67]")
    e("L_no_nonce:")
    e("s_cmp_ge_u32 s2, 128")
    e("s_cbranch_scc1 L_prep_skip")
    e("L_prep_again:")
    gen_prep_slice()
    e("s_cmp_eq_u32 s95, 0")
    e("s_cbranch_scc1 L_prep_signal0")
    e("s_add_u32 s87, s87, 1")
    e("s_cmp_lt_u32 s87, 64")
    e("s_cbranch_scc1 L_prep_again")
    e("s_waitcnt vmcnt(0)")
    e("s_barrier")
    e("s_branch L_sync_done")
    e("L_prep_signal0:")
    if cfg.PROF:
        e("s_memrealtime s[56:57]")
    e(f"buffer_load_dword v{GD+11}, v{GD+9}, s[72:75], 0 offen sc1")
    e(f"s_waitcnt vmcnt(0)")
    e("s_barrier")
    if cfg.PROF:
        e("s_memrealtime s[54:55]")
        e("s_waitcnt lgkmcnt(0)")
        e("s_mov_b32 s99, s54")
        e("s_mov_b32 s57, s56")
    e("s_cmp_lg_u32 s24, 0")
    e("s_cbranch_scc1 L_x0")
    e("s_mov_b32 s38, 1")
    e("s_memrealtime s[90:91]")
    e("s_branch L_nonce_chk")
    e("L_prep_skip:")
    e("s_cmp_lg_u32 s24, 0")
    e("s_cbranch_scc1 L_x0")
    e("s_mov_b32 s38, 0")
    e("s_memrealtime s[90:91]")
    for _ in range(cfg.SLP0 // 64):
        e("s_sleep 64")
    e("L_nonce_poll:")
    e(f"buffer_load_dword v{GD+11}, v{GD+9}, s[72:75], 0 offen sc1")
    e("s_waitcnt vmcnt(0)")
    e("L_nonce_chk:")
    e(f"v_readfirstlane_b32 s89, v{GD+11}")
    e("s_memrealtime s[92:93]")
    e("s_waitcnt lgkmcnt(0)")
    e("s_sub_u32 s92, s92, s90")
    e("s_cmp_lg_u32 s89, 0")
    e("s_cbranch_scc1 L_nonce_ok")
    e("s_sleep 8")
    e(f"s_cmp_lt_u32 s92, {cfg.TMO}")
    e("s_cbranch_scc1 L_nonce_poll")
    e("s_branch L_poll_fail")
    e("L_nonce_ok:")
    e("s_cmp_eq_u32 s38, 0")
    e("s_cbranch_scc1 L_poll_setup")
    e("s_lshl_b32 s36, s88, 6")
    e("s_add_u32 s36, s36, s87")
    e("s_lshl_b32 s36, s36, 7")
    e(f"s_add_u32 s36, s36, {WS_FLG:#x}")
    e("v_cmp_eq_u32 vcc, 0, v0")
    e("s_and_saveexec_b64 s[66:67], vcc")
    e(f"buffer_store_dword v{GD+11}, v{GD+9}, s[20:23], s36 offen sc1")
    e("s_mov_b64 exec, s[66:67]")
    e("L_poll_setup:")
    e("s_lshr_b32 s36, s27, 1")
    e("s_lshl_b32 s36, s36, 13")
    e(f"s_add_u32 s36, s36, {WS_FLG:#x}")
    e(f"v_lshlrev_b32 v{GD+12}, 3, v{vDX}")
    e("L_poll:")
    e(f"buffer_load_dword v{GD+11}, v{GD+12}, s[20:23], s36 offen sc1")
    e("s_memrealtime s[92:93]")
    e("s_waitcnt vmcnt(0) lgkmcnt(0)")
    e(f"v_cmp_ne_u32 vcc, s89, v{GD+11}")
    e("s_sub_u32 s92, s92, s90")
    e("s_cmp_eq_u64 vcc, 0")
    e("s_cbranch_scc1 L_poll_ok")
    if cfg.SLP: e(f"s_sleep {cfg.SLP}")
    e(f"s_cmp_lt_u32 s92, {cfg.TMO}")
    e("s_cbranch_scc1 L_poll")
    e("L_poll_fail:")
    e(f"v_mov_b32 v{GD+9}, 1")
    e("L_poll_ok:")
    if not cfg.WSC and cfg.INV:
        e("buffer_inv sc1")
        e("s_waitcnt vmcnt(0)")
    e(f"v_mov_b32 v{GD+10}, {LDS_SCR + 256}")
    e(f"ds_write_b32 v{GD+10}, v{GD+9}")
    e("s_waitcnt lgkmcnt(0)")
    e("s_branch L_sync_wait")
    e("L_x0:")
    e("s_sub_u32 s36, s24, 1")
    if cfg.XEARLY:
        e("s_cmp_lt_u32 s2, 128")
        e("s_cbranch_scc1 L_x0_done")
    e("s_mul_i32 s38, s36, 11")
    e("s_add_u32 s39, s38, 11")
    e("s_min_u32 s39, s39, 32")
    e("X0LOOP")
    e("L_x0_done:")
    e(f"s_mov_b32 m0, {LDS_SCR}")
    e("s_lshl_b32 s40, s27, 14")
    e("s_add_u32 s40, s40, s37")
    e("s_lshl_b32 s38, s36, 12")
    e("s_add_u32 s40, s40, s38")
    for tb in range(1, cfg.TD):
        e(f"s_add_u32 s38, s40, {tb * 0x10000}")
        e(f"buffer_load_dword v{vTC}, s[12:15], s38 offen lds")
        e(f"s_add_u32 s38, s40, {tb * 0x10000 + 4096}")
        e(f"buffer_load_dword v{vTC}, s[12:15], s38 offen lds")
    e("L_sync_wait:")
    if cfg.PROF:
        e("s_memrealtime s[58:59]")
        e("s_waitcnt lgkmcnt(0)")
        e("s_mov_b32 s100, s58")
    e("s_barrier")
    e(f"v_mov_b32 v{GD+10}, {LDS_SCR + 256}")
    e(f"ds_read_b32 v{GD+9}, v{GD+10}")
    e("s_waitcnt lgkmcnt(0)")
    e(f"v_readfirstlane_b32 s95, v{GD+9}")
    e("s_mov_b32 s87, 0")
    e("s_lshr_b32 s88, s27, 1")
    e("s_cmp_lg_u32 s95, 0")
    e("s_cbranch_scc1 L_prep_again")
    e("L_sync_done:")
    if cfg.PROF:
        e("s_mov_b32 s94, s57")
        e("s_mov_b32 s95, s99")
    if cfg.DBG:
        e("s_memrealtime s[100:101]")
    if cfg.PROF:
        e("s_memtime s[54:55]")
        e("s_memrealtime s[60:61]")
        e("s_waitcnt lgkmcnt(0)")
        e("s_sub_u32 s53, s54, s48")
        e("s_mov_b32 s101, s60")
    T = GD
    TT = ACC
    e(f"v_and_b32 v{T}, 63, v0")
    e(f"v_lshlrev_b32 v{TT+0}, 2, v{T}")
    e(f"v_lshlrev_b32 v{TT+1}, 10, v{T}")
    e(f"v_lshlrev_b32 v{vDX}, 4, v{T}")
    for j in range(2):
        e("s_lshl_b32 s36, s28, 9")
        e(f"s_add_u32 s36, s36, {WS_CNT + j*256:#x}")
        vm_issue("ent", f"buffer_load_dword v{TT+4+12*j}, v{TT+0}, s[20:23], s36 offen sc1")
        e("s_lshl_b32 s36, s28, 17")
        e(f"s_add_u32 s36, s36, {WS_ENT + j*0x10000:#x}")
        vm_issue("ent", f"buffer_load_dwordx4 v[{TT+8+12*j}:{TT+11+12*j}], v{TT+1}, s[20:23], s36 offen sc1")
        vm_issue("ent", f"buffer_load_dwordx4 v[{TT+12+12*j}:{TT+15+12*j}], v{TT+1}, s[20:23], s36 offen offset:16 sc1")
    e(f"v_and_b32 v{T+1}, 31, v0")
    e(f"v_bfe_u32 v{T+2}, v0, 5, 1")
    e(f"v_and_b32 v{T+3}, 0x13, v{T+1}")
    e(f"v_bfe_u32 v{T+4}, v{T+1}, 2, 1")
    e(f"v_lshl_or_b32 v{T+3}, v{T+4}, 3, v{T+3}")
    e(f"v_bfe_u32 v{T+4}, v{T+1}, 3, 1")
    e(f"v_lshl_or_b32 v{T+3}, v{T+4}, 2, v{T+3}")
    e(f"v_lshlrev_b32 v{T+3}, 1, v{T+3}")
    e("s_lshl_b32 s36, s28, 7")
    vm_issue("bias", f"buffer_load_ushort v{BIA}, v{T+3}, s[44:47], s36 offen")
    vm_issue("bias", f"buffer_load_ushort v{BIA+4}, v{T+3}, s[44:47], s36 offen offset:64")
    e("s_lshl_b32 s36, s28, 13")
    e(f"s_add_u32 s36, s36, {WS_WI:#x}")
    for j in range(2):
        for u in range(4):
            b = IDX + j * 16 + u * 4
            if j == 1 and u == 0:
                e("s_add_u32 s36, s36, 0x1000")
            vm_issue("W", f"buffer_load_dwordx4 v[{b}:{b+3}], v{vDX}, s[20:23], s36 offen offset:{u*1024}" + (" sc1" if cfg.WSC else ""))
    e("s_lshl_b32 s42, s28, 16")
    e(f"s_add_u32 s42, s42, {WS_WA:#x}")
    e("s_add_u32 s43, s42, 0x8000")
    def w_loads(s0, s1):
        for s in range(s0, s1):
            if s % 4 == 0 and s:
                e("s_add_u32 s42, s42, 0x1000")
                e("s_add_u32 s43, s43, 0x1000")
            for j in range(2):
                vm_issue("W", f"buffer_load_dwordx4 {A(j,s)}, v{vDX}, s[20:23], s{42+j} offen offset:{(s%4)*1024}" + (" sc1" if cfg.WSC else ""))
    w_loads(0, 12)
    e(f"v_mul_u32_u24 v{vRB}, {RS}, v{T+1}")
    e(f"v_lshl_add_u32 v{vLB}, v{T+2}, 4, v{vRB}")
    e(f"v_lshrrev_b32 v{T+6}, 3, v{T}")
    e(f"v_and_b32 v{T+7}, 7, v{T}")
    if cfg.PERM == 2:
        e(f"v_and_b32 v{vST}, 7, v{T}")
        e(f"v_lshlrev_b32 v{vST}, 11, v{vST}")
        e(f"v_bfe_u32 v{T+4}, v{T}, 4, 1")
        e(f"v_lshl_add_u32 v{vST}, v{T+4}, 5, v{vST}")
        e(f"v_lshl_add_u32 v{vST}, v{T+2}, 4, v{vST}")
        e(f"v_bfe_u32 v{T+4}, v{T}, 3, 1")
        e(f"v_lshl_add_u32 v{vST}, v{T+4}, 6, v{vST}")
    elif cfg.PERM:
        e(f"v_and_b32 v{vST}, 15, v{T}")
        e(f"v_lshlrev_b32 v{vST}, 11, v{vST}")
        e(f"v_bfe_u32 v{T+4}, v{T}, 4, 1")
        e(f"v_lshl_add_u32 v{vST}, v{T+4}, 5, v{vST}")
        e(f"v_lshl_add_u32 v{vST}, v{T+2}, 4, v{vST}")
    else:
        e(f"v_lshlrev_b32 v{vST}, 11, v{T+6}")
        e(f"v_lshl_add_u32 v{vST}, v{T+7}, 4, v{vST}")
    e(f"s_mul_i32 s38, s24, {32*TRS}")
    e(f"s_add_u32 s38, s38, {LDS_TR}")
    e(f"v_mul_u32_u24 v{vTR}, {TRS}, v{T+6}")
    e(f"v_lshl_add_u32 v{vTR}, v{T+7}, 4, v{vTR}")
    e(f"v_add_u32 v{vTR}, s38, v{vTR}")
    e(f"v_mul_u32_u24 v{vTW}, {TRS}, v{T+1}")
    e(f"v_lshl_add_u32 v{vTW}, v{T+2}, 4, v{vTW}")
    e(f"v_add_u32 v{vTW}, s38, v{vTW}")
    e(f"v_lshlrev_b32 v{vTC}, 6, v{T}")
    e(f"v_lshlrev_b32 v{T+3}, 3, v{T+2}")
    e(f"s_mul_i32 s35, s24, {8*RS}")
    e(f"s_add_u32 s36, s35, {BUF1}")
    e(f"v_add_u32 v{TT+2}, s36, v{vDX}")
    e(f"v_add_u32 v{TT+3}, s38, v{vDX}")
    Z = TT + 28
    for i in range(4):
        e(f"v_mov_b32 v{Z+i}, 0")
    e(f"v_mov_b32 v{TT+32}, {PADOFF | (PADOFF << 16):#x}")
    e(f"v_add_u32 v{TT+33}, s38, v{TT+0}")
    for j in range(2):
        for c in range(RCH):
            e(f"ds_write_b128 v{TT+2}, v[{Z}:{Z+3}] offset:{(4*j + (c>>1))*RS + (c&1)*1024}")
        e(f"ds_write_b128 v{TT+3}, v[{Z}:{Z+3}] offset:{j*1024}")
    e(f"ds_write_b32 v{TT+33}, v{TT+32} offset:2048")
    e(f"v_mov_b32 v{T+6}, 0x3f803f80")
    e(f"v_mov_b32 v{T+7}, 0x3f803f80")
    e(f"ds_write_b64 v{vRB}, v[{T+6}:{T+7}] offset:{PADOFF}")
    e(f"ds_write_b64 v{vRB}, v[{T+6}:{T+7}] offset:{BUF1+PADOFF}")
    wait(vtag="ent")
    C = TT + 34; S = TT + 35; E = TT + 36; t = TT + 37
    e("s_mov_b32 s58, 0")
    e(f"s_add_u32 s59, s35, {BUF1}")
    e("s_mov_b32 s60, s38")
    e(f"s_add_u32 s61, s38, 2048")
    e("L_bj:")
    e("s_set_gpr_idx_on s58, 0x1")
    e("s_nop 0")
    e(f"v_mov_b32 v{C}, v{TT+4}")
    e("s_set_gpr_idx_off")
    e(f"v_mov_b32 v{S}, v{C}")
    e(f"v_cmp_lt_u32 vcc, 8, v{C}")
    for sh in (1, 2, 4, 8):
        e("s_nop 0")
        e(f"v_add_u32_dpp v{S}, v{S}, v{S} row_shr:{sh} row_mask:0xf bank_mask:0xf bound_ctrl:0")
        e("s_nop 0")
    e("s_nop 0")
    e(f"v_add_u32_dpp v{S}, v{S}, v{S} row_bcast:15 row_mask:0xa bank_mask:0xf")
    e("s_nop 1")
    e(f"v_add_u32_dpp v{S}, v{S}, v{S} row_bcast:31 row_mask:0xc bank_mask:0xf")
    e("s_nop 1")
    e(f"v_readlane_b32 s36, v{S}, 63")
    e(f"v_sub_u32 v{S}, v{S}, v{C}")
    e("s_cmp_lg_u64 vcc, 0")
    e("s_cselect_b32 s62, 1, 0")
    e(f"s_cmp_gt_u32 s36, {8*RCH}")
    e("s_cselect_b32 s62, 1, s62")
    e("s_add_u32 s36, s36, 7")
    e("s_lshr_b32 s36, s36, 3")
    e("s_cmp_eq_u32 s62, 0")
    e("s_cselect_b32 s36, s36, 0")
    e("s_cmp_eq_u32 s58, 0")
    e("s_cselect_b32 s30, s36, s30")
    e("s_cselect_b32 s64, s62, s64")
    e("s_mov_b32 s31, s36")
    e("s_mov_b32 s65, s62")
    e("s_cmp_lg_u32 s62, 0")
    e("s_cbranch_scc1 L_bj_next")
    e("s_mov_b32 s63, 0")
    e("L_be:")
    e(f"v_cmp_lt_u32 vcc, s63, v{C}")
    e("s_and_saveexec_b64 s[66:67], vcc")
    e("s_cbranch_execz L_be_done")
    e("s_add_u32 s36, s58, s63")
    e("s_set_gpr_idx_on s36, 0x1")
    e("s_nop 0")
    e(f"v_mov_b32 v{E}, v{TT+8}")
    e("s_set_gpr_idx_off")
    e(f"v_add_u32 v{t}, s63, v{S}")
    e(f"v_lshrrev_b32 v{t+1}, 3, v{t}")
    e(f"v_bfe_u32 v{t+2}, v{t}, 2, 1")
    e(f"v_and_b32 v{t+3}, 3, v{t}")
    e(f"v_lshrrev_b32 v{t+4}, 26, v{E}")
    e(f"v_lshl_add_u32 v{t+4}, v{t+2}, 5, v{t+4}")
    e(f"v_lshlrev_b32 v{t+4}, 4, v{t+4}")
    e(f"v_lshrrev_b32 v{t+5}, 1, v{t+1}")
    e(f"v_and_b32 v{t+6}, 1, v{t+1}")
    e(f"v_mul_u32_u24 v{t+7}, {RS}, v{t+5}")
    e(f"v_lshl_add_u32 v{t+7}, v{t+6}, 10, v{t+7}")
    e(f"v_add3_u32 v{t+7}, v{t+7}, v{t+4}, s59")
    e(f"v_lshl_add_u32 v{t+7}, v{t+3}, 2, v{t+7}")
    e(f"ds_write_b16 v{t+7}, v{E}")
    e(f"v_lshl_add_u32 v{t+8}, v{t+5}, 2, v{t+4}")
    e(f"v_add_u32 v{t+8}, s60, v{t+8}")
    e(f"v_lshlrev_b32 v{t+9}, 4, v{t+6}")
    e(f"v_lshl_add_u32 v{t+9}, v{t+3}, 2, v{t+9}")
    e(f"v_bfe_u32 v{t+10}, v{E}, 24, 2")
    e(f"v_lshlrev_b32 v{t+10}, v{t+9}, v{t+10}")
    e(f"ds_or_b32 v{t+8}, v{t+10}")
    e(f"v_lshlrev_b32 v{t+8}, 4, v{t+1}")
    e(f"v_bfe_u32 v{t+9}, v{t}, 1, 1")
    e(f"v_lshl_add_u32 v{t+8}, v{t+9}, 3, v{t+8}")
    e(f"v_lshl_add_u32 v{t+8}, v{t+2}, 2, v{t+8}")
    e(f"v_and_b32 v{t+9}, 1, v{t}")
    e(f"v_lshl_add_u32 v{t+8}, v{t+9}, 1, v{t+8}")
    e(f"v_add_u32 v{t+8}, s61, v{t+8}")
    e(f"v_bfe_u32 v{t+10}, v{E}, 16, 8")
    e(f"v_lshlrev_b32 v{t+10}, 3, v{t+10}")
    e(f"ds_write_b16 v{t+8}, v{t+10}")
    e("s_mov_b64 exec, s[66:67]")
    e("s_add_u32 s63, s63, 1")
    e("s_cmp_lt_u32 s63, 8")
    e("s_cbranch_scc1 L_be")
    e("L_be_done:")
    e("s_mov_b64 exec, s[66:67]")
    e("L_bj_next:")
    e("s_add_u32 s58, s58, 12")
    e(f"s_add_u32 s59, s59, {4*RS}")
    e("s_add_u32 s60, s60, 1024")
    e("s_add_u32 s61, s61, 128")
    e("s_cmp_lt_u32 s58, 24")
    e("s_cbranch_scc1 L_bj")
    e(f"v_add_u32 v{TT+33}, s38, v{T+3}")
    for j in range(2):
        for c in range(RCH):
            b = RAF + (j * RCH + c) * 4
            e(f"ds_read_b128 v[{b}:{b+3}], v{TT+2} offset:{(4*j + (c>>1))*RS + (c&1)*1024}")
            b = RPK + (j * RCH + c) * 2
            e(f"ds_read_b64 v[{b}:{b+1}], v{TT+33} offset:{2048 + j*128 + c*16}")
        e(f"ds_read_b128 v[{RIX+j*4}:{RIX+j*4+3}], v{TT+3} offset:{j*1024}")
    w_loads(12, 32)
    e("s_lshl_b32 s37, s26, 19")
    e("s_lshl_b32 s33, s24, 14")
    e("s_add_u32 s37, s37, s33")
    e("s_add_u32 s37, s37, 0x10000")
    e("s_lshl_b32 s41, s26, 19")
    e("s_lshl_b32 s33, s27, 14")
    e("s_add_u32 s41, s41, s33")
    e("s_lshl_b32 s33, s24, 12")
    e("s_add_u32 s41, s41, s33")
    e(f"s_add_u32 s41, s41, {cfg.TD * 0x10000}")
    e("s_lshl_b32 s33, s26, 19")
    e("s_lshl_b32 s36, s28, 7")
    e("s_add_u32 s33, s33, s36")
    e("s_mov_b32 s34, 0x40000000")
    e("s_mov_b32 s39, 0")
    e(f"s_mov_b32 s29, {BUF1}")
    e(f"s_add_u32 s32, s35, {BUF1}")
    wait(vtag="bias")
    e(f"v_cmp_eq_u32 vcc, 0, v{T+2}")
    for i in (1, 2, 3, 5, 6, 7):
        e(f"v_mov_b32 v{BIA+i}, 0")
    e(f"v_cndmask_b32 v{BIA}, 0, v{BIA}, vcc")
    e(f"v_cndmask_b32 v{BIA+4}, 0, v{BIA+4}, vcc")
    e(f"v_mov_b32 v{ONE}, 0x3f80")
    for i in (1, 2, 3):
        e(f"v_mov_b32 v{ONE+i}, 0")
    e("s_waitcnt vmcnt(0) lgkmcnt(0)")
    e("s_barrier")
    if cfg.PROF:
        e("s_memtime s[50:51]")
        e("s_waitcnt lgkmcnt(0)")
    if cfg.DBG:
        e("s_memrealtime s[50:51]")
        e("s_waitcnt lgkmcnt(0)")
    vm.clear()

    def init_acc(j):
        return f"v_mfma_f32_32x32x16_bf16 {acc(j)}, v[{BIA+4*j}:{BIA+4*j+3}], v[{ONE}:{ONE+3}], 0"

    def b_reads(s):
        b = bf(s)
        base = 64 * s
        return [("ds", ("B", s), f"ds_read_b128 v[{b}:{b+3}], v{vLB} offset:{base}"),
                ("ds", ("B", s), f"ds_read_b128 v[{b+4}:{b+7}], v{vLB} offset:{base+32}")]

    def g_items(j, c, gs, tag):
        r = []
        pk = RPK + (j * RCH + c) * 2
        for pb in range(4):
            d = GD + gs * 8 + 2 * pb
            r.append(("raw", f"v_add_u32_sdwa v{d}, v{vRB}, v{pk + (pb>>1)} dst_sel:DWORD dst_unused:UNUSED_PAD src0_sel:DWORD src1_sel:WORD_{pb&1}" if not cfg.RNOA else "s_nop 0"))
        for pb in range(4):
            d = GD + gs * 8 + 2 * pb
            r.append(("ds", tag, f"ds_read_b64 v[{d}:{d+1}], v{d}") if not cfg.RNOG else ("dsx", tag))
        return r

    uid = [0]
    def gather_block(j, c, gs):
        uid[0] += 1
        lbl = f"L_g{uid[0]}"
        e(f"s_cmp_le_u32 s{30+j}, {c}")
        e(f"s_cbranch_scc1 {lbl}")
        for it in g_items(j, c, gs, None):
            e(it[-1])
        e(f"{lbl}:")
        ds.append(("Gmark", j, c))
    def mfma_block(j, c, gs):
        cond = c >= RU
        if cond:
            uid[0] += 1
            lbl = f"L_m{uid[0]}"
            e(f"s_cmp_le_u32 s{30+j}, {c}")
            e(f"s_cbranch_scc1 {lbl}")
            wait(dtag=("Gmark", j, c))
        elif not cfg.RNOG:
            wait(dtag=("G", j, c))
        ra = RAF + (j * RCH + c) * 4
        if not cfg.RNOM: e(f"v_smfmac_f32_32x32x32_bf16 {acc(j)}, v[{ra}:{ra+3}], v[{GD+gs*8}:{GD+gs*8+7}], v{RIX + j*4 + (c>>1)}" + (" abid:1" if c & 1 else ""))
        if cond:
            e(f"{lbl}:")

    def emit_items(items):
        for x in items:
            if x[0] == "raw": e(x[1])
            elif x[0] == "ds": ds_issue(x[1], x[2])
            elif x[0] == "vm": vm_issue(x[1], x[2])
            elif x[0] == "G": gather_block(*x[1:])
            elif x[0] == "M": mfma_block(*x[1:])
            elif x[0] == "W": wait(dtag=x[1])
            elif x[0] == "dsx": ds.append(("Gmark", x[1])); ds.append(x[1]) if False else None
            else: raise Exception(x)

    def epilogue_items():
        if cfg.PERM == 2:
            wr = [("raw", f"v_permlane16_swap_b32 v{EP + 8*(i>>2) + (i&3)}, v{EP + 8*(i>>2) + 4 + (i&3)}") for i in range(8)]
            for pr in range(2):
                a = EP + 4 * pr; b = EP + 8 + 4 * pr
                wr += [("raw", f"v_mov_b32 v{TMP+i}, v{a+i}") for i in range(4)]
                wr += [("raw", f"v_mov_b32_dpp v{a+i}, v{b+i} row_ror:8 row_mask:0xf bank_mask:0xc") for i in range(4)]
                wr += [("raw", f"v_mov_b32_dpp v{b+i}, v{TMP+i} row_ror:8 row_mask:0xf bank_mask:0x3") for i in range(4)]
            st = []
            for i, a in enumerate((EP, EP + 8, EP + 4, EP + 12)):
                st.append(("raw", f"s_add_u32 s38, s34, {i*8*2048}"))
                st.append(("vm", "st", f"buffer_store_dwordx4 v[{a}:{a+3}], v{vST}, s[16:19], s38 offen" + ["", " nt", " sc1", " sc0 sc1", " sc1 nt"][cfg.STM]))
            return wr, [], st
        if cfg.PERM:
            wr = [("raw", f"v_permlane16_swap_b32 v{EP + 8*(i>>2) + (i&3)}, v{EP + 8*(i>>2) + 4 + (i&3)}") for i in range(8)]
            st = []
            for i in range(4):
                a = EP + 4 * i
                st.append(("raw", f"s_add_u32 s38, s34, {(i&1)*16*2048}"))
                st.append(("vm", "st", f"buffer_store_dwordx4 v[{a}:{a+3}], v{vST}, s[16:19], s38 offen offset:{64*(i>>1)}" + ["", " nt", " sc1", " sc0 sc1", " sc1 nt"][cfg.STM]))
            return wr, [], st
        wr = [("ds", "tw", f"ds_write_b128 v{vTW}, v[{EP+4*i}:{EP+4*i+3}] offset:{32*i}") for i in range(4)]
        rb = []; st = []
        for i in range(4):
            a = EP + 4 * i
            rb.append(("ds", ("tr", i), f"ds_read_b128 v[{a}:{a+3}], v{vTR} offset:{i*8*TRS}"))
            st.append(("W", ("tr", i)))
            st.append(("raw", f"s_add_u32 s38, s34, {i*8*2048}"))
            st.append(("vm", "st", f"buffer_store_dwordx4 v[{a}:{a+3}], v{vST}, s[16:19], s38 offen" + ["", " nt", " sc1", " sc0 sc1", " sc1 nt"][cfg.STM]))
        return wr, rb, st

    if cfg.SEG:
        for i in range(80, 88): e(f"s_mov_b32 s{i}, 0")
        e("s_memtime s[76:77]")
        e("s_waitcnt lgkmcnt(0)")
        e("s_mov_b32 s79, s76")
    e(init_acc(0))
    for s in range(PD):
        emit_items(b_reads(s))

    e("L_loop:")
    rq = []
    def at(g, items):
        for it in items:
            rq.append((g, it))
    order = [(j, c) for c in range(RCH) for j in range(2)] if not cfg.NORES else []
    for z, (j, c) in enumerate(order):
        g0 = int(min(cfg.RPER, (2 * (32 - PD) - 1 - cfg.RLAT) * 10 // 15) * z / 10)
        if c >= RU:
            at(g0, [("G", j, c, z & 1)])
        else:
            gi = g_items(j, c, z & 1, ("G", j, c))
            if cfg.GSPREAD:
                at(g0, [gi[0], gi[1], gi[4]]); at(g0 + 1, [gi[5], gi[2]]); at(g0 + 2, [gi[6], gi[3]]); at(g0 + 3, [gi[7]])
            else:
                at(g0, gi[:4]); at(g0 + 1, gi[4:])
        at(g0 + cfg.RLAT, [("M", j, c, z & 1)])
    if not cfg.NODMA:
        for r in range(8):
            at(cfg.DG0 + cfg.DGS * r, [("raw", f"s_add_u32 m0, s32, {r*RS}"), ("raw", f"s_add_u32 s36, s40, {r*2048}"),
                             ("vm", "Xn", f"buffer_load_dwordx4 v{vDX}, s[12:15], s36 offen lds")])
            at(cfg.DG0 + cfg.DGS * r + cfg.DGS // 2, [("vm", "Xn", f"buffer_load_dwordx4 v{vDX}, s[12:15], s36 offen offset:1024 lds")])
        at(cfg.DG0 + cfg.DGS * 8, [("raw", f"s_mov_b32 m0, {LDS_SCR}"), ("raw", "s_nop 0"), ("vm", "touch", f"buffer_load_dword v{vTC}, s[12:15], s42 offen lds")])
    if not cfg.NOEPI:
        wr, rb, st = epilogue_items()
        if cfg.PERM:
            for i in range(0, len(wr), 4):
                at(cfg.EW0 + i // 4, wr[i:i+4])
            for i in range(4):
                at(cfg.ES0 + cfg.ESS * i, st[2*i:2*i+2])
        elif not cfg.NOTR:
            for i in range(4):
                at(cfg.EW0 + cfg.EWS * i, [wr[i]])
            for i in range(4):
                at(cfg.ER0 + cfg.ERS * i, [rb[i]])
        for i in range(4):
            if not cfg.NOST and not cfg.PERM:
                at(cfg.ES0 + cfg.ESS * i, st[3*i + (1 if cfg.NOTR else 0):3*i+3])
    rq.sort(key=lambda t: t[0])
    def fill(gap):
        while rq and rq[0][0] <= gap:
            emit_items([rq.pop(0)[1]])

    e("s_cmp_lt_u32 s39, 7")
    e("s_cselect_b32 s40, s37, 0x40000000")
    e(f"s_cmp_lt_u32 s39, {8 - cfg.TD}")
    e("s_cselect_b32 s42, s41, 0x40000000")
    def M(j, s):
        e(f"v_smfmac_f32_32x32x32_bf16 {acc(j)}, {A(j,s)}, v[{bf(s)}:{bf(s)+7}], v{IDX + 16*j + (s>>1)}" + (" abid:1" if s & 1 else ""))
    def cvt(j, lo, hi):
        for i in range(lo, hi):
            e(f"v_cvt_pk_bf16_f32 v{EP+8*j+i}, v{ACC+16*j+2*i}, v{ACC+16*j+2*i+1}")
    def slow_path():
        e("s_or_b32 s36, s64, s65")
        e("s_cbranch_scc0 L_sp_end")
        e(f"v_lshrrev_b32 v{GD+13}, 4, v{vDX}")
        for r in (2, 3, 4, 5, 6, 7, 9, 10, 11):
            e(f"v_mov_b32 v{GD+r}, 0")
        e("s_mov_b32 s58, 0")
        e("L_sp_kr:")
        e("s_cmp_lt_u32 s58, 64")
        e("s_cselect_b32 s36, s64, s65")
        e("s_cmp_eq_u32 s36, 0")
        e("s_cbranch_scc1 L_sp_nx")
        e("s_lshl_b32 s59, s28, 7")
        e("s_add_u32 s59, s59, s58")
        e("s_lshl_b32 s60, s59, 2")
        e(f"buffer_load_dword v{GD+15}, v{GD+9}, s[20:23], s60 offen offset:{WS_CNT} sc1")
        e("s_lshl_b32 s59, s59, 10")
        e(f"s_add_u32 s59, s59, {WS_ENT:#x}")
        e("s_waitcnt vmcnt(0)")
        e(f"v_readfirstlane_b32 s60, v{GD+15}")
        e("s_nop 3")
        e("s_cmp_eq_u32 s60, 0")
        e("s_cbranch_scc1 L_sp_nx")
        e("L_sp_e:")
        e(f"buffer_load_dword v{GD+15}, v{GD+9}, s[20:23], s59 offen sc1")
        e("s_waitcnt vmcnt(0)")
        e(f"v_readfirstlane_b32 s62, v{GD+15}")
        e("s_nop 3")
        e("s_lshr_b32 s63, s62, 26")
        e(f"v_cmp_eq_u32 vcc, s63, v{GD+13}")
        e("s_and_b32 s63, s62, 0xffff")
        e(f"v_mov_b32 v{GD+14}, s63")
        e("s_bfe_u32 s63, s62, 0x80010")
        e("s_lshl_b32 s63, s63, 3")
        e(f"v_add_u32 v{GD}, s63, v{vRB}")
        e(f"v_cndmask_b32 v{GD+8}, 0, v{GD+14}, vcc")
        e("s_bfe_u32 s63, s62, 0x20018")
        e(f"v_mov_b32 v{GD+12}, s63")
        e(f"ds_read_b64 v[{GD}:{GD+1}], v{GD}")
        e("s_waitcnt lgkmcnt(0)")
        e("s_cmp_lt_u32 s58, 64")
        e("s_cbranch_scc0 L_sp_j1")
        e(f"v_smfmac_f32_32x32x32_bf16 {acc(0)}, v[{GD+8}:{GD+11}], v[{GD}:{GD+7}], v{GD+12}")
        e("s_branch L_sp_jd")
        e("L_sp_j1:")
        e(f"v_smfmac_f32_32x32x32_bf16 {acc(1)}, v[{GD+8}:{GD+11}], v[{GD}:{GD+7}], v{GD+12}")
        e("L_sp_jd:")
        e("s_add_u32 s59, s59, 4")
        e("s_sub_u32 s60, s60, 1")
        e("s_cmp_lg_u32 s60, 0")
        e("s_nop 4")
        e("s_cbranch_scc1 L_sp_e")
        e("L_sp_nx:")
        e("s_add_u32 s58, s58, 1")
        e("s_cmp_lt_u32 s58, 128")
        e("s_cbranch_scc1 L_sp_kr")
        e("L_sp_end:")
    assert PD == 3 and NB == 4
    wait(dtag=("B", 0))
    M(0, 0)
    cvt(1, 0, 4)
    emit_items(b_reads(3)[:1])
    wait(dtag=("B", 1))
    M(0, 1)
    cvt(1, 4, 8)
    emit_items(b_reads(3)[1:])
    e(init_acc(1))
    fill(0); fill(1)
    M(1, 0)
    emit_items(b_reads(4)[:1])
    fill(2)
    M(1, 1)
    emit_items(b_reads(4)[1:])
    fill(3)
    for s in range(2, 30):
        wait(dtag=("B", s))
        M(0, s)
        sn = s + PD
        rd = b_reads(sn) if sn < 32 else []
        emit_items(rd[:1])
        fill(2 * s)
        M(1, s)
        for _ in range(cfg.XMF):
            e(f"v_mfma_f32_32x32x16_bf16 {acc(1)}, v[{ONE}:{ONE+3}], v[{BIA+1}:{BIA+4}], {acc(1)}" if False else f"v_mfma_f32_16x16x32_bf16 v[{BIA+0}:{BIA+3}], v[{ONE}:{ONE+3}], v[{ONE}:{ONE+3}], v[{BIA+0}:{BIA+3}]" if False else f"v_smfmac_f32_32x32x32_bf16 {acc(1)}, v[{BIA+1-1+0}:{BIA+3}], v[{bf(s)}:{bf(s)+7}], v{RIX}" if False else "s_sleep 1")
        emit_items(rd[1:])
        fill(2 * s + 1)
        if s == 28:
            assert not rq, len(rq)
            slow_path()
        if s == 29:
            if cfg.PROF:
                e("s_memtime s[54:55]")
            if cfg.NODMA:
                e("s_waitcnt lgkmcnt(0)")
            else:
                e(f"s_waitcnt vmcnt({min(vm_n('Xn'),63)}) lgkmcnt(0)")
            e("s_barrier")
            if cfg.PROF:
                e("s_memtime s[56:57]")
                e("s_waitcnt lgkmcnt(0)")
                e("s_sub_u32 s56, s56, s54")
                e("s_add_u32 s52, s52, s56")
            e(f"v_add_u32 v{vLB}, s29, v{vLB}")
            e(f"v_add_u32 v{vRB}, s29, v{vRB}")
            emit_items(b_reads(0))
    M(0, 30)
    emit_items(b_reads(1))
    e("s_sub_u32 s32, s32, s29")
    e("s_sub_u32 s29, 0, s29")
    M(0, 31)
    e("s_mov_b32 s34, s33")
    e("s_add_u32 s33, s33, 0x10000")
    e("s_add_u32 s37, s37, 0x10000")
    e("s_add_u32 s41, s41, 0x10000")
    e("s_add_u32 s39, s39, 1")
    M(1, 30)
    emit_items(b_reads(2))
    e("s_cmp_lt_u32 s39, 8")
    e("s_nop 2")
    M(1, 31)
    cvt(0, 0, 8)
    e(init_acc(0))
    e("s_cbranch_scc1 L_loop")
    e("s_nop 7")
    cvt(1, 0, 8)
    wr, rb, st = epilogue_items()
    e("s_nop 1")
    emit_items(wr); emit_items(rb); emit_items(st)
    if cfg.PROF:
        e("s_memtime s[54:55]")
        e("s_memrealtime s[98:99]")
        e("s_waitcnt lgkmcnt(0)")
        e("s_sub_u32 s56, s50, s48")
        e("s_sub_u32 s57, s54, s50")
        e("s_sub_u32 s48, s98, s96")
        e("s_nop 4")
        e(f"v_mov_b32 v{GD}, s56")
        e(f"v_mov_b32 v{GD+1}, s52")
        e(f"v_mov_b32 v{GD+2}, s57")
        e(f"v_mov_b32 v{GD+3}, s48")
        e("s_lshl_b32 s36, s2, 2")
        e("s_add_u32 s36, s36, s24")
        e("s_lshl_b32 s36, s36, 4")
        e("s_add_u32 s36, s36, 0x8000000")
        e(f"v_mov_b32 v{GD+8}, 0")
        e(f"v_mov_b32 v{GD+4}, s94")
        e(f"v_mov_b32 v{GD+5}, s95")
        e(f"v_mov_b32 v{GD+6}, s53")
        e(f"v_mov_b32 v{GD+7}, 0")
        e(f"buffer_store_dwordx4 v[{GD}:{GD+3}], v{GD+8}, s[20:23], s36 offen")
        e("s_add_u32 s36, s36, 0x100000")
        e(f"buffer_store_dwordx4 v[{GD+4}:{GD+7}], v{GD+8}, s[20:23], s36 offen")
        e("s_nop 2")
        e(f"v_mov_b32 v{GD+4}, s96")
        e(f"v_mov_b32 v{GD+5}, s100")
        e(f"v_mov_b32 v{GD+6}, s101")
        e(f"v_mov_b32 v{GD+7}, s98")
        e("s_add_u32 s36, s36, 0x100000")
        e(f"buffer_store_dwordx4 v[{GD+4}:{GD+7}], v{GD+8}, s[20:23], s36 offen")
        if cfg.SEG:
            e("s_nop 2")
            for i in range(8): e(f"v_mov_b32 v{GD+i}, s{80+i}")
            e("s_add_u32 s36, s36, 0x100000")
            e(f"buffer_store_dwordx4 v[{GD}:{GD+3}], v{GD+8}, s[20:23], s36 offen")
            e("s_add_u32 s36, s36, 0x100000")
            e(f"buffer_store_dwordx4 v[{GD+4}:{GD+7}], v{GD+8}, s[20:23], s36 offen")
    if cfg.DBG:
        e("s_memrealtime s[56:57]")
        e("s_waitcnt vmcnt(0)")
        e("s_memrealtime s[98:99]")
        e("s_waitcnt lgkmcnt(0)")
        e("s_sub_u32 s98, s98, s96")
        e("s_sub_u32 s100, s100, s96")
        e("s_sub_u32 s50, s50, s96")
        e("s_sub_u32 s56, s56, s96")
        e(f"v_mov_b32 v{GD}, s100")
        e(f"v_mov_b32 v{GD+1}, s50")
        e(f"v_mov_b32 v{GD+2}, s56")
        e(f"v_mov_b32 v{GD+3}, s98")
        e(f"v_mov_b32 v{GD+4}, 0")
        e("s_and_b32 s36, s2, 63")
        e("s_or_b32 s36, s36, s24")
        e("s_cbranch_scc1 L_main_end")
        e("s_lshr_b32 s36, s2, 6")
        e("s_lshl_b32 s36, s36, 4")
        e(f"v_cmp_eq_u32 vcc, 0, v{vDX}")
        e("s_and_saveexec_b64 s[66:67], vcc")
        e(f"buffer_store_dwordx4 v[{GD}:{GD+3}], v{GD+4}, s[72:75], s36 offen")
    e("L_main_end:")
    e("s_endpgm")


gen_main()
_n = 0
L2 = []
for ln in L:
    if ln.strip() == "X0LOOP":
        _n += 1
        L2 += [f"L_x0_loop{_n}:", f"    s_mul_i32 s40, s38, {RS}", "    s_mov_b32 m0, s40", "    s_lshl_b32 s40, s38, 11", "    s_add_u32 s40, s40, s37",
               "    buffer_load_dwordx4 v3, s[12:15], s40 offen lds", "    buffer_load_dwordx4 v3, s[12:15], s40 offen offset:1024 lds",
               "    s_add_u32 s38, s38, 1", "    s_cmp_lt_u32 s38, s39", f"    s_cbranch_scc1 L_x0_loop{_n}"]
    else:
        L2.append(ln)
L = L2

tail = """
.section .rodata,"a"
.p2align 6
.amdhsa_kernel standalone__structured_sparse_n_m__ragged_kernel
  .amdhsa_next_free_vgpr 512
  .amdhsa_next_free_sgpr 102
  .amdhsa_accum_offset 256
  .amdhsa_group_segment_fixed_size 0
  .amdhsa_kernarg_size 48
  .amdhsa_user_sgpr_count 2
  .amdhsa_user_sgpr_kernarg_segment_ptr 1
  .amdhsa_system_sgpr_workgroup_id_x 1
.end_amdhsa_kernel
"""
open(OUT, "w").write(hdr + "\n".join(L) + "\n" + tail)
print("wrote", OUT, len(L), "lines")
```

```python
import sys, os

OUT = os.environ.get("GEN_OUT", "standalone__structured_sparse_n_m__ragged.s")

WS_CNT = 0x0
WS_WI = 0x4000
WS_WA = 0x40000
WS_ENT = 0x200000
WS_FLG = 0x400000
WS_SIZE = 0x10000000

class Cfg:
    NB = 4
    PD = 3
    RCH = 8
    RU = 6
    TD = 2
    RPER = 34
    RLAT = 6
    DGS = 4
    TMO = 20000
    SLP = 8
    SLP0 = 64
    PROF = 0
    WDMA = 0
    XMF = 0
    PERM = 0
    NOST = 0
    NOTR = 0
    XEARLY = 0
    FSH = 7
    SEG = 0
    EW0 = 33
    EWS = 3
    ER0 = 46
    ERS = 1
    ES0 = 51
    ESS = 2
    DG0 = 0
    WSC = 1
    INV = 1
    GSPREAD = 1
    RNOG = 0
    RNOM = 0
    RNOA = 0
    STM = 2
    DBG = 0
    NODMA = 0
    NORES = 0
    NOEPI = 0

cfg = Cfg()
for a in sys.argv[1:]:
    k, v = a.split("=")
    setattr(cfg, k, int(v))

RS = 4144
BUF1 = 2064
PADOFF = 2048
LDS_X = 32 * RS
LDS_TR = LDS_X
TRS = 144
LDS_SCR = LDS_TR + 4 * 32 * TRS
LDS_TOTAL = LDS_SCR + 256 + 16

L = []
def e(s=""):
    L.append("    " + s if s and not s.endswith(":") else s)

hdr = f"""; 2:4 structured-sparse GEMM  out = x @ prune24(w) + b   (B*S=16384, D=1024), bf16
; @launch grid=(256,1,1) block=(256,1,1) lds={LDS_TOTAL}
.amdgcn_target "amdgcn-amd-amdhsa--gfx950"
.text
"""


def gen_prep_slice():
    TBL = {0: 4, 1: 4, 2: 4, 4: 8, 8: 12, 3: 4, 5: 8, 6: 9, 7: 4, 9: 12, 10: 13, 11: 4, 12: 14, 13: 8, 14: 9, 15: 4}
    T64 = 0
    for k, v in TBL.items():
        T64 |= v << (4 * k)
    ET = {7: 1, 11: 2, 13: 2, 14: 2, 15: 3}
    E32 = 0
    for k, v in ET.items():
        E32 |= v << (2 * k)
    R = 64
    def v(n): return f"v{R+n}"
    e(f"v_lshlrev_b32 {v(3)}, 2, v0")
    e("s_lshl_b32 s89, s87, 15")
    e("s_lshl_b32 s90, s88, 10")
    e("s_add_u32 s89, s89, s90")
    D = 8
    for kk in range(0, 16, 2):
        e(f"buffer_load_dword {v(D+kk)}, {v(3)}, s[68:71], s89 offen")
        e(f"buffer_load_dword {v(D+kk+1)}, {v(3)}, s[68:71], s89 offen offset:2048")
        if kk < 14:
            e("s_add_u32 s89, s89, 4096")
    if cfg.XEARLY:
        e("s_cmp_lg_u32 s95, 0")
        e("s_cbranch_scc1 L_prep_nox")
        e("s_lshl_b32 s38, s24, 3")
        e("s_add_u32 s39, s38, 8")
        e("X0LOOP")
        e("L_prep_nox:")
    e("s_mov_b32 s76, 0x7fff7fff")
    e("s_mov_b32 s77, 0x00010001")
    e("s_mov_b32 s78, 0x000f000f")
    e(f"s_mov_b32 s80, {T64 & 0xffffffff:#x}")
    e(f"s_mov_b32 s81, {T64 >> 32:#x}")
    e(f"s_mov_b32 s82, {E32:#x}")
    e("s_mov_b32 s83, 0x05040100")
    e("s_mov_b32 s84, 0x07060302")
    e("s_mov_b32 s85, 0x01000100")
    e("s_mov_b32 s86, 0x0202")
    e(f"v_and_b32 {v(1)}, 15, v0")
    e(f"v_lshrrev_b32 {v(2)}, 4, v0")
    e("s_lshl_b32 s90, s88, 4")
    e(f"v_add_u32 {v(2)}, s90, {v(2)}")
    e(f"v_and_b32 {v(4)}, 9, {v(1)}")
    e(f"v_bfe_u32 {v(5)}, {v(1)}, 1, 1")
    e(f"v_bfe_u32 {v(6)}, {v(1)}, 2, 1")
    e(f"v_lshl_or_b32 {v(4)}, {v(5)}, 2, {v(4)}")
    e(f"v_lshl_or_b32 {v(4)}, {v(6)}, 1, {v(4)}")
    e(f"v_lshlrev_b32 {v(4)}, 1, {v(4)}")
    e(f"v_lshlrev_b32 {v(24)}, 15, {v(2)}")
    e(f"v_lshl_add_u32 {v(24)}, {v(4)}, 4, {v(24)}")
    e(f"v_lshlrev_b32 {v(25)}, 12, {v(2)}")
    e(f"v_lshl_add_u32 {v(25)}, {v(4)}, 4, {v(25)}")
    e("s_lshr_b32 s91, s87, 1")
    e("s_and_b32 s92, s87, 1")
    e("s_lshl_b32 s93, s91, 10")
    e("s_lshl_b32 s92, s92, 9")
    e("s_add_u32 s93, s93, s92")
    e(f"s_add_u32 s93, s93, {WS_WA:#x}")
    e("s_lshr_b32 s94, s91, 3")
    e("s_lshl_b32 s94, s94, 10")
    e("s_add_u32 s94, s94, s92")
    e("s_and_b32 s91, s91, 7")
    e("s_lshl_b32 s91, s91, 1")
    e("s_add_u32 s94, s94, s91")
    e(f"s_add_u32 s94, s94, {WS_WI:#x}")
    e(f"v_mov_b32 {v(36)}, 0")
    e(f"v_mov_b32 {v(37)}, 0")
    e(f"v_mov_b32 {v(38)}, 0")
    e("s_mov_b32 s89, 0")
    if cfg.XEARLY:
        e("s_cmp_lg_u32 s95, 0")
        e("s_cbranch_scc1 L_prep_w0")
        e("s_waitcnt vmcnt(16)")
        e("s_branch L_pg")
        e("L_prep_w0:")
    e("s_waitcnt vmcnt(0)")
    a, b, c, d = 50, 51, 52, 53
    e("L_pg:")
    e("s_set_gpr_idx_on s89, 0x1")
    e("s_nop 0")
    for i in range(4):
        e(f"v_mov_b32 {v(50+i)}, {v(D+i)}")
    e("s_set_gpr_idx_off")
    for i, r in enumerate((a, b, c, d)):
        e(f"v_and_b32 {v(40+i)}, s76, {v(r)}")
    e(f"v_pk_max_u16 {v(44)}, {v(40)}, {v(41)}")
    e(f"v_pk_min_u16 {v(45)}, {v(40)}, {v(41)}")
    e(f"v_pk_max_u16 {v(46)}, {v(42)}, {v(43)}")
    e(f"v_pk_min_u16 {v(47)}, {v(42)}, {v(43)}")
    e(f"v_pk_min_u16 {v(44)}, {v(44)}, {v(46)}")
    e(f"v_pk_max_u16 {v(45)}, {v(45)}, {v(47)}")
    e(f"v_pk_max_u16 {v(44)}, {v(44)}, {v(45)}")
    e(f"v_pk_max_u16 {v(44)}, {v(44)}, s77")
    for i in range(4):
        e(f"v_pk_sub_u16 {v(40+i)}, {v(44)}, {v(40+i)} clamp")
    for i in range(4):
        e(f"v_pk_min_u16 {v(40+i)}, {v(40+i)}, s77")
    e(f"v_lshl_or_b32 {v(40)}, {v(41)}, 1, {v(40)}")
    e(f"v_lshl_or_b32 {v(40)}, {v(42)}, 2, {v(40)}")
    e(f"v_lshl_or_b32 {v(40)}, {v(43)}, 3, {v(40)}")
    e(f"v_xor_b32 {v(40)}, s78, {v(40)}")
    e("s_lshr_b32 s90, s89, 2")
    for ee in range(2):
        sel = 83 + ee
        e(f"v_bfe_u32 {v(41)}, {v(40)}, {16*ee}, 4")
        e(f"v_lshlrev_b32 {v(42)}, 2, {v(41)}")
        e(f"v_lshrrev_b64 v[{R+46}:{R+47}], {v(42)}, s[80:81]")
        e(f"v_and_b32 {v(46)}, 15, {v(46)}")
        e(f"v_lshl_or_b32 {v(36+ee)}, {v(46)}, s89, {v(36+ee)}")
        e(f"v_perm_b32 {v(48)}, {v(b)}, {v(a)}, s{sel}")
        e(f"v_perm_b32 {v(49)}, {v(d)}, {v(c)}, s{sel}")
        e(f"v_and_b32 {v(47)}, 3, {v(46)}")
        e(f"v_lshrrev_b32 {v(46)}, 2, {v(46)}")
        e(f"v_lshl_or_b32 {v(46)}, {v(46)}, 16, {v(47)}")
        e(f"v_mov_b32 {v(47)}, s85")
        e(f"v_mad_u32_u24 {v(46)}, {v(46)}, s86, {v(47)}")
        e(f"v_perm_b32 {v(54+ee)}, {v(49)}, {v(48)}, {v(46)}")
        e(f"v_lshlrev_b32 {v(42)}, 1, {v(41)}")
        e(f"v_lshrrev_b32 {v(43)}, {v(42)}, s82")
        e(f"v_and_b32 {v(43)}, 3, {v(43)}")
        if ee:
            e(f"v_lshlrev_b32 {v(43)}, 2, {v(43)}")
        e(f"v_lshl_or_b32 {v(38)}, {v(43)}, s89, {v(38)}")
    e("s_set_gpr_idx_on s90, 0x8")
    e("s_nop 0")
    e(f"v_mov_b32 {v(28)}, {v(54)}")
    e(f"v_mov_b32 {v(32)}, {v(55)}")
    e("s_set_gpr_idx_off")
    e("s_add_u32 s89, s89, 4")
    e("s_cmp_lt_u32 s89, 16")
    e("s_cbranch_scc1 L_pg")
    e(f"buffer_store_dwordx4 v[{R+28}:{R+31}], {v(24)}, s[20:23], s93 offen sc1")
    e(f"buffer_store_dwordx4 v[{R+32}:{R+35}], {v(24)}, s[20:23], s93 offen offset:16 sc1")
    e(f"buffer_store_short {v(36)}, {v(25)}, s[20:23], s94 offen sc1")
    e(f"buffer_store_short {v(37)}, {v(25)}, s[20:23], s94 offen offset:16 sc1")
    e(f"v_bcnt_u32_b32 {v(39)}, {v(38)}, 0")
    e(f"v_mov_b32 {v(40)}, {v(39)}")
    e("s_nop 1")
    for sh in (1, 2, 4, 8):
        e(f"v_add_u32_dpp {v(40)}, {v(40)}, {v(40)} row_shr:{sh} row_mask:0xf bank_mask:0xf bound_ctrl:0")
        e("s_nop 1")
    e(f"v_lshlrev_b32 {v(41)}, 8, {v(2)}")
    e("s_lshl_b32 s89, s87, 2")
    e(f"v_cmp_eq_u32 vcc, 15, {v(1)}")
    e("s_and_saveexec_b64 s[66:67], vcc")
    e(f"buffer_store_dword {v(40)}, {v(41)}, s[20:23], s89 offen offset:{WS_CNT} sc1")
    e("s_mov_b64 exec, s[66:67]")
    e(f"v_sub_u32 {v(40)}, {v(40)}, {v(39)}")
    e(f"v_lshlrev_b32 {v(41)}, 16, {v(2)}")
    e("s_lshl_b32 s93, s87, 10")
    e(f"s_add_u32 s93, s93, {WS_ENT:#x}")
    e("s_mov_b32 s89, 0")
    e("L_pe:")
    e(f"v_cmp_ne_u32 vcc, 0, {v(38)}")
    e("s_cbranch_vccz L_pe_done")
    e(f"v_and_b32 {v(42)}, 1, {v(38)}")
    e(f"v_cmp_ne_u32 vcc, 0, {v(42)}")
    e("s_and_saveexec_b64 s[66:67], vcc")
    e("s_cbranch_execz L_pe_next")
    e("s_and_b32 s90, s89, 12")
    e("s_and_b32 s91, s89, 1")
    e("s_add_u32 s92, s90, s91")
    e("s_set_gpr_idx_on s92, 0x1")
    e("s_nop 0")
    e(f"v_mov_b32 {v(43)}, {v(D+2)}")
    e("s_set_gpr_idx_off")
    e("s_bfe_u32 s92, s89, 0x10001")
    e("s_lshl_b32 s94, s92, 4")
    e(f"v_lshrrev_b32 {v(43)}, s94, {v(43)}")
    e(f"v_and_b32 {v(43)}, 0xffff, {v(43)}")
    e("s_lshl_b32 s94, s87, 18")
    e("s_lshl_b32 s90, s90, 14")
    e("s_add_u32 s94, s94, s90")
    e("s_add_u32 s91, s91, 2")
    e("s_lshl_b32 s91, s91, 24")
    e("s_add_u32 s94, s94, s91")
    e("s_lshl_b32 s92, s92, 26")
    e("s_add_u32 s94, s94, s92")
    e(f"v_or_b32 {v(43)}, s94, {v(43)}")
    e(f"v_lshl_add_u32 {v(43)}, {v(4)}, 26, {v(43)}")
    e(f"v_lshl_add_u32 {v(42)}, {v(40)}, 2, {v(41)}")
    e(f"buffer_store_dword {v(43)}, {v(42)}, s[20:23], s93 offen sc1")
    e(f"v_add_u32 {v(40)}, 1, {v(40)}")
    e("L_pe_next:")
    e("s_mov_b64 exec, s[66:67]")
    e(f"v_lshrrev_b32 {v(38)}, 1, {v(38)}")
    e("s_add_u32 s89, s89, 1")
    e("s_branch L_pe")
    e("L_pe_done:")


def gen_main():
    NB, PD, RCH, RU = cfg.NB, cfg.PD, cfg.RCH, cfg.RU
    nxt = [1]
    def alloc(n, align=1):
        while nxt[0] % align:
            nxt[0] += 1
        r = nxt[0]
        nxt[0] += n
        return r
    vTW = 0
    vLB = alloc(1); vRB = alloc(1); vDX = alloc(1); vST = alloc(1); vTC = alloc(1); vTR = alloc(1)
    IDX = alloc(32, 4)
    ACC = alloc(32, 4)
    EP = alloc(16, 4)
    BF = alloc(8 * NB, 4)
    BIA = alloc(8, 4)
    ONE = alloc(4, 4)
    RAF = alloc(2 * RCH * 4, 4)
    RIX = alloc(2 * RCH // 2, 4)
    RPK = alloc(2 * RCH * 2, 4)
    GD = alloc(16, 4)
    TMP = alloc(4)
    assert nxt[0] <= 256, nxt[0]
    assert ACC == 40 and BIA >= 64 + 56

    def A(j, s):
        b = (s * 2 + j) * 4
        return f"a[{b}:{b+3}]"
    def acc(j):
        b = ACC + j * 16
        return f"v[{b}:{b+15}]"
    def bf(s):
        return BF + (s % NB) * 8

    ds = []
    vm = []
    def is_mark(t):
        return isinstance(t, tuple) and t[0] == "Gmark"
    def ds_issue(tag, ins):
        e(ins); ds.append(tag)
    def vm_issue(tag, ins):
        e(ins); vm.append(tag)
    def ds_n(tag):
        idx = max(i for i, t in enumerate(ds) if t == tag)
        return sum(1 for t in ds[idx+1:] if not is_mark(t))
    def vm_n(tag):
        idx = max(i for i, t in enumerate(vm) if t == tag)
        return len(vm) - 1 - idx
    def wait(dtag=None, vtag=None):
        w = []
        if vtag is not None:
            w.append(f"vmcnt({min(vm_n(vtag), 63)})")
        if dtag is not None:
            w.append(f"lgkmcnt({min(ds_n(dtag), 15)})")
        e("s_waitcnt " + " ".join(w))

    name = "standalone__structured_sparse_n_m__ragged_kernel"
    e(f".globl {name}")
    e(".p2align 8")
    e(f".type {name},@function")
    e(f"{name}:")
    e("s_cmp_ge_u32 s2, 256")
    e("s_cbranch_scc1 L_main_end")
    if cfg.PROF or cfg.DBG:
        e("s_memtime s[48:49]")
        e("s_memrealtime s[96:97]")
        e("s_mov_b32 s52, 0")
    e("s_load_dwordx4 s[4:7], s[0:1], 0")
    e("s_load_dwordx4 s[8:11], s[0:1], 16")
    e("s_load_dwordx4 s[72:75], s[0:1], 32")
    e(f"v_lshrrev_b32 v{vTR}, 6, v0")
    e("s_nop 0")
    e(f"v_readfirstlane_b32 s24, v{vTR}")
    e("s_and_b32 s25, s2, 7")
    e("s_lshr_b32 s26, s2, 3")
    e("s_and_b32 s27, s26, 3")
    e("s_lshr_b32 s26, s26, 2")
    e("s_lshl_b32 s25, s25, 3")
    e("s_add_u32 s26, s26, s25")
    e("s_lshl_b32 s28, s27, 2")
    e("s_add_u32 s28, s28, s24")
    e("s_lshr_b32 s87, s2, 1")
    e("s_and_b32 s88, s2, 1")
    e("s_mov_b32 s95, 0")
    e("s_waitcnt lgkmcnt(0)")
    e("s_mov_b32 s12, s4"); e("s_and_b32 s13, s5, 0xffff"); e("s_mov_b32 s14, 0x2000000"); e("s_mov_b32 s15, 0x00020000")
    e("s_mov_b32 s16, s10"); e("s_and_b32 s17, s11, 0xffff"); e("s_mov_b32 s18, 0x2000000"); e("s_mov_b32 s19, 0x00020000")
    e("s_mov_b32 s20, s74"); e("s_and_b32 s21, s75, 0xffff"); e(f"s_mov_b32 s22, {WS_SIZE:#x}"); e("s_mov_b32 s23, 0x00020000")
    e("s_mov_b32 s44, s8"); e("s_and_b32 s45, s9, 0xffff"); e("s_mov_b32 s46, 0x800"); e("s_mov_b32 s47, 0x00020000")
    e("s_mov_b32 s68, s6"); e("s_and_b32 s69, s7, 0xffff"); e("s_mov_b32 s70, 0x200000"); e("s_mov_b32 s71, 0x00020000")
    e("s_and_b32 s73, s73, 0xffff"); e("s_mov_b32 s74, 0x100"); e("s_mov_b32 s75, 0x00020000")
    e(f"v_mov_b32 v{GD+9}, 0")
    e(f"v_mov_b32 v{GD+10}, 1")
    e(f"v_and_b32 v{vDX}, 63, v0")
    e(f"v_lshlrev_b32 v{vTC}, 6, v{vDX}")
    e(f"v_lshlrev_b32 v{vDX}, 4, v{vDX}")
    e("s_lshl_b32 s37, s26, 19")
    e("s_lshl_b32 s36, s2, 2")
    e("s_add_u32 s36, s36, s24")
    e("s_cmp_lg_u32 s36, 3")
    e("s_cbranch_scc1 L_no_nonce")
    e("s_memrealtime s[90:91]")
    e("s_waitcnt lgkmcnt(0)")
    e("s_or_b32 s90, s90, 1")
    e(f"v_mov_b32 v{GD+11}, s90")
    e(f"v_cmp_eq_u32 vcc, 0, v{vDX}")
    e("s_and_saveexec_b64 s[66:67], vcc")
    e(f"buffer_store_dword v{GD+11}, v{GD+9}, s[72:75], 0 offen sc1")
    e("s_mov_b64 exec, s[66:67]")
    e("L_no_nonce:")
    for r in (ACC, ACC + 1, GD + 5, vST):
        e(f"v_mov_b32 v{r}, 0")
    e(f"v_mov_b32 v{TMP}, v0")
    e("s_cmp_ge_u32 s2, 128")
    e("s_cbranch_scc1 L_setup")
    e("L_prep_again:")
    e(f"v_mov_b32 v0, v{TMP}")
    gen_prep_slice()
    e("s_cmp_eq_u32 s95, 0")
    e("s_cbranch_scc1 L_prep_signal0")
    e("s_add_u32 s87, s87, 1")
    e("s_cmp_lt_u32 s87, 64")
    e("s_cbranch_scc1 L_prep_again")
    e(f"v_mov_b32 v0, v{TMP+1}")
    e("s_waitcnt vmcnt(0)")
    e("s_barrier")
    e("s_branch L_sync_done")
    e("L_prep_signal0:")
    if cfg.PROF:
        e("s_memrealtime s[56:57]")
    e("L_setup:")
    T = GD
    TT = ACC
    e(f"v_and_b32 v{T}, 63, v0")
    e(f"v_lshlrev_b32 v{TT+0}, 2, v{T}")
    e(f"v_lshlrev_b32 v{TT+1}, 10, v{T}")
    e(f"v_lshlrev_b32 v{vDX}, 4, v{T}")
    e(f"v_and_b32 v{T+1}, 31, v0")
    e(f"v_bfe_u32 v{T+2}, v0, 5, 1")
    e(f"v_and_b32 v{T+5}, 0x13, v{T+1}")
    e(f"v_bfe_u32 v{T+4}, v{T+1}, 2, 1")
    e(f"v_lshl_or_b32 v{T+5}, v{T+4}, 3, v{T+5}")
    e(f"v_bfe_u32 v{T+4}, v{T+1}, 3, 1")
    e(f"v_lshl_or_b32 v{T+5}, v{T+4}, 2, v{T+5}")
    e(f"v_lshlrev_b32 v{T+5}, 1, v{T+5}")
    e(f"v_mul_u32_u24 v{vRB}, {RS}, v{T+1}")
    e(f"v_lshl_add_u32 v{vLB}, v{T+2}, 4, v{vRB}")
    e(f"v_lshrrev_b32 v{T+6}, 3, v{T}")
    e(f"v_and_b32 v{T+7}, 7, v{T}")
    if cfg.PERM == 2:
        e(f"v_and_b32 v{vST}, 7, v{T}")
        e(f"v_lshlrev_b32 v{vST}, 11, v{vST}")
        e(f"v_bfe_u32 v{T+4}, v{T}, 4, 1")
        e(f"v_lshl_add_u32 v{vST}, v{T+4}, 5, v{vST}")
        e(f"v_lshl_add_u32 v{vST}, v{T+2}, 4, v{vST}")
        e(f"v_bfe_u32 v{T+4}, v{T}, 3, 1")
        e(f"v_lshl_add_u32 v{vST}, v{T+4}, 6, v{vST}")
    elif cfg.PERM:
        e(f"v_and_b32 v{vST}, 15, v{T}")
        e(f"v_lshlrev_b32 v{vST}, 11, v{vST}")
        e(f"v_bfe_u32 v{T+4}, v{T}, 4, 1")
        e(f"v_lshl_add_u32 v{vST}, v{T+4}, 5, v{vST}")
        e(f"v_lshl_add_u32 v{vST}, v{T+2}, 4, v{vST}")
    else:
        e(f"v_lshlrev_b32 v{vST}, 11, v{T+6}")
        e(f"v_lshl_add_u32 v{vST}, v{T+7}, 4, v{vST}")
    e(f"s_mul_i32 s38, s24, {32*TRS}")
    e(f"s_add_u32 s38, s38, {LDS_TR}")
    e(f"v_mul_u32_u24 v{vTR}, {TRS}, v{T+6}")
    e(f"v_lshl_add_u32 v{vTR}, v{T+7}, 4, v{vTR}")
    e(f"v_add_u32 v{vTR}, s38, v{vTR}")
    e(f"v_mul_u32_u24 v{vTW}, {TRS}, v{T+1}")
    e(f"v_lshl_add_u32 v{vTW}, v{T+2}, 4, v{vTW}")
    e(f"v_add_u32 v{vTW}, s38, v{vTW}")
    e(f"v_mov_b32 v{TMP+1}, v{vTW}")
    e(f"v_lshlrev_b32 v{vTC}, 6, v{T}")
    e(f"v_lshlrev_b32 v{T+3}, 3, v{T+2}")
    e(f"s_mul_i32 s35, s24, {8*RS}")
    e(f"s_add_u32 s36, s35, {BUF1}")
    e(f"v_add_u32 v{TT+2}, s36, v{vDX}")
    e(f"v_add_u32 v{TT+3}, s38, v{vDX}")
    Z = TT + 28
    for i in range(4):
        e(f"v_mov_b32 v{Z+i}, 0")
    e(f"v_mov_b32 v{TT+32}, {PADOFF | (PADOFF << 16):#x}")
    e(f"v_add_u32 v{TT+33}, s38, v{TT+0}")
    for j in range(2):
        for c in range(RCH):
            e(f"ds_write_b128 v{TT+2}, v[{Z}:{Z+3}] offset:{(4*j + (c>>1))*RS + (c&1)*1024}")
        e(f"ds_write_b128 v{TT+3}, v[{Z}:{Z+3}] offset:{j*1024}")
    e(f"ds_write_b32 v{TT+33}, v{TT+32} offset:2048")
    e(f"v_mov_b32 v{T+6}, 0x3f803f80")
    e(f"v_mov_b32 v{T+7}, 0x3f803f80")
    e(f"ds_write_b64 v{vRB}, v[{T+6}:{T+7}] offset:{PADOFF}")
    e(f"ds_write_b64 v{vRB}, v[{T+6}:{T+7}] offset:{BUF1+PADOFF}")
    e("s_cmp_ge_u32 s2, 128")
    e("s_cbranch_scc1 L_prep_skip")
    e(f"buffer_load_dword v{GD+11}, v{GD+9}, s[72:75], 0 offen sc1")
    e(f"s_waitcnt vmcnt(0)")
    e("s_barrier")
    if cfg.PROF:
        e("s_memrealtime s[54:55]")
        e("s_waitcnt lgkmcnt(0)")
        e("s_mov_b32 s99, s54")
        e("s_mov_b32 s57, s56")
    e("s_cmp_lg_u32 s24, 0")
    e("s_cbranch_scc1 L_x0")
    e("s_mov_b32 s38, 1")
    e("s_memrealtime s[90:91]")
    e("s_branch L_nonce_chk")
    e("L_prep_skip:")
    e("s_cmp_lg_u32 s24, 0")
    e("s_cbranch_scc1 L_x0")
    e("s_mov_b32 s38, 0")
    e("s_memrealtime s[90:91]")
    for _ in range(cfg.SLP0 // 64):
        e("s_sleep 64")
    e("L_nonce_poll:")
    e(f"buffer_load_dword v{GD+11}, v{GD+9}, s[72:75], 0 offen sc1")
    e("s_waitcnt vmcnt(0)")
    e("L_nonce_chk:")
    e(f"v_readfirstlane_b32 s89, v{GD+11}")
    e("s_memrealtime s[92:93]")
    e("s_waitcnt lgkmcnt(0)")
    e("s_sub_u32 s92, s92, s90")
    e("s_cmp_lg_u32 s89, 0")
    e("s_cbranch_scc1 L_nonce_ok")
    e("s_sleep 8")
    e(f"s_cmp_lt_u32 s92, {cfg.TMO}")
    e("s_cbranch_scc1 L_nonce_poll")
    e("s_branch L_poll_fail")
    e("L_nonce_ok:")
    e("s_cmp_eq_u32 s38, 0")
    e("s_cbranch_scc1 L_poll_setup")
    e("s_lshl_b32 s36, s88, 6")
    e("s_add_u32 s36, s36, s87")
    e("s_lshl_b32 s36, s36, 7")
    e(f"s_add_u32 s36, s36, {WS_FLG:#x}")
    e(f"v_cmp_eq_u32 vcc, 0, v{vDX}")
    e("s_and_saveexec_b64 s[66:67], vcc")
    e(f"buffer_store_dword v{GD+11}, v{GD+9}, s[20:23], s36 offen sc1")
    e("s_mov_b64 exec, s[66:67]")
    e("L_poll_setup:")
    e("s_lshr_b32 s36, s27, 1")
    e("s_lshl_b32 s36, s36, 13")
    e(f"s_add_u32 s36, s36, {WS_FLG:#x}")
    e(f"v_lshlrev_b32 v{GD+12}, 3, v{vDX}")
    e("L_poll:")
    e(f"buffer_load_dword v{GD+11}, v{GD+12}, s[20:23], s36 offen sc1")
    e("s_memrealtime s[92:93]")
    e("s_waitcnt vmcnt(0) lgkmcnt(0)")
    e(f"v_cmp_ne_u32 vcc, s89, v{GD+11}")
    e("s_sub_u32 s92, s92, s90")
    e("s_cmp_eq_u64 vcc, 0")
    e("s_cbranch_scc1 L_poll_ok")
    if cfg.SLP: e(f"s_sleep {cfg.SLP}")
    e(f"s_cmp_lt_u32 s92, {cfg.TMO}")
    e("s_cbranch_scc1 L_poll")
    e("L_poll_fail:")
    e(f"v_mov_b32 v{GD+9}, 1")
    e("L_poll_ok:")
    if not cfg.WSC and cfg.INV:
        e("buffer_inv sc1")
        e("s_waitcnt vmcnt(0)")
    e(f"v_mov_b32 v{GD+10}, {LDS_SCR + 256}")
    e(f"ds_write_b32 v{GD+10}, v{GD+9}")
    e("s_waitcnt lgkmcnt(0)")
    e("s_branch L_sync_wait")
    e("L_x0:")
    e("s_sub_u32 s36, s24, 1")
    if cfg.XEARLY:
        e("s_cmp_lt_u32 s2, 128")
        e("s_cbranch_scc1 L_x0_done")
    e("s_mul_i32 s38, s36, 11")
    e("s_add_u32 s39, s38, 11")
    e("s_min_u32 s39, s39, 32")
    e("X0LOOP")
    e("L_x0_done:")
    e(f"s_mov_b32 m0, {LDS_SCR}")
    e("s_lshl_b32 s40, s27, 14")
    e("s_add_u32 s40, s40, s37")
    e("s_lshl_b32 s38, s36, 12")
    e("s_add_u32 s40, s40, s38")
    for tb in range(1, cfg.TD):
        e(f"s_add_u32 s38, s40, {tb * 0x10000}")
        e(f"buffer_load_dword v{vTC}, s[12:15], s38 offen lds")
        e(f"s_add_u32 s38, s40, {tb * 0x10000 + 4096}")
        e(f"buffer_load_dword v{vTC}, s[12:15], s38 offen lds")
    e("L_sync_wait:")
    if cfg.PROF:
        e("s_memrealtime s[58:59]")
        e("s_waitcnt lgkmcnt(0)")
        e("s_mov_b32 s100, s58")
    e("s_barrier")
    e(f"v_mov_b32 v{GD+10}, {LDS_SCR + 256}")
    e(f"ds_read_b32 v{GD+9}, v{GD+10}")
    e("s_waitcnt lgkmcnt(0)")
    e(f"v_readfirstlane_b32 s95, v{GD+9}")
    e("s_mov_b32 s87, 0")
    e("s_lshr_b32 s88, s27, 1")
    e("s_cmp_lg_u32 s95, 0")
    e("s_cbranch_scc1 L_prep_again")
    e("L_sync_done:")
    if cfg.PROF:
        e("s_mov_b32 s94, s57")
        e("s_mov_b32 s95, s99")
    if cfg.DBG:
        e("s_memrealtime s[100:101]")
    if cfg.PROF:
        e("s_memtime s[54:55]")
        e("s_memrealtime s[60:61]")
        e("s_waitcnt lgkmcnt(0)")
        e("s_sub_u32 s53, s54, s48")
        e("s_mov_b32 s101, s60")
    e(f"s_mul_i32 s38, s24, {32*TRS}")
    e(f"s_add_u32 s38, s38, {LDS_TR}")
    for j in range(2):
        e("s_lshl_b32 s36, s28, 9")
        e(f"s_add_u32 s36, s36, {WS_CNT + j*256:#x}")
        vm_issue("ent", f"buffer_load_dword v{TT+4+12*j}, v{TT+0}, s[20:23], s36 offen sc1")
        e("s_lshl_b32 s36, s28, 17")
        e(f"s_add_u32 s36, s36, {WS_ENT + j*0x10000:#x}")
        vm_issue("ent", f"buffer_load_dwordx4 v[{TT+8+12*j}:{TT+11+12*j}], v{TT+1}, s[20:23], s36 offen sc1")
        vm_issue("ent", f"buffer_load_dwordx4 v[{TT+12+12*j}:{TT+15+12*j}], v{TT+1}, s[20:23], s36 offen offset:16 sc1")
    e("s_lshl_b32 s36, s28, 7")
    vm_issue("bias", f"buffer_load_ushort v{BIA}, v{T+5}, s[44:47], s36 offen")
    vm_issue("bias", f"buffer_load_ushort v{BIA+4}, v{T+5}, s[44:47], s36 offen offset:64")
    e("s_lshl_b32 s36, s28, 13")
    e(f"s_add_u32 s36, s36, {WS_WI:#x}")
    for j in range(2):
        for u in range(4):
            b = IDX + j * 16 + u * 4
            if j == 1 and u == 0:
                e("s_add_u32 s36, s36, 0x1000")
            vm_issue("W", f"buffer_load_dwordx4 v[{b}:{b+3}], v{vDX}, s[20:23], s36 offen offset:{u*1024}" + (" sc1" if cfg.WSC else ""))
    e("s_lshl_b32 s42, s28, 16")
    e(f"s_add_u32 s42, s42, {WS_WA:#x}")
    e("s_add_u32 s43, s42, 0x8000")
    def w_loads(s0, s1):
        for s in range(s0, s1):
            if s % 4 == 0 and s:
                e("s_add_u32 s42, s42, 0x1000")
                e("s_add_u32 s43, s43, 0x1000")
            for j in range(2):
                if cfg.WDMA and j == 1 and s >= 16:
                    continue
                if True:
                    vm_issue("W", f"buffer_load_dwordx4 {A(j,s)}, v{vDX}, s[20:23], s{42+j} offen offset:{(s%4)*1024}" + (" sc1" if cfg.WSC else ""))
    w_loads(0, 12)
    wait(vtag="ent")
    C = TT + 34; S = TT + 35; E = TT + 36; t = TT + 37
    e("s_mov_b32 s58, 0")
    e(f"s_add_u32 s59, s35, {BUF1}")
    e("s_mov_b32 s60, s38")
    e(f"s_add_u32 s61, s38, 2048")
    e("L_bj:")
    e("s_set_gpr_idx_on s58, 0x1")
    e("s_nop 0")
    e(f"v_mov_b32 v{C}, v{TT+4}")
    e("s_set_gpr_idx_off")
    e(f"v_mov_b32 v{S}, v{C}")
    e(f"v_cmp_lt_u32 vcc, 8, v{C}")
    for sh in (1, 2, 4, 8):
        e("s_nop 0")
        e(f"v_add_u32_dpp v{S}, v{S}, v{S} row_shr:{sh} row_mask:0xf bank_mask:0xf bound_ctrl:0")
        e("s_nop 0")
    e("s_nop 0")
    e(f"v_add_u32_dpp v{S}, v{S}, v{S} row_bcast:15 row_mask:0xa bank_mask:0xf")
    e("s_nop 1")
    e(f"v_add_u32_dpp v{S}, v{S}, v{S} row_bcast:31 row_mask:0xc bank_mask:0xf")
    e("s_nop 1")
    e(f"v_readlane_b32 s36, v{S}, 63")
    e(f"v_sub_u32 v{S}, v{S}, v{C}")
    e("s_cmp_lg_u64 vcc, 0")
    e("s_cselect_b32 s62, 1, 0")
    e(f"s_cmp_gt_u32 s36, {8*RCH}")
    e("s_cselect_b32 s62, 1, s62")
    e("s_add_u32 s36, s36, 7")
    e("s_lshr_b32 s36, s36, 3")
    e("s_cmp_eq_u32 s62, 0")
    e("s_cselect_b32 s36, s36, 0")
    e("s_cmp_eq_u32 s58, 0")
    e("s_cselect_b32 s30, s36, s30")
    e("s_cselect_b32 s64, s62, s64")
    e("s_mov_b32 s31, s36")
    e("s_mov_b32 s65, s62")
    e("s_cmp_lg_u32 s62, 0")
    e("s_cbranch_scc1 L_bj_next")
    e("s_mov_b32 s63, 0")
    e("L_be:")
    e(f"v_cmp_lt_u32 vcc, s63, v{C}")
    e("s_and_saveexec_b64 s[66:67], vcc")
    e("s_cbranch_execz L_be_done")
    e("s_add_u32 s36, s58, s63")
    e("s_set_gpr_idx_on s36, 0x1")
    e("s_nop 0")
    e(f"v_mov_b32 v{E}, v{TT+8}")
    e("s_set_gpr_idx_off")
    e(f"v_add_u32 v{t}, s63, v{S}")
    e(f"v_lshrrev_b32 v{t+1}, 3, v{t}")
    e(f"v_bfe_u32 v{t+2}, v{t}, 2, 1")
    e(f"v_and_b32 v{t+3}, 3, v{t}")
    e(f"v_lshrrev_b32 v{t+4}, 26, v{E}")
    e(f"v_lshl_add_u32 v{t+4}, v{t+2}, 5, v{t+4}")
    e(f"v_lshlrev_b32 v{t+4}, 4, v{t+4}")
    e(f"v_lshrrev_b32 v{t+5}, 1, v{t+1}")
    e(f"v_and_b32 v{t+6}, 1, v{t+1}")
    e(f"v_mul_u32_u24 v{t+7}, {RS}, v{t+5}")
    e(f"v_lshl_add_u32 v{t+7}, v{t+6}, 10, v{t+7}")
    e(f"v_add3_u32 v{t+7}, v{t+7}, v{t+4}, s59")
    e(f"v_lshl_add_u32 v{t+7}, v{t+3}, 2, v{t+7}")
    e(f"ds_write_b16 v{t+7}, v{E}")
    e(f"v_lshl_add_u32 v{t+8}, v{t+5}, 2, v{t+4}")
    e(f"v_add_u32 v{t+8}, s60, v{t+8}")
    e(f"v_lshlrev_b32 v{t+9}, 4, v{t+6}")
    e(f"v_lshl_add_u32 v{t+9}, v{t+3}, 2, v{t+9}")
    e(f"v_bfe_u32 v{t+10}, v{E}, 24, 2")
    e(f"v_lshlrev_b32 v{t+10}, v{t+9}, v{t+10}")
    e(f"ds_or_b32 v{t+8}, v{t+10}")
    e(f"v_lshlrev_b32 v{t+8}, 4, v{t+1}")
    e(f"v_bfe_u32 v{t+9}, v{t}, 1, 1")
    e(f"v_lshl_add_u32 v{t+8}, v{t+9}, 3, v{t+8}")
    e(f"v_lshl_add_u32 v{t+8}, v{t+2}, 2, v{t+8}")
    e(f"v_and_b32 v{t+9}, 1, v{t}")
    e(f"v_lshl_add_u32 v{t+8}, v{t+9}, 1, v{t+8}")
    e(f"v_add_u32 v{t+8}, s61, v{t+8}")
    e(f"v_bfe_u32 v{t+10}, v{E}, 16, 8")
    e(f"v_lshlrev_b32 v{t+10}, 3, v{t+10}")
    e(f"ds_write_b16 v{t+8}, v{t+10}")
    e("s_mov_b64 exec, s[66:67]")
    e("s_add_u32 s63, s63, 1")
    e("s_cmp_lt_u32 s63, 8")
    e("s_cbranch_scc1 L_be")
    e("L_be_done:")
    e("s_mov_b64 exec, s[66:67]")
    e("L_bj_next:")
    e("s_add_u32 s58, s58, 12")
    e(f"s_add_u32 s59, s59, {4*RS}")
    e("s_add_u32 s60, s60, 1024")
    e("s_add_u32 s61, s61, 128")
    e("s_cmp_lt_u32 s58, 24")
    e("s_cbranch_scc1 L_bj")
    e(f"v_add_u32 v{TT+33}, s38, v{T+3}")
    for j in range(2):
        for c in range(RCH):
            b = RAF + (j * RCH + c) * 4
            e(f"ds_read_b128 v[{b}:{b+3}], v{TT+2} offset:{(4*j + (c>>1))*RS + (c&1)*1024}")
            b = RPK + (j * RCH + c) * 2
            e(f"ds_read_b64 v[{b}:{b+1}], v{TT+33} offset:{2048 + j*128 + c*16}")
        e(f"ds_read_b128 v[{RIX+j*4}:{RIX+j*4+3}], v{TT+3} offset:{j*1024}")
    if cfg.WDMA:
        e("s_lshl_b32 s36, s28, 16")
        e(f"s_add_u32 s36, s36, {WS_WA + 0x8000 + 16*1024:#x}")
        e("s_waitcnt lgkmcnt(0)")
        for r in range(8):
            e(f"s_add_u32 m0, s35, {r*RS + BUF1}")
            if r: e("s_add_u32 s36, s36, 2048")
            else: e("s_nop 0")
            vm_issue("WD", f"buffer_load_dwordx4 v{vDX}, s[20:23], s36 offen" + (" sc1" if cfg.WSC else "") + " lds")
            vm_issue("WD", f"buffer_load_dwordx4 v{vDX}, s[20:23], s36 offen offset:1024" + (" sc1" if cfg.WSC else "") + " lds")
    w_loads(12, 32)
    if cfg.WDMA:
        wait(vtag="WD")
        for s_ in range(16, 32):
            k = s_ - 16
            e(f"ds_read_b128 {A(1,s_)}, v{TT+2} offset:{(k>>1)*RS + (k&1)*1024}")
    e("s_lshl_b32 s37, s26, 19")
    e("s_lshl_b32 s33, s24, 14")
    e("s_add_u32 s37, s37, s33")
    e("s_add_u32 s37, s37, 0x10000")
    e("s_lshl_b32 s41, s26, 19")
    e("s_lshl_b32 s33, s27, 14")
    e("s_add_u32 s41, s41, s33")
    e("s_lshl_b32 s33, s24, 12")
    e("s_add_u32 s41, s41, s33")
    e(f"s_add_u32 s41, s41, {cfg.TD * 0x10000}")
    e("s_lshl_b32 s33, s26, 19")
    e("s_lshl_b32 s36, s28, 7")
    e("s_add_u32 s33, s33, s36")
    e("s_mov_b32 s34, 0x40000000")
    e("s_mov_b32 s39, 0")
    e(f"s_mov_b32 s29, {BUF1}")
    e(f"s_add_u32 s32, s35, {BUF1}")
    wait(vtag="bias")
    e(f"v_cmp_eq_u32 vcc, 0, v{T+2}")
    for i in (1, 2, 3, 5, 6, 7):
        e(f"v_mov_b32 v{BIA+i}, 0")
    e(f"v_cndmask_b32 v{BIA}, 0, v{BIA}, vcc")
    e(f"v_cndmask_b32 v{BIA+4}, 0, v{BIA+4}, vcc")
    e(f"v_mov_b32 v{ONE}, 0x3f80")
    for i in (1, 2, 3):
        e(f"v_mov_b32 v{ONE+i}, 0")
    e("s_waitcnt vmcnt(0) lgkmcnt(0)")
    e("s_barrier")
    if cfg.PROF:
        e("s_memtime s[50:51]")
        e("s_waitcnt lgkmcnt(0)")
    if cfg.DBG:
        e("s_memrealtime s[50:51]")
        e("s_waitcnt lgkmcnt(0)")
    vm.clear()

    def init_acc(j):
        return f"v_mfma_f32_32x32x16_bf16 {acc(j)}, v[{BIA+4*j}:{BIA+4*j+3}], v[{ONE}:{ONE+3}], 0"

    def b_reads(s):
        b = bf(s)
        base = 64 * s
        return [("ds", ("B", s), f"ds_read_b128 v[{b}:{b+3}], v{vLB} offset:{base}"),
                ("ds", ("B", s), f"ds_read_b128 v[{b+4}:{b+7}], v{vLB} offset:{base+32}")]

    def g_items(j, c, gs, tag):
        r = []
        pk = RPK + (j * RCH + c) * 2
        for pb in range(4):
            d = GD + gs * 8 + 2 * pb
            r.append(("raw", f"v_add_u32_sdwa v{d}, v{vRB}, v{pk + (pb>>1)} dst_sel:DWORD dst_unused:UNUSED_PAD src0_sel:DWORD src1_sel:WORD_{pb&1}" if not cfg.RNOA else "s_nop 0"))
        for pb in range(4):
            d = GD + gs * 8 + 2 * pb
            r.append(("ds", tag, f"ds_read_b64 v[{d}:{d+1}], v{d}") if not cfg.RNOG else ("dsx", tag))
        return r

    uid = [0]
    def gather_block(j, c, gs):
        uid[0] += 1
        lbl = f"L_g{uid[0]}"
        e(f"s_cmp_le_u32 s{30+j}, {c}")
        e(f"s_cbranch_scc1 {lbl}")
        for it in g_items(j, c, gs, None):
            e(it[-1])
        e(f"{lbl}:")
        ds.append(("Gmark", j, c))
    def mfma_block(j, c, gs):
        cond = c >= RU
        if cond:
            uid[0] += 1
            lbl = f"L_m{uid[0]}"
            e(f"s_cmp_le_u32 s{30+j}, {c}")
            e(f"s_cbranch_scc1 {lbl}")
            wait(dtag=("Gmark", j, c))
        elif not cfg.RNOG:
            wait(dtag=("G", j, c))
        ra = RAF + (j * RCH + c) * 4
        if not cfg.RNOM: e(f"v_smfmac_f32_32x32x32_bf16 {acc(j)}, v[{ra}:{ra+3}], v[{GD+gs*8}:{GD+gs*8+7}], v{RIX + j*4 + (c>>1)}" + (" abid:1" if c & 1 else ""))
        if cond:
            e(f"{lbl}:")

    def emit_items(items):
        for x in items:
            if x[0] == "raw": e(x[1])
            elif x[0] == "ds": ds_issue(x[1], x[2])
            elif x[0] == "vm": vm_issue(x[1], x[2])
            elif x[0] == "G": gather_block(*x[1:])
            elif x[0] == "M": mfma_block(*x[1:])
            elif x[0] == "W": wait(dtag=x[1])
            elif x[0] == "dsx": ds.append(("Gmark", x[1])); ds.append(x[1]) if False else None
            else: raise Exception(x)

    def epilogue_items():
        if cfg.PERM == 2:
            wr = [("raw", f"v_permlane16_swap_b32 v{EP + 8*(i>>2) + (i&3)}, v{EP + 8*(i>>2) + 4 + (i&3)}") for i in range(8)]
            for pr in range(2):
                a = EP + 4 * pr; b = EP + 8 + 4 * pr
                wr += [("raw", f"v_mov_b32 v{TMP+i}, v{a+i}") for i in range(4)]
                wr += [("raw", f"v_mov_b32_dpp v{a+i}, v{b+i} row_ror:8 row_mask:0xf bank_mask:0xc") for i in range(4)]
                wr += [("raw", f"v_mov_b32_dpp v{b+i}, v{TMP+i} row_ror:8 row_mask:0xf bank_mask:0x3") for i in range(4)]
            st = []
            for i, a in enumerate((EP, EP + 8, EP + 4, EP + 12)):
                st.append(("raw", f"s_add_u32 s38, s34, {i*8*2048}"))
                st.append(("vm", "st", f"buffer_store_dwordx4 v[{a}:{a+3}], v{vST}, s[16:19], s38 offen" + ["", " nt", " sc1", " sc0 sc1", " sc1 nt"][cfg.STM]))
            return wr, [], st
        if cfg.PERM:
            wr = [("raw", f"v_permlane16_swap_b32 v{EP + 8*(i>>2) + (i&3)}, v{EP + 8*(i>>2) + 4 + (i&3)}") for i in range(8)]
            st = []
            for i in range(4):
                a = EP + 4 * i
                st.append(("raw", f"s_add_u32 s38, s34, {(i&1)*16*2048}"))
                st.append(("vm", "st", f"buffer_store_dwordx4 v[{a}:{a+3}], v{vST}, s[16:19], s38 offen offset:{64*(i>>1)}" + ["", " nt", " sc1", " sc0 sc1", " sc1 nt"][cfg.STM]))
            return wr, [], st
        wr = [("ds", "tw", f"ds_write_b128 v{vTW}, v[{EP+4*i}:{EP+4*i+3}] offset:{32*i}") for i in range(4)]
        rb = []; st = []
        for i in range(4):
            a = EP + 4 * i
            rb.append(("ds", ("tr", i), f"ds_read_b128 v[{a}:{a+3}], v{vTR} offset:{i*8*TRS}"))
            st.append(("W", ("tr", i)))
            st.append(("raw", f"s_add_u32 s38, s34, {i*8*2048}"))
            st.append(("vm", "st", f"buffer_store_dwordx4 v[{a}:{a+3}], v{vST}, s[16:19], s38 offen" + ["", " nt", " sc1", " sc0 sc1", " sc1 nt"][cfg.STM]))
        return wr, rb, st

    if cfg.SEG:
        for i in range(80, 88): e(f"s_mov_b32 s{i}, 0")
        e("s_memtime s[76:77]")
        e("s_waitcnt lgkmcnt(0)")
        e("s_mov_b32 s79, s76")
    e(init_acc(0))
    for s in range(PD):
        emit_items(b_reads(s))

    e("L_loop:")
    rq = []
    def at(g, items):
        for it in items:
            rq.append((g, it))
    order = [(j, c) for c in range(RCH) for j in range(2)] if not cfg.NORES else []
    for z, (j, c) in enumerate(order):
        g0 = int(min(cfg.RPER, (2 * (32 - PD) - 1 - cfg.RLAT) * 10 // 15) * z / 10)
        if c >= RU:
            at(g0, [("G", j, c, z & 1)])
        else:
            gi = g_items(j, c, z & 1, ("G", j, c))
            if cfg.GSPREAD:
                at(g0, [gi[0], gi[1], gi[4]]); at(g0 + 1, [gi[5], gi[2]]); at(g0 + 2, [gi[6], gi[3]]); at(g0 + 3, [gi[7]])
            else:
                at(g0, gi[:4]); at(g0 + 1, gi[4:])
        at(g0 + cfg.RLAT, [("M", j, c, z & 1)])
    if not cfg.NODMA:
        for r in range(8):
            at(cfg.DG0 + cfg.DGS * r, [("raw", f"s_add_u32 m0, s32, {r*RS}"), ("raw", f"s_add_u32 s36, s40, {r*2048}"),
                             ("vm", "Xn", f"buffer_load_dwordx4 v{vDX}, s[12:15], s36 offen lds")])
            at(cfg.DG0 + cfg.DGS * r + cfg.DGS // 2, [("vm", "Xn", f"buffer_load_dwordx4 v{vDX}, s[12:15], s36 offen offset:1024 lds")])
        at(cfg.DG0 + cfg.DGS * 8, [("raw", f"s_mov_b32 m0, {LDS_SCR}"), ("raw", "s_nop 0"), ("vm", "touch", f"buffer_load_dword v{vTC}, s[12:15], s42 offen lds")])
    if not cfg.NOEPI:
        wr, rb, st = epilogue_items()
        if cfg.PERM:
            for i in range(0, len(wr), 4):
                at(cfg.EW0 + i // 4, wr[i:i+4])
            for i in range(4):
                at(cfg.ES0 + cfg.ESS * i, st[2*i:2*i+2])
        elif not cfg.NOTR:
            for i in range(4):
                at(cfg.EW0 + cfg.EWS * i, [wr[i]])
            for i in range(4):
                at(cfg.ER0 + cfg.ERS * i, [rb[i]])
        for i in range(4):
            if not cfg.NOST and not cfg.PERM:
                at(cfg.ES0 + cfg.ESS * i, st[3*i + (1 if cfg.NOTR else 0):3*i+3])
    rq.sort(key=lambda t: t[0])
    def fill(gap):
        while rq and rq[0][0] <= gap:
            emit_items([rq.pop(0)[1]])

    e("s_cmp_lt_u32 s39, 7")
    e("s_cselect_b32 s40, s37, 0x40000000")
    e(f"s_cmp_lt_u32 s39, {8 - cfg.TD}")
    e("s_cselect_b32 s42, s41, 0x40000000")
    def M(j, s):
        e(f"v_smfmac_f32_32x32x32_bf16 {acc(j)}, {A(j,s)}, v[{bf(s)}:{bf(s)+7}], v{IDX + 16*j + (s>>1)}" + (" abid:1" if s & 1 else ""))
    def cvt(j, lo, hi):
        for i in range(lo, hi):
            e(f"v_cvt_pk_bf16_f32 v{EP+8*j+i}, v{ACC+16*j+2*i}, v{ACC+16*j+2*i+1}")
    def slow_path():
        e("s_or_b32 s36, s64, s65")
        e("s_cbranch_scc0 L_sp_end")
        e(f"v_lshrrev_b32 v{GD+13}, 4, v{vDX}")
        for r in (2, 3, 4, 5, 6, 7, 9, 10, 11):
            e(f"v_mov_b32 v{GD+r}, 0")
        e("s_mov_b32 s58, 0")
        e("L_sp_kr:")
        e("s_cmp_lt_u32 s58, 64")
        e("s_cselect_b32 s36, s64, s65")
        e("s_cmp_eq_u32 s36, 0")
        e("s_cbranch_scc1 L_sp_nx")
        e("s_lshl_b32 s59, s28, 7")
        e("s_add_u32 s59, s59, s58")
        e("s_lshl_b32 s60, s59, 2")
        e(f"buffer_load_dword v{GD+15}, v{GD+9}, s[20:23], s60 offen offset:{WS_CNT} sc1")
        e("s_lshl_b32 s59, s59, 10")
        e(f"s_add_u32 s59, s59, {WS_ENT:#x}")
        e("s_waitcnt vmcnt(0)")
        e(f"v_readfirstlane_b32 s60, v{GD+15}")
        e("s_nop 3")
        e("s_cmp_eq_u32 s60, 0")
        e("s_cbranch_scc1 L_sp_nx")
        e("L_sp_e:")
        e(f"buffer_load_dword v{GD+15}, v{GD+9}, s[20:23], s59 offen sc1")
        e("s_waitcnt vmcnt(0)")
        e(f"v_readfirstlane_b32 s62, v{GD+15}")
        e("s_nop 3")
        e("s_lshr_b32 s63, s62, 26")
        e(f"v_cmp_eq_u32 vcc, s63, v{GD+13}")
        e("s_and_b32 s63, s62, 0xffff")
        e(f"v_mov_b32 v{GD+14}, s63")
        e("s_bfe_u32 s63, s62, 0x80010")
        e("s_lshl_b32 s63, s63, 3")
        e(f"v_add_u32 v{GD}, s63, v{vRB}")
        e(f"v_cndmask_b32 v{GD+8}, 0, v{GD+14}, vcc")
        e("s_bfe_u32 s63, s62, 0x20018")
        e(f"v_mov_b32 v{GD+12}, s63")
        e(f"ds_read_b64 v[{GD}:{GD+1}], v{GD}")
        e("s_waitcnt lgkmcnt(0)")
        e("s_cmp_lt_u32 s58, 64")
        e("s_cbranch_scc0 L_sp_j1")
        e(f"v_smfmac_f32_32x32x32_bf16 {acc(0)}, v[{GD+8}:{GD+11}], v[{GD}:{GD+7}], v{GD+12}")
        e("s_branch L_sp_jd")
        e("L_sp_j1:")
        e(f"v_smfmac_f32_32x32x32_bf16 {acc(1)}, v[{GD+8}:{GD+11}], v[{GD}:{GD+7}], v{GD+12}")
        e("L_sp_jd:")
        e("s_add_u32 s59, s59, 4")
        e("s_sub_u32 s60, s60, 1")
        e("s_cmp_lg_u32 s60, 0")
        e("s_nop 4")
        e("s_cbranch_scc1 L_sp_e")
        e("L_sp_nx:")
        e("s_add_u32 s58, s58, 1")
        e("s_cmp_lt_u32 s58, 128")
        e("s_cbranch_scc1 L_sp_kr")
        e("L_sp_end:")
    assert PD == 3 and NB == 4
    wait(dtag=("B", 0))
    M(0, 0)
    cvt(1, 0, 4)
    emit_items(b_reads(3)[:1])
    wait(dtag=("B", 1))
    M(0, 1)
    cvt(1, 4, 8)
    emit_items(b_reads(3)[1:])
    e(init_acc(1))
    fill(0); fill(1)
    M(1, 0)
    emit_items(b_reads(4)[:1])
    fill(2)
    M(1, 1)
    emit_items(b_reads(4)[1:])
    fill(3)
    for s in range(2, 30):
        wait(dtag=("B", s))
        M(0, s)
        sn = s + PD
        rd = b_reads(sn) if sn < 32 else []
        emit_items(rd[:1])
        fill(2 * s)
        M(1, s)
        for _ in range(cfg.XMF):
            e(f"v_mfma_f32_32x32x16_bf16 {acc(1)}, v[{ONE}:{ONE+3}], v[{BIA+1}:{BIA+4}], {acc(1)}" if False else f"v_mfma_f32_16x16x32_bf16 v[{BIA+0}:{BIA+3}], v[{ONE}:{ONE+3}], v[{ONE}:{ONE+3}], v[{BIA+0}:{BIA+3}]" if False else f"v_smfmac_f32_32x32x32_bf16 {acc(1)}, v[{BIA+1-1+0}:{BIA+3}], v[{bf(s)}:{bf(s)+7}], v{RIX}" if False else "s_sleep 1")
        emit_items(rd[1:])
        fill(2 * s + 1)
        if s == 28:
            assert not rq, len(rq)
            slow_path()
        if s == 29:
            if cfg.PROF:
                e("s_memtime s[54:55]")
            if cfg.NODMA:
                e("s_waitcnt lgkmcnt(0)")
            else:
                e(f"s_waitcnt vmcnt({min(vm_n('Xn'),63)}) lgkmcnt(0)")
            e("s_barrier")
            if cfg.PROF:
                e("s_memtime s[56:57]")
                e("s_waitcnt lgkmcnt(0)")
                e("s_sub_u32 s56, s56, s54")
                e("s_add_u32 s52, s52, s56")
            e(f"v_add_u32 v{vLB}, s29, v{vLB}")
            e(f"v_add_u32 v{vRB}, s29, v{vRB}")
            emit_items(b_reads(0))
    M(0, 30)
    emit_items(b_reads(1))
    e("s_sub_u32 s32, s32, s29")
    e("s_sub_u32 s29, 0, s29")
    M(0, 31)
    e("s_mov_b32 s34, s33")
    e("s_add_u32 s33, s33, 0x10000")
    e("s_add_u32 s37, s37, 0x10000")
    e("s_add_u32 s41, s41, 0x10000")
    e("s_add_u32 s39, s39, 1")
    M(1, 30)
    emit_items(b_reads(2))
    e("s_cmp_lt_u32 s39, 8")
    e("s_nop 2")
    M(1, 31)
    cvt(0, 0, 8)
    e(init_acc(0))
    e("s_cbranch_scc1 L_loop")
    e("s_nop 7")
    cvt(1, 0, 8)
    wr, rb, st = epilogue_items()
    e("s_nop 1")
    emit_items(wr); emit_items(rb); emit_items(st)
    if cfg.PROF:
        e("s_memtime s[54:55]")
        e("s_memrealtime s[98:99]")
        e("s_waitcnt lgkmcnt(0)")
        e("s_sub_u32 s56, s50, s48")
        e("s_sub_u32 s57, s54, s50")
        e("s_sub_u32 s48, s98, s96")
        e("s_nop 4")
        e(f"v_mov_b32 v{GD}, s56")
        e(f"v_mov_b32 v{GD+1}, s52")
        e(f"v_mov_b32 v{GD+2}, s57")
        e(f"v_mov_b32 v{GD+3}, s48")
        e("s_lshl_b32 s36, s2, 2")
        e("s_add_u32 s36, s36, s24")
        e("s_lshl_b32 s36, s36, 4")
        e("s_add_u32 s36, s36, 0x8000000")
        e(f"v_mov_b32 v{GD+8}, 0")
        e(f"v_mov_b32 v{GD+4}, s94")
        e(f"v_mov_b32 v{GD+5}, s95")
        e(f"v_mov_b32 v{GD+6}, s53")
        e(f"v_mov_b32 v{GD+7}, 0")
        e(f"buffer_store_dwordx4 v[{GD}:{GD+3}], v{GD+8}, s[20:23], s36 offen")
        e("s_add_u32 s36, s36, 0x100000")
        e(f"buffer_store_dwordx4 v[{GD+4}:{GD+7}], v{GD+8}, s[20:23], s36 offen")
        e("s_nop 2")
        e(f"v_mov_b32 v{GD+4}, s96")
        e(f"v_mov_b32 v{GD+5}, s100")
        e(f"v_mov_b32 v{GD+6}, s101")
        e(f"v_mov_b32 v{GD+7}, s98")
        e("s_add_u32 s36, s36, 0x100000")
        e(f"buffer_store_dwordx4 v[{GD+4}:{GD+7}], v{GD+8}, s[20:23], s36 offen")
        if cfg.SEG:
            e("s_nop 2")
            for i in range(8): e(f"v_mov_b32 v{GD+i}, s{80+i}")
            e("s_add_u32 s36, s36, 0x100000")
            e(f"buffer_store_dwordx4 v[{GD}:{GD+3}], v{GD+8}, s[20:23], s36 offen")
            e("s_add_u32 s36, s36, 0x100000")
            e(f"buffer_store_dwordx4 v[{GD+4}:{GD+7}], v{GD+8}, s[20:23], s36 offen")
    if cfg.DBG:
        e("s_memrealtime s[56:57]")
        e("s_waitcnt vmcnt(0)")
        e("s_memrealtime s[98:99]")
        e("s_waitcnt lgkmcnt(0)")
        e("s_sub_u32 s98, s98, s96")
        e("s_sub_u32 s100, s100, s96")
        e("s_sub_u32 s50, s50, s96")
        e("s_sub_u32 s56, s56, s96")
        e(f"v_mov_b32 v{GD}, s100")
        e(f"v_mov_b32 v{GD+1}, s50")
        e(f"v_mov_b32 v{GD+2}, s56")
        e(f"v_mov_b32 v{GD+3}, s98")
        e(f"v_mov_b32 v{GD+4}, 0")
        e("s_and_b32 s36, s2, 63")
        e("s_or_b32 s36, s36, s24")
        e("s_cbranch_scc1 L_main_end")
        e("s_lshr_b32 s36, s2, 6")
        e("s_lshl_b32 s36, s36, 4")
        e(f"v_cmp_eq_u32 vcc, 0, v{vDX}")
        e("s_and_saveexec_b64 s[66:67], vcc")
        e(f"buffer_store_dwordx4 v[{GD}:{GD+3}], v{GD+4}, s[72:75], s36 offen")
    e("L_main_end:")
    e("s_endpgm")


gen_main()
_n = 0
L2 = []
for ln in L:
    if ln.strip() == "X0LOOP":
        _n += 1
        L2 += [f"L_x0_loop{_n}:", f"    s_mul_i32 s40, s38, {RS}", "    s_mov_b32 m0, s40", "    s_lshl_b32 s40, s38, 11", "    s_add_u32 s40, s40, s37",
               "    buffer_load_dwordx4 v3, s[12:15], s40 offen lds", "    buffer_load_dwordx4 v3, s[12:15], s40 offen offset:1024 lds",
               "    s_add_u32 s38, s38, 1", "    s_cmp_lt_u32 s38, s39", f"    s_cbranch_scc1 L_x0_loop{_n}"]
    else:
        L2.append(ln)
L = L2

tail = """
.section .rodata,"a"
.p2align 6
.amdhsa_kernel standalone__structured_sparse_n_m__ragged_kernel
  .amdhsa_next_free_vgpr 512
  .amdhsa_next_free_sgpr 102
  .amdhsa_accum_offset 256
  .amdhsa_group_segment_fixed_size 0
  .amdhsa_kernarg_size 48
  .amdhsa_user_sgpr_count 2
  .amdhsa_user_sgpr_kernarg_segment_ptr 1
  .amdhsa_system_sgpr_workgroup_id_x 1
.end_amdhsa_kernel
"""
open(OUT, "w").write(hdr + "\n".join(L) + "\n" + tail)
print("wrote", OUT, len(L), "lines")
```

```python
import sys, os

OUT = os.environ.get("GEN_OUT", "standalone__structured_sparse_n_m__ragged.s")

WS_CNT = 0x0
WS_WI = 0x4000
WS_WA = 0x40000
WS_ENT = 0x200000
WS_FLG = 0x400000
WS_SIZE = 0x10000000

class Cfg:
    NB = 4
    PD = 3
    RCH = 8
    RU = 6
    TD = 2
    RPER = 34
    RLAT = 6
    DGS = 4
    TMO = 20000
    SLP = 8
    SLP0 = 64
    PROF = 0
    TG = -1
    LW = 12
    WDMA = 0
    XMF = 0
    PERM = 0
    NOST = 0
    NOTR = 0
    XEARLY = 0
    FSH = 7
    SEG = 0
    EW0 = 33
    EWS = 3
    ER0 = 46
    ERS = 1
    ES0 = 54
    ESS = 1
    DG0 = 0
    WSC = 1
    INV = 1
    GSPREAD = 1
    RNOG = 0
    RNOM = 0
    RNOA = 0
    STM = 2
    DBG = 0
    NODMA = 0
    NORES = 0
    NOEPI = 0

cfg = Cfg()
for a in sys.argv[1:]:
    k, v = a.split("=")
    setattr(cfg, k, int(v))

RS = 4144
BUF1 = 2064
PADOFF = 2048
LDS_X = 32 * RS
LDS_TR = LDS_X
TRS = 144
LDS_SCR = LDS_TR + 4 * 32 * TRS
LDS_TOTAL = LDS_SCR + 256 + 16

L = []
def e(s=""):
    L.append("    " + s if s and not s.endswith(":") else s)

hdr = f"""; 2:4 structured-sparse GEMM  out = x @ prune24(w) + b   (B*S=16384, D=1024), bf16
; @launch grid=(256,1,1) block=(256,1,1) lds={LDS_TOTAL}
.amdgcn_target "amdgcn-amd-amdhsa--gfx950"
.text
"""


def gen_prep_slice():
    TBL = {0: 4, 1: 4, 2: 4, 4: 8, 8: 12, 3: 4, 5: 8, 6: 9, 7: 4, 9: 12, 10: 13, 11: 4, 12: 14, 13: 8, 14: 9, 15: 4}
    T64 = 0
    for k, v in TBL.items():
        T64 |= v << (4 * k)
    ET = {7: 1, 11: 2, 13: 2, 14: 2, 15: 3}
    E32 = 0
    for k, v in ET.items():
        E32 |= v << (2 * k)
    R = 64
    def v(n): return f"v{R+n}"
    e(f"v_lshlrev_b32 {v(3)}, 2, v0")
    e("s_lshl_b32 s89, s87, 15")
    e("s_lshl_b32 s90, s88, 10")
    e("s_add_u32 s89, s89, s90")
    D = 8
    for kk in range(0, 16, 2):
        e(f"buffer_load_dword {v(D+kk)}, {v(3)}, s[68:71], s89 offen")
        e(f"buffer_load_dword {v(D+kk+1)}, {v(3)}, s[68:71], s89 offen offset:2048")
        if kk < 14:
            e("s_add_u32 s89, s89, 4096")
    if cfg.XEARLY:
        e("s_cmp_lg_u32 s95, 0")
        e("s_cbranch_scc1 L_prep_nox")
        e("s_lshl_b32 s38, s24, 3")
        e("s_add_u32 s39, s38, 8")
        e("X0LOOP")
        e("L_prep_nox:")
    e("s_mov_b32 s76, 0x7fff7fff")
    e("s_mov_b32 s77, 0x00010001")
    e("s_mov_b32 s78, 0x000f000f")
    e(f"s_mov_b32 s80, {T64 & 0xffffffff:#x}")
    e(f"s_mov_b32 s81, {T64 >> 32:#x}")
    e(f"s_mov_b32 s82, {E32:#x}")
    e("s_mov_b32 s83, 0x05040100")
    e("s_mov_b32 s84, 0x07060302")
    e("s_mov_b32 s85, 0x01000100")
    e("s_mov_b32 s86, 0x0202")
    e(f"v_and_b32 {v(1)}, 15, v0")
    e(f"v_lshrrev_b32 {v(2)}, 4, v0")
    e("s_lshl_b32 s90, s88, 4")
    e(f"v_add_u32 {v(2)}, s90, {v(2)}")
    e(f"v_and_b32 {v(4)}, 9, {v(1)}")
    e(f"v_bfe_u32 {v(5)}, {v(1)}, 1, 1")
    e(f"v_bfe_u32 {v(6)}, {v(1)}, 2, 1")
    e(f"v_lshl_or_b32 {v(4)}, {v(5)}, 2, {v(4)}")
    e(f"v_lshl_or_b32 {v(4)}, {v(6)}, 1, {v(4)}")
    e(f"v_lshlrev_b32 {v(4)}, 1, {v(4)}")
    e(f"v_lshlrev_b32 {v(24)}, 15, {v(2)}")
    e(f"v_lshl_add_u32 {v(24)}, {v(4)}, 4, {v(24)}")
    e(f"v_lshlrev_b32 {v(25)}, 12, {v(2)}")
    e(f"v_lshl_add_u32 {v(25)}, {v(4)}, 4, {v(25)}")
    e("s_lshr_b32 s91, s87, 1")
    e("s_and_b32 s92, s87, 1")
    e("s_lshl_b32 s93, s91, 10")
    e("s_lshl_b32 s92, s92, 9")
    e("s_add_u32 s93, s93, s92")
    e(f"s_add_u32 s93, s93, {WS_WA:#x}")
    e("s_lshr_b32 s94, s91, 3")
    e("s_lshl_b32 s94, s94, 10")
    e("s_add_u32 s94, s94, s92")
    e("s_and_b32 s91, s91, 7")
    e("s_lshl_b32 s91, s91, 1")
    e("s_add_u32 s94, s94, s91")
    e(f"s_add_u32 s94, s94, {WS_WI:#x}")
    e(f"v_mov_b32 {v(36)}, 0")
    e(f"v_mov_b32 {v(37)}, 0")
    e(f"v_mov_b32 {v(38)}, 0")
    e("s_mov_b32 s89, 0")
    if cfg.XEARLY:
        e("s_cmp_lg_u32 s95, 0")
        e("s_cbranch_scc1 L_prep_w0")
        e("s_waitcnt vmcnt(16)")
        e("s_branch L_pg")
        e("L_prep_w0:")
    e("s_waitcnt vmcnt(0)")
    a, b, c, d = 50, 51, 52, 53
    e("L_pg:")
    e("s_set_gpr_idx_on s89, 0x1")
    e("s_nop 0")
    for i in range(4):
        e(f"v_mov_b32 {v(50+i)}, {v(D+i)}")
    e("s_set_gpr_idx_off")
    for i, r in enumerate((a, b, c, d)):
        e(f"v_and_b32 {v(40+i)}, s76, {v(r)}")
    e(f"v_pk_max_u16 {v(44)}, {v(40)}, {v(41)}")
    e(f"v_pk_min_u16 {v(45)}, {v(40)}, {v(41)}")
    e(f"v_pk_max_u16 {v(46)}, {v(42)}, {v(43)}")
    e(f"v_pk_min_u16 {v(47)}, {v(42)}, {v(43)}")
    e(f"v_pk_min_u16 {v(44)}, {v(44)}, {v(46)}")
    e(f"v_pk_max_u16 {v(45)}, {v(45)}, {v(47)}")
    e(f"v_pk_max_u16 {v(44)}, {v(44)}, {v(45)}")
    e(f"v_pk_max_u16 {v(44)}, {v(44)}, s77")
    for i in range(4):
        e(f"v_pk_sub_u16 {v(40+i)}, {v(44)}, {v(40+i)} clamp")
    for i in range(4):
        e(f"v_pk_min_u16 {v(40+i)}, {v(40+i)}, s77")
    e(f"v_lshl_or_b32 {v(40)}, {v(41)}, 1, {v(40)}")
    e(f"v_lshl_or_b32 {v(40)}, {v(42)}, 2, {v(40)}")
    e(f"v_lshl_or_b32 {v(40)}, {v(43)}, 3, {v(40)}")
    e(f"v_xor_b32 {v(40)}, s78, {v(40)}")
    e("s_lshr_b32 s90, s89, 2")
    for ee in range(2):
        sel = 83 + ee
        e(f"v_bfe_u32 {v(41)}, {v(40)}, {16*ee}, 4")
        e(f"v_lshlrev_b32 {v(42)}, 2, {v(41)}")
        e(f"v_lshrrev_b64 v[{R+46}:{R+47}], {v(42)}, s[80:81]")
        e(f"v_and_b32 {v(46)}, 15, {v(46)}")
        e(f"v_lshl_or_b32 {v(36+ee)}, {v(46)}, s89, {v(36+ee)}")
        e(f"v_perm_b32 {v(48)}, {v(b)}, {v(a)}, s{sel}")
        e(f"v_perm_b32 {v(49)}, {v(d)}, {v(c)}, s{sel}")
        e(f"v_and_b32 {v(47)}, 3, {v(46)}")
        e(f"v_lshrrev_b32 {v(46)}, 2, {v(46)}")
        e(f"v_lshl_or_b32 {v(46)}, {v(46)}, 16, {v(47)}")
        e(f"v_mov_b32 {v(47)}, s85")
        e(f"v_mad_u32_u24 {v(46)}, {v(46)}, s86, {v(47)}")
        e(f"v_perm_b32 {v(54+ee)}, {v(49)}, {v(48)}, {v(46)}")
        e(f"v_lshlrev_b32 {v(42)}, 1, {v(41)}")
        e(f"v_lshrrev_b32 {v(43)}, {v(42)}, s82")
        e(f"v_and_b32 {v(43)}, 3, {v(43)}")
        if ee:
            e(f"v_lshlrev_b32 {v(43)}, 2, {v(43)}")
        e(f"v_lshl_or_b32 {v(38)}, {v(43)}, s89, {v(38)}")
    e("s_set_gpr_idx_on s90, 0x8")
    e("s_nop 0")
    e(f"v_mov_b32 {v(28)}, {v(54)}")
    e(f"v_mov_b32 {v(32)}, {v(55)}")
    e("s_set_gpr_idx_off")
    e("s_add_u32 s89, s89, 4")
    e("s_cmp_lt_u32 s89, 16")
    e("s_cbranch_scc1 L_pg")
    e(f"buffer_store_dwordx4 v[{R+28}:{R+31}], {v(24)}, s[20:23], s93 offen sc1")
    e(f"buffer_store_dwordx4 v[{R+32}:{R+35}], {v(24)}, s[20:23], s93 offen offset:16 sc1")
    e(f"buffer_store_short {v(36)}, {v(25)}, s[20:23], s94 offen sc1")
    e(f"buffer_store_short {v(37)}, {v(25)}, s[20:23], s94 offen offset:16 sc1")
    e(f"v_bcnt_u32_b32 {v(39)}, {v(38)}, 0")
    e(f"v_mov_b32 {v(40)}, {v(39)}")
    e("s_nop 1")
    for sh in (1, 2, 4, 8):
        e(f"v_add_u32_dpp {v(40)}, {v(40)}, {v(40)} row_shr:{sh} row_mask:0xf bank_mask:0xf bound_ctrl:0")
        e("s_nop 1")
    e(f"v_lshlrev_b32 {v(41)}, 8, {v(2)}")
    e("s_lshl_b32 s89, s87, 2")
    e(f"v_cmp_eq_u32 vcc, 15, {v(1)}")
    e("s_and_saveexec_b64 s[66:67], vcc")
    e(f"buffer_store_dword {v(40)}, {v(41)}, s[20:23], s89 offen offset:{WS_CNT} sc1")
    e("s_mov_b64 exec, s[66:67]")
    e(f"v_sub_u32 {v(40)}, {v(40)}, {v(39)}")
    e(f"v_lshlrev_b32 {v(41)}, 16, {v(2)}")
    e("s_lshl_b32 s93, s87, 10")
    e(f"s_add_u32 s93, s93, {WS_ENT:#x}")
    e("s_mov_b32 s89, 0")
    e("L_pe:")
    e(f"v_cmp_ne_u32 vcc, 0, {v(38)}")
    e("s_cbranch_vccz L_pe_done")
    e(f"v_and_b32 {v(42)}, 1, {v(38)}")
    e(f"v_cmp_ne_u32 vcc, 0, {v(42)}")
    e("s_and_saveexec_b64 s[66:67], vcc")
    e("s_cbranch_execz L_pe_next")
    e("s_and_b32 s90, s89, 12")
    e("s_and_b32 s91, s89, 1")
    e("s_add_u32 s92, s90, s91")
    e("s_set_gpr_idx_on s92, 0x1")
    e("s_nop 0")
    e(f"v_mov_b32 {v(43)}, {v(D+2)}")
    e("s_set_gpr_idx_off")
    e("s_bfe_u32 s92, s89, 0x10001")
    e("s_lshl_b32 s94, s92, 4")
    e(f"v_lshrrev_b32 {v(43)}, s94, {v(43)}")
    e(f"v_and_b32 {v(43)}, 0xffff, {v(43)}")
    e("s_lshl_b32 s94, s87, 18")
    e("s_lshl_b32 s90, s90, 14")
    e("s_add_u32 s94, s94, s90")
    e("s_add_u32 s91, s91, 2")
    e("s_lshl_b32 s91, s91, 24")
    e("s_add_u32 s94, s94, s91")
    e("s_lshl_b32 s92, s92, 26")
    e("s_add_u32 s94, s94, s92")
    e(f"v_or_b32 {v(43)}, s94, {v(43)}")
    e(f"v_lshl_add_u32 {v(43)}, {v(4)}, 26, {v(43)}")
    e(f"v_lshl_add_u32 {v(42)}, {v(40)}, 2, {v(41)}")
    e(f"buffer_store_dword {v(43)}, {v(42)}, s[20:23], s93 offen sc1")
    e(f"v_add_u32 {v(40)}, 1, {v(40)}")
    e("L_pe_next:")
    e("s_mov_b64 exec, s[66:67]")
    e(f"v_lshrrev_b32 {v(38)}, 1, {v(38)}")
    e("s_add_u32 s89, s89, 1")
    e("s_branch L_pe")
    e("L_pe_done:")


def gen_main():
    NB, PD, RCH, RU = cfg.NB, cfg.PD, cfg.RCH, cfg.RU
    nxt = [1]
    def alloc(n, align=1):
        while nxt[0] % align:
            nxt[0] += 1
        r = nxt[0]
        nxt[0] += n
        return r
    vTW = 0
    vLB = alloc(1); vRB = alloc(1); vDX = alloc(1); vST = alloc(1); vTC = alloc(1); vTR = alloc(1)
    IDX = alloc(32, 4)
    ACC = alloc(32, 4)
    EP = alloc(16, 4)
    BF = alloc(8 * NB, 4)
    BIA = alloc(8, 4)
    ONE = alloc(4, 4)
    RAF = alloc(2 * RCH * 4, 4)
    RIX = alloc(2 * RCH // 2, 4)
    RPK = alloc(2 * RCH * 2, 4)
    GD = alloc(16, 4)
    TMP = alloc(4)
    assert nxt[0] <= 256, nxt[0]
    assert ACC == 40 and BIA >= 64 + 56

    def A(j, s):
        b = (s * 2 + j) * 4
        return f"a[{b}:{b+3}]"
    def acc(j):
        b = ACC + j * 16
        return f"v[{b}:{b+15}]"
    def bf(s):
        return BF + (s % NB) * 8

    ds = []
    vm = []
    def is_mark(t):
        return isinstance(t, tuple) and t[0] == "Gmark"
    def ds_issue(tag, ins):
        e(ins); ds.append(tag)
    def vm_issue(tag, ins):
        e(ins); vm.append(tag)
    def ds_n(tag):
        idx = max(i for i, t in enumerate(ds) if t == tag)
        return sum(1 for t in ds[idx+1:] if not is_mark(t))
    def vm_n(tag):
        idx = max(i for i, t in enumerate(vm) if t == tag)
        return len(vm) - 1 - idx
    def wait(dtag=None, vtag=None):
        w = []
        if vtag is not None:
            w.append(f"vmcnt({min(vm_n(vtag), 63)})")
        if dtag is not None:
            w.append(f"lgkmcnt({min(ds_n(dtag), 15)})")
        e("s_waitcnt " + " ".join(w))

    name = "standalone__structured_sparse_n_m__ragged_kernel"
    e(f".globl {name}")
    e(".p2align 8")
    e(f".type {name},@function")
    e(f"{name}:")
    e("s_cmp_ge_u32 s2, 256")
    e("s_cbranch_scc1 L_main_end")
    if cfg.PROF or cfg.DBG:
        e("s_memtime s[48:49]")
        e("s_memrealtime s[96:97]")
        e("s_mov_b32 s52, 0")
    e("s_load_dwordx4 s[4:7], s[0:1], 0")
    e("s_load_dwordx4 s[8:11], s[0:1], 16")
    e("s_load_dwordx4 s[72:75], s[0:1], 32")
    e(f"v_lshrrev_b32 v{vTR}, 6, v0")
    e("s_nop 0")
    e(f"v_readfirstlane_b32 s24, v{vTR}")
    e("s_and_b32 s25, s2, 7")
    e("s_lshr_b32 s26, s2, 3")
    e("s_and_b32 s27, s26, 3")
    e("s_lshr_b32 s26, s26, 2")
    e("s_lshl_b32 s25, s25, 3")
    e("s_add_u32 s26, s26, s25")
    e("s_lshl_b32 s28, s27, 2")
    e("s_add_u32 s28, s28, s24")
    e("s_lshr_b32 s87, s2, 1")
    e("s_and_b32 s88, s2, 1")
    e("s_mov_b32 s95, 0")
    e("s_waitcnt lgkmcnt(0)")
    e("s_mov_b32 s12, s4"); e("s_and_b32 s13, s5, 0xffff"); e("s_mov_b32 s14, 0x2000000"); e("s_mov_b32 s15, 0x00020000")
    e("s_mov_b32 s16, s10"); e("s_and_b32 s17, s11, 0xffff"); e("s_mov_b32 s18, 0x2000000"); e("s_mov_b32 s19, 0x00020000")
    e("s_mov_b32 s20, s74"); e("s_and_b32 s21, s75, 0xffff"); e(f"s_mov_b32 s22, {WS_SIZE:#x}"); e("s_mov_b32 s23, 0x00020000")
    e("s_mov_b32 s44, s8"); e("s_and_b32 s45, s9, 0xffff"); e("s_mov_b32 s46, 0x800"); e("s_mov_b32 s47, 0x00020000")
    e("s_mov_b32 s68, s6"); e("s_and_b32 s69, s7, 0xffff"); e("s_mov_b32 s70, 0x200000"); e("s_mov_b32 s71, 0x00020000")
    e("s_and_b32 s73, s73, 0xffff"); e("s_mov_b32 s74, 0x100"); e("s_mov_b32 s75, 0x00020000")
    e(f"v_mov_b32 v{GD+9}, 0")
    e(f"v_mov_b32 v{GD+10}, 1")
    e(f"v_and_b32 v{vDX}, 63, v0")
    e(f"v_lshlrev_b32 v{vTC}, 6, v{vDX}")
    e(f"v_lshlrev_b32 v{vDX}, 4, v{vDX}")
    e("s_lshl_b32 s37, s26, 19")
    e("s_lshl_b32 s36, s2, 2")
    e("s_add_u32 s36, s36, s24")
    e("s_cmp_lg_u32 s36, 3")
    e("s_cbranch_scc1 L_no_nonce")
    e("s_memrealtime s[90:91]")
    e("s_waitcnt lgkmcnt(0)")
    e("s_or_b32 s90, s90, 1")
    e(f"v_mov_b32 v{GD+11}, s90")
    e(f"v_cmp_eq_u32 vcc, 0, v{vDX}")
    e("s_and_saveexec_b64 s[66:67], vcc")
    e(f"buffer_store_dword v{GD+11}, v{GD+9}, s[72:75], 0 offen sc1")
    e("s_mov_b64 exec, s[66:67]")
    e("L_no_nonce:")
    for r in (ACC, ACC + 1, GD + 5, vST):
        e(f"v_mov_b32 v{r}, 0")
    e(f"v_mov_b32 v{TMP}, v0")
    e("s_cmp_ge_u32 s2, 128")
    e("s_cbranch_scc1 L_setup")
    e("L_prep_again:")
    e(f"v_mov_b32 v0, v{TMP}")
    gen_prep_slice()
    e("s_cmp_eq_u32 s95, 0")
    e("s_cbranch_scc1 L_prep_signal0")
    e("s_add_u32 s87, s87, 1")
    e("s_cmp_lt_u32 s87, 64")
    e("s_cbranch_scc1 L_prep_again")
    e(f"v_mov_b32 v0, v{TMP+1}")
    e("s_waitcnt vmcnt(0)")
    e("s_barrier")
    e("s_branch L_sync_done")
    e("L_prep_signal0:")
    if cfg.PROF:
        e("s_memrealtime s[56:57]")
    e("L_setup:")
    T = GD
    TT = ACC
    e(f"v_and_b32 v{T}, 63, v0")
    e(f"v_lshlrev_b32 v{TT+0}, 2, v{T}")
    e(f"v_lshlrev_b32 v{TT+1}, 10, v{T}")
    e(f"v_lshlrev_b32 v{vDX}, 4, v{T}")
    e(f"v_and_b32 v{T+1}, 31, v0")
    e(f"v_bfe_u32 v{T+2}, v0, 5, 1")
    e(f"v_and_b32 v{T+5}, 0x13, v{T+1}")
    e(f"v_bfe_u32 v{T+4}, v{T+1}, 2, 1")
    e(f"v_lshl_or_b32 v{T+5}, v{T+4}, 3, v{T+5}")
    e(f"v_bfe_u32 v{T+4}, v{T+1}, 3, 1")
    e(f"v_lshl_or_b32 v{T+5}, v{T+4}, 2, v{T+5}")
    e(f"v_lshlrev_b32 v{T+5}, 1, v{T+5}")
    e(f"v_mul_u32_u24 v{vRB}, {RS}, v{T+1}")
    e(f"v_lshl_add_u32 v{vLB}, v{T+2}, 4, v{vRB}")
    e(f"v_lshrrev_b32 v{T+6}, 3, v{T}")
    e(f"v_and_b32 v{T+7}, 7, v{T}")
    if cfg.PERM == 2:
        e(f"v_and_b32 v{vST}, 7, v{T}")
        e(f"v_lshlrev_b32 v{vST}, 11, v{vST}")
        e(f"v_bfe_u32 v{T+4}, v{T}, 4, 1")
        e(f"v_lshl_add_u32 v{vST}, v{T+4}, 5, v{vST}")
        e(f"v_lshl_add_u32 v{vST}, v{T+2}, 4, v{vST}")
        e(f"v_bfe_u32 v{T+4}, v{T}, 3, 1")
        e(f"v_lshl_add_u32 v{vST}, v{T+4}, 6, v{vST}")
    elif cfg.PERM:
        e(f"v_and_b32 v{vST}, 15, v{T}")
        e(f"v_lshlrev_b32 v{vST}, 11, v{vST}")
        e(f"v_bfe_u32 v{T+4}, v{T}, 4, 1")
        e(f"v_lshl_add_u32 v{vST}, v{T+4}, 5, v{vST}")
        e(f"v_lshl_add_u32 v{vST}, v{T+2}, 4, v{vST}")
    else:
        e(f"v_lshlrev_b32 v{vST}, 11, v{T+6}")
        e(f"v_lshl_add_u32 v{vST}, v{T+7}, 4, v{vST}")
    e(f"s_mul_i32 s38, s24, {32*TRS}")
    e(f"s_add_u32 s38, s38, {LDS_TR}")
    e(f"v_mul_u32_u24 v{vTR}, {TRS}, v{T+6}")
    e(f"v_lshl_add_u32 v{vTR}, v{T+7}, 4, v{vTR}")
    e(f"v_add_u32 v{vTR}, s38, v{vTR}")
    e(f"v_mul_u32_u24 v{vTW}, {TRS}, v{T+1}")
    e(f"v_lshl_add_u32 v{vTW}, v{T+2}, 4, v{vTW}")
    e(f"v_add_u32 v{vTW}, s38, v{vTW}")
    e(f"v_mov_b32 v{TMP+1}, v{vTW}")
    e(f"v_lshlrev_b32 v{vTC}, 6, v{T}")
    e(f"v_lshlrev_b32 v{T+3}, 3, v{T+2}")
    e(f"s_mul_i32 s35, s24, {8*RS}")
    e(f"s_add_u32 s36, s35, {BUF1}")
    e(f"v_add_u32 v{TT+2}, s36, v{vDX}")
    e(f"v_add_u32 v{TT+3}, s38, v{vDX}")
    Z = TT + 28
    for i in range(4):
        e(f"v_mov_b32 v{Z+i}, 0")
    e(f"v_mov_b32 v{TT+32}, {PADOFF | (PADOFF << 16):#x}")
    e(f"v_add_u32 v{TT+33}, s38, v{TT+0}")
    for j in range(2):
        for c in range(RCH):
            e(f"ds_write_b128 v{TT+2}, v[{Z}:{Z+3}] offset:{(4*j + (c>>1))*RS + (c&1)*1024}")
        e(f"ds_write_b128 v{TT+3}, v[{Z}:{Z+3}] offset:{j*1024}")
    e(f"ds_write_b32 v{TT+33}, v{TT+32} offset:2048")
    e(f"v_mov_b32 v{T+6}, 0x3f803f80")
    e(f"v_mov_b32 v{T+7}, 0x3f803f80")
    e(f"ds_write_b64 v{vRB}, v[{T+6}:{T+7}] offset:{PADOFF}")
    e(f"ds_write_b64 v{vRB}, v[{T+6}:{T+7}] offset:{BUF1+PADOFF}")
    e("s_cmp_ge_u32 s2, 128")
    e("s_cbranch_scc1 L_prep_skip")
    e(f"buffer_load_dword v{GD+11}, v{GD+9}, s[72:75], 0 offen sc1")
    e(f"s_waitcnt vmcnt(0)")
    e("s_barrier")
    if cfg.PROF:
        e("s_memrealtime s[54:55]")
        e("s_waitcnt lgkmcnt(0)")
        e("s_mov_b32 s99, s54")
        e("s_mov_b32 s57, s56")
    e("s_cmp_lg_u32 s24, 0")
    e("s_cbranch_scc1 L_x0")
    e("s_mov_b32 s38, 1")
    e("s_memrealtime s[90:91]")
    e("s_branch L_nonce_chk")
    e("L_prep_skip:")
    e("s_cmp_lg_u32 s24, 0")
    e("s_cbranch_scc1 L_x0")
    e("s_mov_b32 s38, 0")
    e("s_memrealtime s[90:91]")
    for _ in range(cfg.SLP0 // 64):
        e("s_sleep 64")
    e("L_nonce_poll:")
    e(f"buffer_load_dword v{GD+11}, v{GD+9}, s[72:75], 0 offen sc1")
    e("s_waitcnt vmcnt(0)")
    e("L_nonce_chk:")
    e(f"v_readfirstlane_b32 s89, v{GD+11}")
    e("s_memrealtime s[92:93]")
    e("s_waitcnt lgkmcnt(0)")
    e("s_sub_u32 s92, s92, s90")
    e("s_cmp_lg_u32 s89, 0")
    e("s_cbranch_scc1 L_nonce_ok")
    e("s_sleep 8")
    e(f"s_cmp_lt_u32 s92, {cfg.TMO}")
    e("s_cbranch_scc1 L_nonce_poll")
    e("s_branch L_poll_fail")
    e("L_nonce_ok:")
    e("s_cmp_eq_u32 s38, 0")
    e("s_cbranch_scc1 L_poll_setup")
    e("s_lshl_b32 s36, s88, 6")
    e("s_add_u32 s36, s36, s87")
    e("s_lshl_b32 s36, s36, 7")
    e(f"s_add_u32 s36, s36, {WS_FLG:#x}")
    e(f"v_cmp_eq_u32 vcc, 0, v{vDX}")
    e("s_and_saveexec_b64 s[66:67], vcc")
    e(f"buffer_store_dword v{GD+11}, v{GD+9}, s[20:23], s36 offen sc1")
    e("s_mov_b64 exec, s[66:67]")
    e("L_poll_setup:")
    e("s_lshr_b32 s36, s27, 1")
    e("s_lshl_b32 s36, s36, 13")
    e(f"s_add_u32 s36, s36, {WS_FLG:#x}")
    e(f"v_lshlrev_b32 v{GD+12}, 3, v{vDX}")
    e("L_poll:")
    e(f"buffer_load_dword v{GD+11}, v{GD+12}, s[20:23], s36 offen sc1")
    e("s_memrealtime s[92:93]")
    e("s_waitcnt vmcnt(0) lgkmcnt(0)")
    e(f"v_cmp_ne_u32 vcc, s89, v{GD+11}")
    e("s_sub_u32 s92, s92, s90")
    e("s_cmp_eq_u64 vcc, 0")
    e("s_cbranch_scc1 L_poll_ok")
    if cfg.SLP: e(f"s_sleep {cfg.SLP}")
    e(f"s_cmp_lt_u32 s92, {cfg.TMO}")
    e("s_cbranch_scc1 L_poll")
    e("L_poll_fail:")
    e(f"v_mov_b32 v{GD+9}, 1")
    e("L_poll_ok:")
    if not cfg.WSC and cfg.INV:
        e("buffer_inv sc1")
        e("s_waitcnt vmcnt(0)")
    e(f"v_mov_b32 v{GD+10}, {LDS_SCR + 256}")
    e(f"ds_write_b32 v{GD+10}, v{GD+9}")
    e("s_waitcnt lgkmcnt(0)")
    e("s_branch L_sync_wait")
    e("L_x0:")
    e("s_sub_u32 s36, s24, 1")
    if cfg.XEARLY:
        e("s_cmp_lt_u32 s2, 128")
        e("s_cbranch_scc1 L_x0_done")
    e("s_mul_i32 s38, s36, 11")
    e("s_add_u32 s39, s38, 11")
    e("s_min_u32 s39, s39, 32")
    e("X0LOOP")
    e("L_x0_done:")
    e(f"s_mov_b32 m0, {LDS_SCR}")
    e("s_lshl_b32 s40, s27, 14")
    e("s_add_u32 s40, s40, s37")
    e("s_lshl_b32 s38, s36, 12")
    e("s_add_u32 s40, s40, s38")
    for tb in range(1, cfg.TD):
        e(f"s_add_u32 s38, s40, {tb * 0x10000}")
        e(f"buffer_load_dword v{vTC}, s[12:15], s38 offen lds")
        e(f"s_add_u32 s38, s40, {tb * 0x10000 + 4096}")
        e(f"buffer_load_dword v{vTC}, s[12:15], s38 offen lds")
    e("L_sync_wait:")
    if cfg.PROF:
        e("s_memrealtime s[58:59]")
        e("s_waitcnt lgkmcnt(0)")
        e("s_mov_b32 s100, s58")
    e("s_barrier")
    e(f"v_mov_b32 v{GD+10}, {LDS_SCR + 256}")
    e(f"ds_read_b32 v{GD+9}, v{GD+10}")
    e("s_waitcnt lgkmcnt(0)")
    e(f"v_readfirstlane_b32 s95, v{GD+9}")
    e("s_mov_b32 s87, 0")
    e("s_lshr_b32 s88, s27, 1")
    e("s_cmp_lg_u32 s95, 0")
    e("s_cbranch_scc1 L_prep_again")
    e("L_sync_done:")
    if cfg.PROF:
        e("s_mov_b32 s94, s57")
        e("s_mov_b32 s95, s99")
    if cfg.DBG:
        e("s_memrealtime s[100:101]")
    if cfg.PROF:
        e("s_memtime s[54:55]")
        e("s_memrealtime s[60:61]")
        e("s_waitcnt lgkmcnt(0)")
        e("s_sub_u32 s53, s54, s48")
        e("s_mov_b32 s101, s60")
    e(f"s_mul_i32 s38, s24, {32*TRS}")
    e(f"s_add_u32 s38, s38, {LDS_TR}")
    for j in range(2):
        e("s_lshl_b32 s36, s28, 9")
        e(f"s_add_u32 s36, s36, {WS_CNT + j*256:#x}")
        vm_issue("ent", f"buffer_load_dword v{TT+4+12*j}, v{TT+0}, s[20:23], s36 offen sc1")
        e("s_lshl_b32 s36, s28, 17")
        e(f"s_add_u32 s36, s36, {WS_ENT + j*0x10000:#x}")
        vm_issue("ent", f"buffer_load_dwordx4 v[{TT+8+12*j}:{TT+11+12*j}], v{TT+1}, s[20:23], s36 offen sc1")
        vm_issue("ent", f"buffer_load_dwordx4 v[{TT+12+12*j}:{TT+15+12*j}], v{TT+1}, s[20:23], s36 offen offset:16 sc1")
    e("s_lshl_b32 s36, s28, 7")
    vm_issue("bias", f"buffer_load_ushort v{BIA}, v{T+5}, s[44:47], s36 offen")
    vm_issue("bias", f"buffer_load_ushort v{BIA+4}, v{T+5}, s[44:47], s36 offen offset:64")
    e("s_lshl_b32 s36, s28, 13")
    e(f"s_add_u32 s36, s36, {WS_WI:#x}")
    for j in range(2):
        for u in range(4):
            b = IDX + j * 16 + u * 4
            if j == 1 and u == 0:
                e("s_add_u32 s36, s36, 0x1000")
            vm_issue("W", f"buffer_load_dwordx4 v[{b}:{b+3}], v{vDX}, s[20:23], s36 offen offset:{u*1024}" + (" sc1" if cfg.WSC else ""))
    e("s_lshl_b32 s42, s28, 16")
    e(f"s_add_u32 s42, s42, {WS_WA:#x}")
    e("s_add_u32 s43, s42, 0x8000")
    def w_loads(s0, s1):
        for s in range(s0, s1):
            if s % 4 == 0 and s:
                e("s_add_u32 s42, s42, 0x1000")
                e("s_add_u32 s43, s43, 0x1000")
            for j in range(2):
                if cfg.WDMA and j == 1 and s >= 16:
                    continue
                if True:
                    vm_issue("W", f"buffer_load_dwordx4 {A(j,s)}, v{vDX}, s[20:23], s{42+j} offen offset:{(s%4)*1024}" + (" sc1" if cfg.WSC else ""))
    w_loads(0, cfg.LW)
    wait(vtag="ent")
    C = TT + 34; S = TT + 35; E = TT + 36; t = TT + 37
    e("s_mov_b32 s58, 0")
    e(f"s_add_u32 s59, s35, {BUF1}")
    e("s_mov_b32 s60, s38")
    e(f"s_add_u32 s61, s38, 2048")
    e("L_bj:")
    e("s_set_gpr_idx_on s58, 0x1")
    e("s_nop 0")
    e(f"v_mov_b32 v{C}, v{TT+4}")
    e("s_set_gpr_idx_off")
    e(f"v_mov_b32 v{S}, v{C}")
    e(f"v_cmp_lt_u32 vcc, 8, v{C}")
    for sh in (1, 2, 4, 8):
        e("s_nop 0")
        e(f"v_add_u32_dpp v{S}, v{S}, v{S} row_shr:{sh} row_mask:0xf bank_mask:0xf bound_ctrl:0")
        e("s_nop 0")
    e("s_nop 0")
    e(f"v_add_u32_dpp v{S}, v{S}, v{S} row_bcast:15 row_mask:0xa bank_mask:0xf")
    e("s_nop 1")
    e(f"v_add_u32_dpp v{S}, v{S}, v{S} row_bcast:31 row_mask:0xc bank_mask:0xf")
    e("s_nop 1")
    e(f"v_readlane_b32 s36, v{S}, 63")
    e(f"v_sub_u32 v{S}, v{S}, v{C}")
    e("s_cmp_lg_u64 vcc, 0")
    e("s_cselect_b32 s62, 1, 0")
    e(f"s_cmp_gt_u32 s36, {8*RCH}")
    e("s_cselect_b32 s62, 1, s62")
    e("s_add_u32 s36, s36, 7")
    e("s_lshr_b32 s36, s36, 3")
    e("s_cmp_eq_u32 s62, 0")
    e("s_cselect_b32 s36, s36, 0")
    e("s_cmp_eq_u32 s58, 0")
    e("s_cselect_b32 s30, s36, s30")
    e("s_cselect_b32 s64, s62, s64")
    e("s_mov_b32 s31, s36")
    e("s_mov_b32 s65, s62")
    e("s_cmp_lg_u32 s62, 0")
    e("s_cbranch_scc1 L_bj_next")
    e("s_mov_b32 s63, 0")
    e("L_be:")
    e(f"v_cmp_lt_u32 vcc, s63, v{C}")
    e("s_and_saveexec_b64 s[66:67], vcc")
    e("s_cbranch_execz L_be_done")
    e("s_add_u32 s36, s58, s63")
    e("s_set_gpr_idx_on s36, 0x1")
    e("s_nop 0")
    e(f"v_mov_b32 v{E}, v{TT+8}")
    e("s_set_gpr_idx_off")
    e(f"v_add_u32 v{t}, s63, v{S}")
    e(f"v_lshrrev_b32 v{t+1}, 3, v{t}")
    e(f"v_bfe_u32 v{t+2}, v{t}, 2, 1")
    e(f"v_and_b32 v{t+3}, 3, v{t}")
    e(f"v_lshrrev_b32 v{t+4}, 26, v{E}")
    e(f"v_lshl_add_u32 v{t+4}, v{t+2}, 5, v{t+4}")
    e(f"v_lshlrev_b32 v{t+4}, 4, v{t+4}")
    e(f"v_lshrrev_b32 v{t+5}, 1, v{t+1}")
    e(f"v_and_b32 v{t+6}, 1, v{t+1}")
    e(f"v_mul_u32_u24 v{t+7}, {RS}, v{t+5}")
    e(f"v_lshl_add_u32 v{t+7}, v{t+6}, 10, v{t+7}")
    e(f"v_add3_u32 v{t+7}, v{t+7}, v{t+4}, s59")
    e(f"v_lshl_add_u32 v{t+7}, v{t+3}, 2, v{t+7}")
    e(f"ds_write_b16 v{t+7}, v{E}")
    e(f"v_lshl_add_u32 v{t+8}, v{t+5}, 2, v{t+4}")
    e(f"v_add_u32 v{t+8}, s60, v{t+8}")
    e(f"v_lshlrev_b32 v{t+9}, 4, v{t+6}")
    e(f"v_lshl_add_u32 v{t+9}, v{t+3}, 2, v{t+9}")
    e(f"v_bfe_u32 v{t+10}, v{E}, 24, 2")
    e(f"v_lshlrev_b32 v{t+10}, v{t+9}, v{t+10}")
    e(f"ds_or_b32 v{t+8}, v{t+10}")
    e(f"v_lshlrev_b32 v{t+8}, 4, v{t+1}")
    e(f"v_bfe_u32 v{t+9}, v{t}, 1, 1")
    e(f"v_lshl_add_u32 v{t+8}, v{t+9}, 3, v{t+8}")
    e(f"v_lshl_add_u32 v{t+8}, v{t+2}, 2, v{t+8}")
    e(f"v_and_b32 v{t+9}, 1, v{t}")
    e(f"v_lshl_add_u32 v{t+8}, v{t+9}, 1, v{t+8}")
    e(f"v_add_u32 v{t+8}, s61, v{t+8}")
    e(f"v_bfe_u32 v{t+10}, v{E}, 16, 8")
    e(f"v_lshlrev_b32 v{t+10}, 3, v{t+10}")
    e(f"ds_write_b16 v{t+8}, v{t+10}")
    e("s_mov_b64 exec, s[66:67]")
    e("s_add_u32 s63, s63, 1")
    e("s_cmp_lt_u32 s63, 8")
    e("s_cbranch_scc1 L_be")
    e("L_be_done:")
    e("s_mov_b64 exec, s[66:67]")
    e("L_bj_next:")
    e("s_add_u32 s58, s58, 12")
    e(f"s_add_u32 s59, s59, {4*RS}")
    e("s_add_u32 s60, s60, 1024")
    e("s_add_u32 s61, s61, 128")
    e("s_cmp_lt_u32 s58, 24")
    e("s_cbranch_scc1 L_bj")
    e(f"v_add_u32 v{TT+33}, s38, v{T+3}")
    for j in range(2):
        for c in range(RCH):
            b = RAF + (j * RCH + c) * 4
            e(f"ds_read_b128 v[{b}:{b+3}], v{TT+2} offset:{(4*j + (c>>1))*RS + (c&1)*1024}")
            b = RPK + (j * RCH + c) * 2
            e(f"ds_read_b64 v[{b}:{b+1}], v{TT+33} offset:{2048 + j*128 + c*16}")
        e(f"ds_read_b128 v[{RIX+j*4}:{RIX+j*4+3}], v{TT+3} offset:{j*1024}")
    if cfg.WDMA:
        e("s_lshl_b32 s36, s28, 16")
        e(f"s_add_u32 s36, s36, {WS_WA + 0x8000 + 16*1024:#x}")
        e("s_waitcnt lgkmcnt(0)")
        for r in range(8):
            e(f"s_add_u32 m0, s35, {r*RS + BUF1}")
            if r: e("s_add_u32 s36, s36, 2048")
            else: e("s_nop 0")
            vm_issue("WD", f"buffer_load_dwordx4 v{vDX}, s[20:23], s36 offen" + (" sc1" if cfg.WSC else "") + " lds")
            vm_issue("WD", f"buffer_load_dwordx4 v{vDX}, s[20:23], s36 offen offset:1024" + (" sc1" if cfg.WSC else "") + " lds")
    w_loads(cfg.LW, 32)
    if cfg.WDMA:
        wait(vtag="WD")
        for s_ in range(16, 32):
            k = s_ - 16
            e(f"ds_read_b128 {A(1,s_)}, v{TT+2} offset:{(k>>1)*RS + (k&1)*1024}")
    e("s_lshl_b32 s37, s26, 19")
    e("s_lshl_b32 s33, s24, 14")
    e("s_add_u32 s37, s37, s33")
    e("s_add_u32 s37, s37, 0x10000")
    e("s_lshl_b32 s41, s26, 19")
    e("s_lshl_b32 s33, s27, 14")
    e("s_add_u32 s41, s41, s33")
    e("s_lshl_b32 s33, s24, 12")
    e("s_add_u32 s41, s41, s33")
    e(f"s_add_u32 s41, s41, {cfg.TD * 0x10000}")
    e("s_lshl_b32 s33, s26, 19")
    e("s_lshl_b32 s36, s28, 7")
    e("s_add_u32 s33, s33, s36")
    e("s_mov_b32 s34, 0x40000000")
    e("s_mov_b32 s39, 0")
    e(f"s_mov_b32 s29, {BUF1}")
    e(f"s_add_u32 s32, s35, {BUF1}")
    wait(vtag="bias")
    e(f"v_cmp_eq_u32 vcc, 0, v{T+2}")
    for i in (1, 2, 3, 5, 6, 7):
        e(f"v_mov_b32 v{BIA+i}, 0")
    e(f"v_cndmask_b32 v{BIA}, 0, v{BIA}, vcc")
    e(f"v_cndmask_b32 v{BIA+4}, 0, v{BIA+4}, vcc")
    e(f"v_mov_b32 v{ONE}, 0x3f80")
    for i in (1, 2, 3):
        e(f"v_mov_b32 v{ONE+i}, 0")
    e("s_waitcnt vmcnt(0) lgkmcnt(0)")
    e("s_barrier")
    if cfg.PROF:
        e("s_memtime s[50:51]")
        e("s_waitcnt lgkmcnt(0)")
    if cfg.DBG:
        e("s_memrealtime s[50:51]")
        e("s_waitcnt lgkmcnt(0)")
    vm.clear()

    def init_acc(j):
        return f"v_mfma_f32_32x32x16_bf16 {acc(j)}, v[{BIA+4*j}:{BIA+4*j+3}], v[{ONE}:{ONE+3}], 0"

    def b_reads(s):
        b = bf(s)
        base = 64 * s
        return [("ds", ("B", s), f"ds_read_b128 v[{b}:{b+3}], v{vLB} offset:{base}"),
                ("ds", ("B", s), f"ds_read_b128 v[{b+4}:{b+7}], v{vLB} offset:{base+32}")]

    def g_items(j, c, gs, tag):
        r = []
        pk = RPK + (j * RCH + c) * 2
        for pb in range(4):
            d = GD + gs * 8 + 2 * pb
            r.append(("raw", f"v_add_u32_sdwa v{d}, v{vRB}, v{pk + (pb>>1)} dst_sel:DWORD dst_unused:UNUSED_PAD src0_sel:DWORD src1_sel:WORD_{pb&1}" if not cfg.RNOA else "s_nop 0"))
        for pb in range(4):
            d = GD + gs * 8 + 2 * pb
            r.append(("ds", tag, f"ds_read_b64 v[{d}:{d+1}], v{d}") if not cfg.RNOG else ("dsx", tag))
        return r

    uid = [0]
    def gather_block(j, c, gs):
        uid[0] += 1
        lbl = f"L_g{uid[0]}"
        e(f"s_cmp_le_u32 s{30+j}, {c}")
        e(f"s_cbranch_scc1 {lbl}")
        for it in g_items(j, c, gs, None):
            e(it[-1])
        e(f"{lbl}:")
        ds.append(("Gmark", j, c))
    def mfma_block(j, c, gs):
        cond = c >= RU
        if cond:
            uid[0] += 1
            lbl = f"L_m{uid[0]}"
            e(f"s_cmp_le_u32 s{30+j}, {c}")
            e(f"s_cbranch_scc1 {lbl}")
            wait(dtag=("Gmark", j, c))
        elif not cfg.RNOG:
            wait(dtag=("G", j, c))
        ra = RAF + (j * RCH + c) * 4
        if not cfg.RNOM: e(f"v_smfmac_f32_32x32x32_bf16 {acc(j)}, v[{ra}:{ra+3}], v[{GD+gs*8}:{GD+gs*8+7}], v{RIX + j*4 + (c>>1)}" + (" abid:1" if c & 1 else ""))
        if cond:
            e(f"{lbl}:")

    def emit_items(items):
        for x in items:
            if x[0] == "raw": e(x[1])
            elif x[0] == "ds": ds_issue(x[1], x[2])
            elif x[0] == "vm": vm_issue(x[1], x[2])
            elif x[0] == "G": gather_block(*x[1:])
            elif x[0] == "M": mfma_block(*x[1:])
            elif x[0] == "W": wait(dtag=x[1])
            elif x[0] == "dsx": ds.append(("Gmark", x[1])); ds.append(x[1]) if False else None
            else: raise Exception(x)

    def epilogue_items():
        if cfg.PERM == 2:
            wr = [("raw", f"v_permlane16_swap_b32 v{EP + 8*(i>>2) + (i&3)}, v{EP + 8*(i>>2) + 4 + (i&3)}") for i in range(8)]
            for pr in range(2):
                a = EP + 4 * pr; b = EP + 8 + 4 * pr
                wr += [("raw", f"v_mov_b32 v{TMP+i}, v{a+i}") for i in range(4)]
                wr += [("raw", f"v_mov_b32_dpp v{a+i}, v{b+i} row_ror:8 row_mask:0xf bank_mask:0xc") for i in range(4)]
                wr += [("raw", f"v_mov_b32_dpp v{b+i}, v{TMP+i} row_ror:8 row_mask:0xf bank_mask:0x3") for i in range(4)]
            st = []
            for i, a in enumerate((EP, EP + 8, EP + 4, EP + 12)):
                st.append(("raw", f"s_add_u32 s38, s34, {i*8*2048}"))
                st.append(("vm", "st", f"buffer_store_dwordx4 v[{a}:{a+3}], v{vST}, s[16:19], s38 offen" + ["", " nt", " sc1", " sc0 sc1", " sc1 nt"][cfg.STM]))
            return wr, [], st
        if cfg.PERM:
            wr = [("raw", f"v_permlane16_swap_b32 v{EP + 8*(i>>2) + (i&3)}, v{EP + 8*(i>>2) + 4 + (i&3)}") for i in range(8)]
            st = []
            for i in range(4):
                a = EP + 4 * i
                st.append(("raw", f"s_add_u32 s38, s34, {(i&1)*16*2048}"))
                st.append(("vm", "st", f"buffer_store_dwordx4 v[{a}:{a+3}], v{vST}, s[16:19], s38 offen offset:{64*(i>>1)}" + ["", " nt", " sc1", " sc0 sc1", " sc1 nt"][cfg.STM]))
            return wr, [], st
        wr = [("ds", "tw", f"ds_write_b128 v{vTW}, v[{EP+4*i}:{EP+4*i+3}] offset:{32*i}") for i in range(4)]
        rb = []; st = []
        for i in range(4):
            a = EP + 4 * i
            rb.append(("ds", ("tr", i), f"ds_read_b128 v[{a}:{a+3}], v{vTR} offset:{i*8*TRS}"))
            st.append(("W", ("tr", i)))
            st.append(("raw", f"s_add_u32 s38, s34, {i*8*2048}"))
            st.append(("vm", "st", f"buffer_store_dwordx4 v[{a}:{a+3}], v{vST}, s[16:19], s38 offen" + ["", " nt", " sc1", " sc0 sc1", " sc1 nt"][cfg.STM]))
        return wr, rb, st

    if cfg.SEG:
        for i in range(80, 88): e(f"s_mov_b32 s{i}, 0")
        e("s_memtime s[76:77]")
        e("s_waitcnt lgkmcnt(0)")
        e("s_mov_b32 s79, s76")
    e(init_acc(0))
    for s in range(PD):
        emit_items(b_reads(s))

    e("L_loop:")
    rq = []
    def at(g, items):
        for it in items:
            rq.append((g, it))
    order = [(j, c) for c in range(RCH) for j in range(2)] if not cfg.NORES else []
    for z, (j, c) in enumerate(order):
        g0 = int(min(cfg.RPER, (2 * (32 - PD) - 1 - cfg.RLAT) * 10 // 15) * z / 10)
        if c >= RU:
            at(g0, [("G", j, c, z & 1)])
        else:
            gi = g_items(j, c, z & 1, ("G", j, c))
            if cfg.GSPREAD:
                at(g0, [gi[0], gi[1], gi[4]]); at(g0 + 1, [gi[5], gi[2]]); at(g0 + 2, [gi[6], gi[3]]); at(g0 + 3, [gi[7]])
            else:
                at(g0, gi[:4]); at(g0 + 1, gi[4:])
        at(g0 + cfg.RLAT, [("M", j, c, z & 1)])
    if not cfg.NODMA:
        for r in range(8):
            at(cfg.DG0 + cfg.DGS * r, [("raw", f"s_add_u32 m0, s32, {r*RS}"), ("raw", f"s_add_u32 s36, s40, {r*2048}"),
                             ("vm", "Xn", f"buffer_load_dwordx4 v{vDX}, s[12:15], s36 offen lds")])
            at(cfg.DG0 + cfg.DGS * r + cfg.DGS // 2, [("vm", "Xn", f"buffer_load_dwordx4 v{vDX}, s[12:15], s36 offen offset:1024 lds")])
        at(cfg.DG0 + cfg.DGS * 8 if cfg.TG < 0 else cfg.TG, [("raw", f"s_mov_b32 m0, {LDS_SCR}"), ("raw", "s_nop 0"), ("vm", "touch", f"buffer_load_dword v{vTC}, s[12:15], s42 offen lds")])
    if not cfg.NOEPI:
        wr, rb, st = epilogue_items()
        if cfg.PERM:
            for i in range(0, len(wr), 4):
                at(cfg.EW0 + i // 4, wr[i:i+4])
            for i in range(4):
                at(cfg.ES0 + cfg.ESS * i, st[2*i:2*i+2])
        elif not cfg.NOTR:
            for i in range(4):
                at(cfg.EW0 + cfg.EWS * i, [wr[i]])
            for i in range(4):
                at(cfg.ER0 + cfg.ERS * i, [rb[i]])
        for i in range(4):
            if not cfg.NOST and not cfg.PERM:
                at(cfg.ES0 + cfg.ESS * i, st[3*i + (1 if cfg.NOTR else 0):3*i+3])
    rq.sort(key=lambda t: t[0])
    def fill(gap):
        while rq and rq[0][0] <= gap:
            emit_items([rq.pop(0)[1]])

    e("s_cmp_lt_u32 s39, 7")
    e("s_cselect_b32 s40, s37, 0x40000000")
    e(f"s_cmp_lt_u32 s39, {8 - cfg.TD}")
    e("s_cselect_b32 s42, s41, 0x40000000")
    def M(j, s):
        e(f"v_smfmac_f32_32x32x32_bf16 {acc(j)}, {A(j,s)}, v[{bf(s)}:{bf(s)+7}], v{IDX + 16*j + (s>>1)}" + (" abid:1" if s & 1 else ""))
    def cvt(j, lo, hi):
        for i in range(lo, hi):
            e(f"v_cvt_pk_bf16_f32 v{EP+8*j+i}, v{ACC+16*j+2*i}, v{ACC+16*j+2*i+1}")
    def slow_path():
        e("s_or_b32 s36, s64, s65")
        e("s_cbranch_scc0 L_sp_end")
        e(f"v_lshrrev_b32 v{GD+13}, 4, v{vDX}")
        for r in (2, 3, 4, 5, 6, 7, 9, 10, 11):
            e(f"v_mov_b32 v{GD+r}, 0")
        e("s_mov_b32 s58, 0")
        e("L_sp_kr:")
        e("s_cmp_lt_u32 s58, 64")
        e("s_cselect_b32 s36, s64, s65")
        e("s_cmp_eq_u32 s36, 0")
        e("s_cbranch_scc1 L_sp_nx")
        e("s_lshl_b32 s59, s28, 7")
        e("s_add_u32 s59, s59, s58")
        e("s_lshl_b32 s60, s59, 2")
        e(f"buffer_load_dword v{GD+15}, v{GD+9}, s[20:23], s60 offen offset:{WS_CNT} sc1")
        e("s_lshl_b32 s59, s59, 10")
        e(f"s_add_u32 s59, s59, {WS_ENT:#x}")
        e("s_waitcnt vmcnt(0)")
        e(f"v_readfirstlane_b32 s60, v{GD+15}")
        e("s_nop 3")
        e("s_cmp_eq_u32 s60, 0")
        e("s_cbranch_scc1 L_sp_nx")
        e("L_sp_e:")
        e(f"buffer_load_dword v{GD+15}, v{GD+9}, s[20:23], s59 offen sc1")
        e("s_waitcnt vmcnt(0)")
        e(f"v_readfirstlane_b32 s62, v{GD+15}")
        e("s_nop 3")
        e("s_lshr_b32 s63, s62, 26")
        e(f"v_cmp_eq_u32 vcc, s63, v{GD+13}")
        e("s_and_b32 s63, s62, 0xffff")
        e(f"v_mov_b32 v{GD+14}, s63")
        e("s_bfe_u32 s63, s62, 0x80010")
        e("s_lshl_b32 s63, s63, 3")
        e(f"v_add_u32 v{GD}, s63, v{vRB}")
        e(f"v_cndmask_b32 v{GD+8}, 0, v{GD+14}, vcc")
        e("s_bfe_u32 s63, s62, 0x20018")
        e(f"v_mov_b32 v{GD+12}, s63")
        e(f"ds_read_b64 v[{GD}:{GD+1}], v{GD}")
        e("s_waitcnt lgkmcnt(0)")
        e("s_cmp_lt_u32 s58, 64")
        e("s_cbranch_scc0 L_sp_j1")
        e(f"v_smfmac_f32_32x32x32_bf16 {acc(0)}, v[{GD+8}:{GD+11}], v[{GD}:{GD+7}], v{GD+12}")
        e("s_branch L_sp_jd")
        e("L_sp_j1:")
        e(f"v_smfmac_f32_32x32x32_bf16 {acc(1)}, v[{GD+8}:{GD+11}], v[{GD}:{GD+7}], v{GD+12}")
        e("L_sp_jd:")
        e("s_add_u32 s59, s59, 4")
        e("s_sub_u32 s60, s60, 1")
        e("s_cmp_lg_u32 s60, 0")
        e("s_nop 4")
        e("s_cbranch_scc1 L_sp_e")
        e("L_sp_nx:")
        e("s_add_u32 s58, s58, 1")
        e("s_cmp_lt_u32 s58, 128")
        e("s_cbranch_scc1 L_sp_kr")
        e("L_sp_end:")
    assert PD == 3 and NB == 4
    wait(dtag=("B", 0))
    M(0, 0)
    cvt(1, 0, 4)
    emit_items(b_reads(3)[:1])
    wait(dtag=("B", 1))
    M(0, 1)
    cvt(1, 4, 8)
    emit_items(b_reads(3)[1:])
    e(init_acc(1))
    fill(0); fill(1)
    M(1, 0)
    emit_items(b_reads(4)[:1])
    fill(2)
    M(1, 1)
    emit_items(b_reads(4)[1:])
    fill(3)
    for s in range(2, 30):
        wait(dtag=("B", s))
        M(0, s)
        sn = s + PD
        rd = b_reads(sn) if sn < 32 else []
        emit_items(rd[:1])
        fill(2 * s)
        M(1, s)
        for _ in range(cfg.XMF):
            e(f"v_mfma_f32_32x32x16_bf16 {acc(1)}, v[{ONE}:{ONE+3}], v[{BIA+1}:{BIA+4}], {acc(1)}" if False else f"v_mfma_f32_16x16x32_bf16 v[{BIA+0}:{BIA+3}], v[{ONE}:{ONE+3}], v[{ONE}:{ONE+3}], v[{BIA+0}:{BIA+3}]" if False else f"v_smfmac_f32_32x32x32_bf16 {acc(1)}, v[{BIA+1-1+0}:{BIA+3}], v[{bf(s)}:{bf(s)+7}], v{RIX}" if False else "s_sleep 1")
        emit_items(rd[1:])
        fill(2 * s + 1)
        if s == 28:
            assert not rq, len(rq)
            slow_path()
        if s == 29:
            if cfg.PROF:
                e("s_memtime s[54:55]")
            if cfg.NODMA:
                e("s_waitcnt lgkmcnt(0)")
            else:
                e(f"s_waitcnt vmcnt({min(vm_n('Xn'),63)}) lgkmcnt(0)")
            e("s_barrier")
            if cfg.PROF:
                e("s_memtime s[56:57]")
                e("s_waitcnt lgkmcnt(0)")
                e("s_sub_u32 s56, s56, s54")
                e("s_add_u32 s52, s52, s56")
            e(f"v_add_u32 v{vLB}, s29, v{vLB}")
            e(f"v_add_u32 v{vRB}, s29, v{vRB}")
            emit_items(b_reads(0))
    M(0, 30)
    emit_items(b_reads(1))
    e("s_sub_u32 s32, s32, s29")
    e("s_sub_u32 s29, 0, s29")
    M(0, 31)
    e("s_mov_b32 s34, s33")
    e("s_add_u32 s33, s33, 0x10000")
    e("s_add_u32 s37, s37, 0x10000")
    e("s_add_u32 s41, s41, 0x10000")
    e("s_add_u32 s39, s39, 1")
    M(1, 30)
    emit_items(b_reads(2))
    e("s_cmp_lt_u32 s39, 8")
    e("s_nop 2")
    M(1, 31)
    cvt(0, 0, 8)
    e(init_acc(0))
    e("s_cbranch_scc1 L_loop")
    e("s_nop 7")
    cvt(1, 0, 8)
    wr, rb, st = epilogue_items()
    e("s_nop 1")
    emit_items(wr); emit_items(rb); emit_items(st)
    if cfg.PROF:
        e("s_memtime s[54:55]")
        e("s_memrealtime s[98:99]")
        e("s_waitcnt lgkmcnt(0)")
        e("s_sub_u32 s56, s50, s48")
        e("s_sub_u32 s57, s54, s50")
        e("s_sub_u32 s48, s98, s96")
        e("s_nop 4")
        e(f"v_mov_b32 v{GD}, s56")
        e(f"v_mov_b32 v{GD+1}, s52")
        e(f"v_mov_b32 v{GD+2}, s57")
        e(f"v_mov_b32 v{GD+3}, s48")
        e("s_lshl_b32 s36, s2, 2")
        e("s_add_u32 s36, s36, s24")
        e("s_lshl_b32 s36, s36, 4")
        e("s_add_u32 s36, s36, 0x8000000")
        e(f"v_mov_b32 v{GD+8}, 0")
        e(f"v_mov_b32 v{GD+4}, s94")
        e(f"v_mov_b32 v{GD+5}, s95")
        e(f"v_mov_b32 v{GD+6}, s53")
        e(f"v_mov_b32 v{GD+7}, 0")
        e(f"buffer_store_dwordx4 v[{GD}:{GD+3}], v{GD+8}, s[20:23], s36 offen")
        e("s_add_u32 s36, s36, 0x100000")
        e(f"buffer_store_dwordx4 v[{GD+4}:{GD+7}], v{GD+8}, s[20:23], s36 offen")
        e("s_nop 2")
        e(f"v_mov_b32 v{GD+4}, s96")
        e(f"v_mov_b32 v{GD+5}, s100")
        e(f"v_mov_b32 v{GD+6}, s101")
        e(f"v_mov_b32 v{GD+7}, s98")
        e("s_add_u32 s36, s36, 0x100000")
        e(f"buffer_store_dwordx4 v[{GD+4}:{GD+7}], v{GD+8}, s[20:23], s36 offen")
        if cfg.SEG:
            e("s_nop 2")
            for i in range(8): e(f"v_mov_b32 v{GD+i}, s{80+i}")
            e("s_add_u32 s36, s36, 0x100000")
            e(f"buffer_store_dwordx4 v[{GD}:{GD+3}], v{GD+8}, s[20:23], s36 offen")
            e("s_add_u32 s36, s36, 0x100000")
            e(f"buffer_store_dwordx4 v[{GD+4}:{GD+7}], v{GD+8}, s[20:23], s36 offen")
    if cfg.DBG:
        e("s_memrealtime s[56:57]")
        e("s_waitcnt vmcnt(0)")
        e("s_memrealtime s[98:99]")
        e("s_waitcnt lgkmcnt(0)")
        e("s_sub_u32 s98, s98, s96")
        e("s_sub_u32 s100, s100, s96")
        e("s_sub_u32 s50, s50, s96")
        e("s_sub_u32 s56, s56, s96")
        e(f"v_mov_b32 v{GD}, s100")
        e(f"v_mov_b32 v{GD+1}, s50")
        e(f"v_mov_b32 v{GD+2}, s56")
        e(f"v_mov_b32 v{GD+3}, s98")
        e(f"v_mov_b32 v{GD+4}, 0")
        e("s_and_b32 s36, s2, 63")
        e("s_or_b32 s36, s36, s24")
        e("s_cbranch_scc1 L_main_end")
        e("s_lshr_b32 s36, s2, 6")
        e("s_lshl_b32 s36, s36, 4")
        e(f"v_cmp_eq_u32 vcc, 0, v{vDX}")
        e("s_and_saveexec_b64 s[66:67], vcc")
        e(f"buffer_store_dwordx4 v[{GD}:{GD+3}], v{GD+4}, s[72:75], s36 offen")
    e("L_main_end:")
    e("s_endpgm")


gen_main()
_n = 0
L2 = []
for ln in L:
    if ln.strip() == "X0LOOP":
        _n += 1
        L2 += [f"L_x0_loop{_n}:", f"    s_mul_i32 s40, s38, {RS}", "    s_mov_b32 m0, s40", "    s_lshl_b32 s40, s38, 11", "    s_add_u32 s40, s40, s37",
               "    buffer_load_dwordx4 v3, s[12:15], s40 offen lds", "    buffer_load_dwordx4 v3, s[12:15], s40 offen offset:1024 lds",
               "    s_add_u32 s38, s38, 1", "    s_cmp_lt_u32 s38, s39", f"    s_cbranch_scc1 L_x0_loop{_n}"]
    else:
        L2.append(ln)
L = L2

tail = """
.section .rodata,"a"
.p2align 6
.amdhsa_kernel standalone__structured_sparse_n_m__ragged_kernel
  .amdhsa_next_free_vgpr 512
  .amdhsa_next_free_sgpr 102
  .amdhsa_accum_offset 256
  .amdhsa_group_segment_fixed_size 0
  .amdhsa_kernarg_size 48
  .amdhsa_user_sgpr_count 2
  .amdhsa_user_sgpr_kernarg_segment_ptr 1
  .amdhsa_system_sgpr_workgroup_id_x 1
.end_amdhsa_kernel
"""
open(OUT, "w").write(hdr + "\n".join(L) + "\n" + tail)
print("wrote", OUT, len(L), "lines")
```

```python
import sys, os

OUT = os.environ.get("GEN_OUT", "standalone__structured_sparse_n_m__ragged.s")

WS_CNT = 0x0
WS_WI = 0x4000
WS_WA = 0x40000
WS_ENT = 0x200000
WS_FLG = 0x400000
WS_SIZE = 0x10000000

class Cfg:
    NB = 4
    PD = 3
    RCH = 8
    RU = 6
    TD = 2
    RPER = 34
    RLAT = 6
    DGS = 4
    TMO = 20000
    SLP = 8
    SLP0 = 64
    PROF = 0
    WDMA = 0
    XMF = 0
    PERM = 0
    NOST = 0
    NOTR = 0
    XEARLY = 0
    FSH = 7
    SEG = 0
    EW0 = 33
    EWS = 3
    ER0 = 46
    ERS = 1
    ES0 = 54
    ESS = 1
    DG0 = 0
    WSC = 1
    INV = 1
    GSPREAD = 1
    RNOG = 0
    RNOM = 0
    RNOA = 0
    STM = 2
    DBG = 0
    NODMA = 0
    NORES = 0
    NOEPI = 0

cfg = Cfg()
for a in sys.argv[1:]:
    k, v = a.split("=")
    setattr(cfg, k, int(v))

RS = 4144
BUF1 = 2064
PADOFF = 2048
LDS_X = 32 * RS
LDS_TR = LDS_X
TRS = 144
LDS_SCR = LDS_TR + 4 * 32 * TRS
LDS_TOTAL = LDS_SCR + 256 + 16

L = []
def e(s=""):
    L.append("    " + s if s and not s.endswith(":") else s)

hdr = f"""; 2:4 structured-sparse GEMM  out = x @ prune24(w) + b   (B*S=16384, D=1024), bf16
; @launch grid=(256,1,1) block=(256,1,1) lds={LDS_TOTAL}
.amdgcn_target "amdgcn-amd-amdhsa--gfx950"
.text
"""


def gen_prep_slice():
    TBL = {0: 4, 1: 4, 2: 4, 4: 8, 8: 12, 3: 4, 5: 8, 6: 9, 7: 4, 9: 12, 10: 13, 11: 4, 12: 14, 13: 8, 14: 9, 15: 4}
    T64 = 0
    for k, v in TBL.items():
        T64 |= v << (4 * k)
    ET = {7: 1, 11: 2, 13: 2, 14: 2, 15: 3}
    E32 = 0
    for k, v in ET.items():
        E32 |= v << (2 * k)
    R = 64
    def v(n): return f"v{R+n}"
    e(f"v_lshlrev_b32 {v(3)}, 2, v0")
    e("s_lshl_b32 s89, s87, 15")
    e("s_lshl_b32 s90, s88, 10")
    e("s_add_u32 s89, s89, s90")
    D = 8
    for kk in range(0, 16, 2):
        e(f"buffer_load_dword {v(D+kk)}, {v(3)}, s[68:71], s89 offen")
        e(f"buffer_load_dword {v(D+kk+1)}, {v(3)}, s[68:71], s89 offen offset:2048")
        if kk < 14:
            e("s_add_u32 s89, s89, 4096")
    if cfg.XEARLY:
        e("s_cmp_lg_u32 s95, 0")
        e("s_cbranch_scc1 L_prep_nox")
        e("s_lshl_b32 s38, s24, 3")
        e("s_add_u32 s39, s38, 8")
        e("X0LOOP")
        e("L_prep_nox:")
    e("s_mov_b32 s76, 0x7fff7fff")
    e("s_mov_b32 s77, 0x00010001")
    e("s_mov_b32 s78, 0x000f000f")
    e(f"s_mov_b32 s80, {T64 & 0xffffffff:#x}")
    e(f"s_mov_b32 s81, {T64 >> 32:#x}")
    e(f"s_mov_b32 s82, {E32:#x}")
    e("s_mov_b32 s83, 0x05040100")
    e("s_mov_b32 s84, 0x07060302")
    e("s_mov_b32 s85, 0x01000100")
    e("s_mov_b32 s86, 0x0202")
    e(f"v_and_b32 {v(1)}, 15, v0")
    e(f"v_lshrrev_b32 {v(2)}, 4, v0")
    e("s_lshl_b32 s90, s88, 4")
    e(f"v_add_u32 {v(2)}, s90, {v(2)}")
    e(f"v_and_b32 {v(4)}, 9, {v(1)}")
    e(f"v_bfe_u32 {v(5)}, {v(1)}, 1, 1")
    e(f"v_bfe_u32 {v(6)}, {v(1)}, 2, 1")
    e(f"v_lshl_or_b32 {v(4)}, {v(5)}, 2, {v(4)}")
    e(f"v_lshl_or_b32 {v(4)}, {v(6)}, 1, {v(4)}")
    e(f"v_lshlrev_b32 {v(4)}, 1, {v(4)}")
    e(f"v_lshlrev_b32 {v(24)}, 15, {v(2)}")
    e(f"v_lshl_add_u32 {v(24)}, {v(4)}, 4, {v(24)}")
    e(f"v_lshlrev_b32 {v(25)}, 12, {v(2)}")
    e(f"v_lshl_add_u32 {v(25)}, {v(4)}, 4, {v(25)}")
    e("s_lshr_b32 s91, s87, 1")
    e("s_and_b32 s92, s87, 1")
    e("s_lshl_b32 s93, s91, 10")
    e("s_lshl_b32 s92, s92, 9")
    e("s_add_u32 s93, s93, s92")
    e(f"s_add_u32 s93, s93, {WS_WA:#x}")
    e("s_lshr_b32 s94, s91, 3")
    e("s_lshl_b32 s94, s94, 10")
    e("s_add_u32 s94, s94, s92")
    e("s_and_b32 s91, s91, 7")
    e("s_lshl_b32 s91, s91, 1")
    e("s_add_u32 s94, s94, s91")
    e(f"s_add_u32 s94, s94, {WS_WI:#x}")
    e(f"v_mov_b32 {v(36)}, 0")
    e(f"v_mov_b32 {v(37)}, 0")
    e(f"v_mov_b32 {v(38)}, 0")
    e("s_mov_b32 s89, 0")
    if cfg.XEARLY:
        e("s_cmp_lg_u32 s95, 0")
        e("s_cbranch_scc1 L_prep_w0")
        e("s_waitcnt vmcnt(16)")
        e("s_branch L_pg")
        e("L_prep_w0:")
    e("s_waitcnt vmcnt(0)")
    a, b, c, d = 50, 51, 52, 53
    e("L_pg:")
    e("s_set_gpr_idx_on s89, 0x1")
    e("s_nop 0")
    for i in range(4):
        e(f"v_mov_b32 {v(50+i)}, {v(D+i)}")
    e("s_set_gpr_idx_off")
    for i, r in enumerate((a, b, c, d)):
        e(f"v_and_b32 {v(40+i)}, s76, {v(r)}")
    e(f"v_pk_max_u16 {v(44)}, {v(40)}, {v(41)}")
    e(f"v_pk_min_u16 {v(45)}, {v(40)}, {v(41)}")
    e(f"v_pk_max_u16 {v(46)}, {v(42)}, {v(43)}")
    e(f"v_pk_min_u16 {v(47)}, {v(42)}, {v(43)}")
    e(f"v_pk_min_u16 {v(44)}, {v(44)}, {v(46)}")
    e(f"v_pk_max_u16 {v(45)}, {v(45)}, {v(47)}")
    e(f"v_pk_max_u16 {v(44)}, {v(44)}, {v(45)}")
    e(f"v_pk_max_u16 {v(44)}, {v(44)}, s77")
    for i in range(4):
        e(f"v_pk_sub_u16 {v(40+i)}, {v(44)}, {v(40+i)} clamp")
    for i in range(4):
        e(f"v_pk_min_u16 {v(40+i)}, {v(40+i)}, s77")
    e(f"v_lshl_or_b32 {v(40)}, {v(41)}, 1, {v(40)}")
    e(f"v_lshl_or_b32 {v(40)}, {v(42)}, 2, {v(40)}")
    e(f"v_lshl_or_b32 {v(40)}, {v(43)}, 3, {v(40)}")
    e(f"v_xor_b32 {v(40)}, s78, {v(40)}")
    e("s_lshr_b32 s90, s89, 2")
    for ee in range(2):
        sel = 83 + ee
        e(f"v_bfe_u32 {v(41)}, {v(40)}, {16*ee}, 4")
        e(f"v_lshlrev_b32 {v(42)}, 2, {v(41)}")
        e(f"v_lshrrev_b64 v[{R+46}:{R+47}], {v(42)}, s[80:81]")
        e(f"v_and_b32 {v(46)}, 15, {v(46)}")
        e(f"v_lshl_or_b32 {v(36+ee)}, {v(46)}, s89, {v(36+ee)}")
        e(f"v_perm_b32 {v(48)}, {v(b)}, {v(a)}, s{sel}")
        e(f"v_perm_b32 {v(49)}, {v(d)}, {v(c)}, s{sel}")
        e(f"v_and_b32 {v(47)}, 3, {v(46)}")
        e(f"v_lshrrev_b32 {v(46)}, 2, {v(46)}")
        e(f"v_lshl_or_b32 {v(46)}, {v(46)}, 16, {v(47)}")
        e(f"v_mov_b32 {v(47)}, s85")
        e(f"v_mad_u32_u24 {v(46)}, {v(46)}, s86, {v(47)}")
        e(f"v_perm_b32 {v(54+ee)}, {v(49)}, {v(48)}, {v(46)}")
        e(f"v_lshlrev_b32 {v(42)}, 1, {v(41)}")
        e(f"v_lshrrev_b32 {v(43)}, {v(42)}, s82")
        e(f"v_and_b32 {v(43)}, 3, {v(43)}")
        if ee:
            e(f"v_lshlrev_b32 {v(43)}, 2, {v(43)}")
        e(f"v_lshl_or_b32 {v(38)}, {v(43)}, s89, {v(38)}")
    e("s_set_gpr_idx_on s90, 0x8")
    e("s_nop 0")
    e(f"v_mov_b32 {v(28)}, {v(54)}")
    e(f"v_mov_b32 {v(32)}, {v(55)}")
    e("s_set_gpr_idx_off")
    e("s_add_u32 s89, s89, 4")
    e("s_cmp_lt_u32 s89, 16")
    e("s_cbranch_scc1 L_pg")
    e(f"buffer_store_dwordx4 v[{R+28}:{R+31}], {v(24)}, s[20:23], s93 offen sc1")
    e(f"buffer_store_dwordx4 v[{R+32}:{R+35}], {v(24)}, s[20:23], s93 offen offset:16 sc1")
    e(f"buffer_store_short {v(36)}, {v(25)}, s[20:23], s94 offen sc1")
    e(f"buffer_store_short {v(37)}, {v(25)}, s[20:23], s94 offen offset:16 sc1")
    e(f"v_bcnt_u32_b32 {v(39)}, {v(38)}, 0")
    e(f"v_mov_b32 {v(40)}, {v(39)}")
    e("s_nop 1")
    for sh in (1, 2, 4, 8):
        e(f"v_add_u32_dpp {v(40)}, {v(40)}, {v(40)} row_shr:{sh} row_mask:0xf bank_mask:0xf bound_ctrl:0")
        e("s_nop 1")
    e(f"v_lshlrev_b32 {v(41)}, 8, {v(2)}")
    e("s_lshl_b32 s89, s87, 2")
    e(f"v_cmp_eq_u32 vcc, 15, {v(1)}")
    e("s_and_saveexec_b64 s[66:67], vcc")
    e(f"buffer_store_dword {v(40)}, {v(41)}, s[20:23], s89 offen offset:{WS_CNT} sc1")
    e("s_mov_b64 exec, s[66:67]")
    e(f"v_sub_u32 {v(40)}, {v(40)}, {v(39)}")
    e(f"v_lshlrev_b32 {v(41)}, 16, {v(2)}")
    e("s_lshl_b32 s93, s87, 10")
    e(f"s_add_u32 s93, s93, {WS_ENT:#x}")
    e("s_mov_b32 s89, 0")
    e("L_pe:")
    e(f"v_cmp_ne_u32 vcc, 0, {v(38)}")
    e("s_cbranch_vccz L_pe_done")
    e(f"v_and_b32 {v(42)}, 1, {v(38)}")
    e(f"v_cmp_ne_u32 vcc, 0, {v(42)}")
    e("s_and_saveexec_b64 s[66:67], vcc")
    e("s_cbranch_execz L_pe_next")
    e("s_and_b32 s90, s89, 12")
    e("s_and_b32 s91, s89, 1")
    e("s_add_u32 s92, s90, s91")
    e("s_set_gpr_idx_on s92, 0x1")
    e("s_nop 0")
    e(f"v_mov_b32 {v(43)}, {v(D+2)}")
    e("s_set_gpr_idx_off")
    e("s_bfe_u32 s92, s89, 0x10001")
    e("s_lshl_b32 s94, s92, 4")
    e(f"v_lshrrev_b32 {v(43)}, s94, {v(43)}")
    e(f"v_and_b32 {v(43)}, 0xffff, {v(43)}")
    e("s_lshl_b32 s94, s87, 18")
    e("s_lshl_b32 s90, s90, 14")
    e("s_add_u32 s94, s94, s90")
    e("s_add_u32 s91, s91, 2")
    e("s_lshl_b32 s91, s91, 24")
    e("s_add_u32 s94, s94, s91")
    e("s_lshl_b32 s92, s92, 26")
    e("s_add_u32 s94, s94, s92")
    e(f"v_or_b32 {v(43)}, s94, {v(43)}")
    e(f"v_lshl_add_u32 {v(43)}, {v(4)}, 26, {v(43)}")
    e(f"v_lshl_add_u32 {v(42)}, {v(40)}, 2, {v(41)}")
    e(f"buffer_store_dword {v(43)}, {v(42)}, s[20:23], s93 offen sc1")
    e(f"v_add_u32 {v(40)}, 1, {v(40)}")
    e("L_pe_next:")
    e("s_mov_b64 exec, s[66:67]")
    e(f"v_lshrrev_b32 {v(38)}, 1, {v(38)}")
    e("s_add_u32 s89, s89, 1")
    e("s_branch L_pe")
    e("L_pe_done:")


def gen_main():
    NB, PD, RCH, RU = cfg.NB, cfg.PD, cfg.RCH, cfg.RU
    nxt = [1]
    def alloc(n, align=1):
        while nxt[0] % align:
            nxt[0] += 1
        r = nxt[0]
        nxt[0] += n
        return r
    vTW = 0
    vLB = alloc(1); vRB = alloc(1); vDX = alloc(1); vST = alloc(1); vTC = alloc(1); vTR = alloc(1)
    IDX = alloc(32, 4)
    ACC = alloc(32, 4)
    EP = alloc(16, 4)
    BF = alloc(8 * NB, 4)
    BIA = alloc(8, 4)
    ONE = alloc(4, 4)
    RAF = alloc(2 * RCH * 4, 4)
    RIX = alloc(2 * RCH // 2, 4)
    RPK = alloc(2 * RCH * 2, 4)
    GD = alloc(16, 4)
    TMP = alloc(4)
    assert nxt[0] <= 256, nxt[0]
    assert ACC == 40 and BIA >= 64 + 56

    def A(j, s):
        b = (s * 2 + j) * 4
        return f"a[{b}:{b+3}]"
    def acc(j):
        b = ACC + j * 16
        return f"v[{b}:{b+15}]"
    def bf(s):
        return BF + (s % NB) * 8

    ds = []
    vm = []
    def is_mark(t):
        return isinstance(t, tuple) and t[0] == "Gmark"
    def ds_issue(tag, ins):
        e(ins); ds.append(tag)
    def vm_issue(tag, ins):
        e(ins); vm.append(tag)
    def ds_n(tag):
        idx = max(i for i, t in enumerate(ds) if t == tag)
        return sum(1 for t in ds[idx+1:] if not is_mark(t))
    def vm_n(tag):
        idx = max(i for i, t in enumerate(vm) if t == tag)
        return len(vm) - 1 - idx
    def wait(dtag=None, vtag=None):
        w = []
        if vtag is not None:
            w.append(f"vmcnt({min(vm_n(vtag), 63)})")
        if dtag is not None:
            w.append(f"lgkmcnt({min(ds_n(dtag), 15)})")
        e("s_waitcnt " + " ".join(w))

    name = "standalone__structured_sparse_n_m__ragged_kernel"
    e(f".globl {name}")
    e(".p2align 8")
    e(f".type {name},@function")
    e(f"{name}:")
    e("s_cmp_ge_u32 s2, 256")
    e("s_cbranch_scc1 L_main_end")
    if cfg.PROF or cfg.DBG:
        e("s_memtime s[48:49]")
        e("s_memrealtime s[96:97]")
        e("s_mov_b32 s52, 0")
    e("s_load_dwordx4 s[4:7], s[0:1], 0")
    e("s_load_dwordx4 s[8:11], s[0:1], 16")
    e("s_load_dwordx4 s[72:75], s[0:1], 32")
    e(f"v_lshrrev_b32 v{vTR}, 6, v0")
    e("s_nop 0")
    e(f"v_readfirstlane_b32 s24, v{vTR}")
    e("s_and_b32 s25, s2, 7")
    e("s_lshr_b32 s26, s2, 3")
    e("s_and_b32 s27, s26, 3")
    e("s_lshr_b32 s26, s26, 2")
    e("s_lshl_b32 s25, s25, 3")
    e("s_add_u32 s26, s26, s25")
    e("s_lshl_b32 s28, s27, 2")
    e("s_add_u32 s28, s28, s24")
    e("s_lshr_b32 s87, s2, 1")
    e("s_and_b32 s88, s2, 1")
    e("s_mov_b32 s95, 0")
    e("s_waitcnt lgkmcnt(0)")
    e("s_mov_b32 s12, s4"); e("s_and_b32 s13, s5, 0xffff"); e("s_mov_b32 s14, 0x2000000"); e("s_mov_b32 s15, 0x00020000")
    e("s_mov_b32 s16, s10"); e("s_and_b32 s17, s11, 0xffff"); e("s_mov_b32 s18, 0x2000000"); e("s_mov_b32 s19, 0x00020000")
    e("s_mov_b32 s20, s74"); e("s_and_b32 s21, s75, 0xffff"); e(f"s_mov_b32 s22, {WS_SIZE:#x}"); e("s_mov_b32 s23, 0x00020000")
    e("s_mov_b32 s44, s8"); e("s_and_b32 s45, s9, 0xffff"); e("s_mov_b32 s46, 0x800"); e("s_mov_b32 s47, 0x00020000")
    e("s_mov_b32 s68, s6"); e("s_and_b32 s69, s7, 0xffff"); e("s_mov_b32 s70, 0x200000"); e("s_mov_b32 s71, 0x00020000")
    e("s_and_b32 s73, s73, 0xffff"); e("s_mov_b32 s74, 0x100"); e("s_mov_b32 s75, 0x00020000")
    e(f"v_mov_b32 v{GD+9}, 0")
    e(f"v_mov_b32 v{GD+10}, 1")
    e(f"v_and_b32 v{vDX}, 63, v0")
    e(f"v_lshlrev_b32 v{vTC}, 6, v{vDX}")
    e(f"v_lshlrev_b32 v{vDX}, 4, v{vDX}")
    e("s_lshl_b32 s37, s26, 19")
    e("s_lshl_b32 s36, s2, 2")
    e("s_add_u32 s36, s36, s24")
    e("s_cmp_lg_u32 s36, 3")
    e("s_cbranch_scc1 L_no_nonce")
    e("s_memrealtime s[90:91]")
    e("s_waitcnt lgkmcnt(0)")
    e("s_or_b32 s90, s90, 1")
    e(f"v_mov_b32 v{GD+11}, s90")
    e(f"v_cmp_eq_u32 vcc, 0, v{vDX}")
    e("s_and_saveexec_b64 s[66:67], vcc")
    e(f"buffer_store_dword v{GD+11}, v{GD+9}, s[72:75], 0 offen sc1")
    e("s_mov_b64 exec, s[66:67]")
    e("L_no_nonce:")
    for r in (ACC, ACC + 1, GD + 5, vST):
        e(f"v_mov_b32 v{r}, 0")
    e(f"v_mov_b32 v{TMP}, v0")
    e("s_cmp_ge_u32 s2, 128")
    e("s_cbranch_scc1 L_setup")
    e("L_prep_again:")
    e(f"v_mov_b32 v0, v{TMP}")
    gen_prep_slice()
    e("s_cmp_eq_u32 s95, 0")
    e("s_cbranch_scc1 L_prep_signal0")
    e("s_add_u32 s87, s87, 1")
    e("s_cmp_lt_u32 s87, 64")
    e("s_cbranch_scc1 L_prep_again")
    e(f"v_mov_b32 v0, v{TMP+1}")
    e("s_waitcnt vmcnt(0)")
    e("s_barrier")
    e("s_branch L_sync_done")
    e("L_prep_signal0:")
    if cfg.PROF:
        e("s_memrealtime s[56:57]")
    e("L_setup:")
    T = GD
    TT = ACC
    e(f"v_and_b32 v{T}, 63, v0")
    e(f"v_lshlrev_b32 v{TT+0}, 2, v{T}")
    e(f"v_lshlrev_b32 v{TT+1}, 10, v{T}")
    e(f"v_lshlrev_b32 v{vDX}, 4, v{T}")
    e(f"v_and_b32 v{T+1}, 31, v0")
    e(f"v_bfe_u32 v{T+2}, v0, 5, 1")
    e(f"v_and_b32 v{T+5}, 0x13, v{T+1}")
    e(f"v_bfe_u32 v{T+4}, v{T+1}, 2, 1")
    e(f"v_lshl_or_b32 v{T+5}, v{T+4}, 3, v{T+5}")
    e(f"v_bfe_u32 v{T+4}, v{T+1}, 3, 1")
    e(f"v_lshl_or_b32 v{T+5}, v{T+4}, 2, v{T+5}")
    e(f"v_lshlrev_b32 v{T+5}, 1, v{T+5}")
    e(f"v_mul_u32_u24 v{vRB}, {RS}, v{T+1}")
    e(f"v_lshl_add_u32 v{vLB}, v{T+2}, 4, v{vRB}")
    e(f"v_lshrrev_b32 v{T+6}, 3, v{T}")
    e(f"v_and_b32 v{T+7}, 7, v{T}")
    if cfg.PERM == 2:
        e(f"v_and_b32 v{vST}, 7, v{T}")
        e(f"v_lshlrev_b32 v{vST}, 11, v{vST}")
        e(f"v_bfe_u32 v{T+4}, v{T}, 4, 1")
        e(f"v_lshl_add_u32 v{vST}, v{T+4}, 5, v{vST}")
        e(f"v_lshl_add_u32 v{vST}, v{T+2}, 4, v{vST}")
        e(f"v_bfe_u32 v{T+4}, v{T}, 3, 1")
        e(f"v_lshl_add_u32 v{vST}, v{T+4}, 6, v{vST}")
    elif cfg.PERM:
        e(f"v_and_b32 v{vST}, 15, v{T}")
        e(f"v_lshlrev_b32 v{vST}, 11, v{vST}")
        e(f"v_bfe_u32 v{T+4}, v{T}, 4, 1")
        e(f"v_lshl_add_u32 v{vST}, v{T+4}, 5, v{vST}")
        e(f"v_lshl_add_u32 v{vST}, v{T+2}, 4, v{vST}")
    else:
        e(f"v_lshlrev_b32 v{vST}, 11, v{T+6}")
        e(f"v_lshl_add_u32 v{vST}, v{T+7}, 4, v{vST}")
    e(f"s_mul_i32 s38, s24, {32*TRS}")
    e(f"s_add_u32 s38, s38, {LDS_TR}")
    e(f"v_mul_u32_u24 v{vTR}, {TRS}, v{T+6}")
    e(f"v_lshl_add_u32 v{vTR}, v{T+7}, 4, v{vTR}")
    e(f"v_add_u32 v{vTR}, s38, v{vTR}")
    e(f"v_mul_u32_u24 v{vTW}, {TRS}, v{T+1}")
    e(f"v_lshl_add_u32 v{vTW}, v{T+2}, 4, v{vTW}")
    e(f"v_add_u32 v{vTW}, s38, v{vTW}")
    e(f"v_mov_b32 v{TMP+1}, v{vTW}")
    e(f"v_lshlrev_b32 v{vTC}, 6, v{T}")
    e(f"v_lshlrev_b32 v{T+3}, 3, v{T+2}")
    e(f"s_mul_i32 s35, s24, {8*RS}")
    e(f"s_add_u32 s36, s35, {BUF1}")
    e(f"v_add_u32 v{TT+2}, s36, v{vDX}")
    e(f"v_add_u32 v{TT+3}, s38, v{vDX}")
    Z = TT + 28
    for i in range(4):
        e(f"v_mov_b32 v{Z+i}, 0")
    e(f"v_mov_b32 v{TT+32}, {PADOFF | (PADOFF << 16):#x}")
    e(f"v_add_u32 v{TT+33}, s38, v{TT+0}")
    for j in range(2):
        for c in range(RCH):
            e(f"ds_write_b128 v{TT+2}, v[{Z}:{Z+3}] offset:{(4*j + (c>>1))*RS + (c&1)*1024}")
        e(f"ds_write_b128 v{TT+3}, v[{Z}:{Z+3}] offset:{j*1024}")
    e(f"ds_write_b32 v{TT+33}, v{TT+32} offset:2048")
    e(f"v_mov_b32 v{T+6}, 0x3f803f80")
    e(f"v_mov_b32 v{T+7}, 0x3f803f80")
    e(f"ds_write_b64 v{vRB}, v[{T+6}:{T+7}] offset:{PADOFF}")
    e(f"ds_write_b64 v{vRB}, v[{T+6}:{T+7}] offset:{BUF1+PADOFF}")
    e("s_cmp_ge_u32 s2, 128")
    e("s_cbranch_scc1 L_prep_skip")
    e(f"buffer_load_dword v{GD+11}, v{GD+9}, s[72:75], 0 offen sc1")
    e(f"s_waitcnt vmcnt(0)")
    e("s_barrier")
    if cfg.PROF:
        e("s_memrealtime s[54:55]")
        e("s_waitcnt lgkmcnt(0)")
        e("s_mov_b32 s99, s54")
        e("s_mov_b32 s57, s56")
    e("s_cmp_lg_u32 s24, 0")
    e("s_cbranch_scc1 L_x0")
    e("s_mov_b32 s38, 1")
    e("s_memrealtime s[90:91]")
    e("s_branch L_nonce_chk")
    e("L_prep_skip:")
    e("s_cmp_lg_u32 s24, 0")
    e("s_cbranch_scc1 L_x0")
    e("s_mov_b32 s38, 0")
    e("s_memrealtime s[90:91]")
    for _ in range(cfg.SLP0 // 64):
        e("s_sleep 64")
    e("L_nonce_poll:")
    e(f"buffer_load_dword v{GD+11}, v{GD+9}, s[72:75], 0 offen sc1")
    e("s_waitcnt vmcnt(0)")
    e("L_nonce_chk:")
    e(f"v_readfirstlane_b32 s89, v{GD+11}")
    e("s_memrealtime s[92:93]")
    e("s_waitcnt lgkmcnt(0)")
    e("s_sub_u32 s92, s92, s90")
    e("s_cmp_lg_u32 s89, 0")
    e("s_cbranch_scc1 L_nonce_ok")
    e("s_sleep 8")
    e(f"s_cmp_lt_u32 s92, {cfg.TMO}")
    e("s_cbranch_scc1 L_nonce_poll")
    e("s_branch L_poll_fail")
    e("L_nonce_ok:")
    e("s_cmp_eq_u32 s38, 0")
    e("s_cbranch_scc1 L_poll_setup")
    e("s_lshl_b32 s36, s88, 6")
    e("s_add_u32 s36, s36, s87")
    e("s_lshl_b32 s36, s36, 7")
    e(f"s_add_u32 s36, s36, {WS_FLG:#x}")
    e(f"v_cmp_eq_u32 vcc, 0, v{vDX}")
    e("s_and_saveexec_b64 s[66:67], vcc")
    e(f"buffer_store_dword v{GD+11}, v{GD+9}, s[20:23], s36 offen sc1")
    e("s_mov_b64 exec, s[66:67]")
    e("L_poll_setup:")
    e("s_lshr_b32 s36, s27, 1")
    e("s_lshl_b32 s36, s36, 13")
    e(f"s_add_u32 s36, s36, {WS_FLG:#x}")
    e(f"v_lshlrev_b32 v{GD+12}, 3, v{vDX}")
    e("L_poll:")
    e(f"buffer_load_dword v{GD+11}, v{GD+12}, s[20:23], s36 offen sc1")
    e("s_memrealtime s[92:93]")
    e("s_waitcnt vmcnt(0) lgkmcnt(0)")
    e(f"v_cmp_ne_u32 vcc, s89, v{GD+11}")
    e("s_sub_u32 s92, s92, s90")
    e("s_cmp_eq_u64 vcc, 0")
    e("s_cbranch_scc1 L_poll_ok")
    if cfg.SLP: e(f"s_sleep {cfg.SLP}")
    e(f"s_cmp_lt_u32 s92, {cfg.TMO}")
    e("s_cbranch_scc1 L_poll")
    e("L_poll_fail:")
    e(f"v_mov_b32 v{GD+9}, 1")
    e("L_poll_ok:")
    if not cfg.WSC and cfg.INV:
        e("buffer_inv sc1")
        e("s_waitcnt vmcnt(0)")
    e(f"v_mov_b32 v{GD+10}, {LDS_SCR + 256}")
    e(f"ds_write_b32 v{GD+10}, v{GD+9}")
    e("s_waitcnt lgkmcnt(0)")
    e("s_branch L_sync_wait")
    e("L_x0:")
    e("s_sub_u32 s36, s24, 1")
    if cfg.XEARLY:
        e("s_cmp_lt_u32 s2, 128")
        e("s_cbranch_scc1 L_x0_done")
    e("s_mul_i32 s38, s36, 11")
    e("s_add_u32 s39, s38, 11")
    e("s_min_u32 s39, s39, 32")
    e("X0LOOP")
    e("L_x0_done:")
    e(f"s_mov_b32 m0, {LDS_SCR}")
    e("s_lshl_b32 s40, s27, 14")
    e("s_add_u32 s40, s40, s37")
    e("s_lshl_b32 s38, s36, 12")
    e("s_add_u32 s40, s40, s38")
    for tb in range(1, cfg.TD):
        e(f"s_add_u32 s38, s40, {tb * 0x10000}")
        e(f"buffer_load_dword v{vTC}, s[12:15], s38 offen lds")
        e(f"s_add_u32 s38, s40, {tb * 0x10000 + 4096}")
        e(f"buffer_load_dword v{vTC}, s[12:15], s38 offen lds")
    e("L_sync_wait:")
    if cfg.PROF:
        e("s_memrealtime s[58:59]")
        e("s_waitcnt lgkmcnt(0)")
        e("s_mov_b32 s100, s58")
    e("s_barrier")
    e(f"v_mov_b32 v{GD+10}, {LDS_SCR + 256}")
    e(f"ds_read_b32 v{GD+9}, v{GD+10}")
    e("s_waitcnt lgkmcnt(0)")
    e(f"v_readfirstlane_b32 s95, v{GD+9}")
    e("s_mov_b32 s87, 0")
    e("s_lshr_b32 s88, s27, 1")
    e("s_cmp_lg_u32 s95, 0")
    e("s_cbranch_scc1 L_prep_again")
    e("L_sync_done:")
    if cfg.PROF:
        e("s_mov_b32 s94, s57")
        e("s_mov_b32 s95, s99")
    if cfg.DBG:
        e("s_memrealtime s[100:101]")
    if cfg.PROF:
        e("s_memtime s[54:55]")
        e("s_memrealtime s[60:61]")
        e("s_waitcnt lgkmcnt(0)")
        e("s_sub_u32 s53, s54, s48")
        e("s_mov_b32 s101, s60")
    e(f"s_mul_i32 s38, s24, {32*TRS}")
    e(f"s_add_u32 s38, s38, {LDS_TR}")
    for j in range(2):
        e("s_lshl_b32 s36, s28, 9")
        e(f"s_add_u32 s36, s36, {WS_CNT + j*256:#x}")
        vm_issue("ent", f"buffer_load_dword v{TT+4+12*j}, v{TT+0}, s[20:23], s36 offen sc1")
        e("s_lshl_b32 s36, s28, 17")
        e(f"s_add_u32 s36, s36, {WS_ENT + j*0x10000:#x}")
        vm_issue("ent", f"buffer_load_dwordx4 v[{TT+8+12*j}:{TT+11+12*j}], v{TT+1}, s[20:23], s36 offen sc1")
        vm_issue("ent", f"buffer_load_dwordx4 v[{TT+12+12*j}:{TT+15+12*j}], v{TT+1}, s[20:23], s36 offen offset:16 sc1")
    e("s_lshl_b32 s36, s28, 7")
    vm_issue("bias", f"buffer_load_ushort v{BIA}, v{T+5}, s[44:47], s36 offen")
    vm_issue("bias", f"buffer_load_ushort v{BIA+4}, v{T+5}, s[44:47], s36 offen offset:64")
    e("s_lshl_b32 s36, s28, 13")
    e(f"s_add_u32 s36, s36, {WS_WI:#x}")
    for j in range(2):
        for u in range(4):
            b = IDX + j * 16 + u * 4
            if j == 1 and u == 0:
                e("s_add_u32 s36, s36, 0x1000")
            vm_issue("W", f"buffer_load_dwordx4 v[{b}:{b+3}], v{vDX}, s[20:23], s36 offen offset:{u*1024}" + (" sc1" if cfg.WSC else ""))
    e("s_lshl_b32 s42, s28, 16")
    e(f"s_add_u32 s42, s42, {WS_WA:#x}")
    e("s_add_u32 s43, s42, 0x8000")
    def w_loads(s0, s1):
        for s in range(s0, s1):
            if s % 4 == 0 and s:
                e("s_add_u32 s42, s42, 0x1000")
                e("s_add_u32 s43, s43, 0x1000")
            for j in range(2):
                if cfg.WDMA and j == 1 and s >= 16:
                    continue
                if True:
                    vm_issue("W", f"buffer_load_dwordx4 {A(j,s)}, v{vDX}, s[20:23], s{42+j} offen offset:{(s%4)*1024}" + (" sc1" if cfg.WSC else ""))
    w_loads(0, 12)
    wait(vtag="ent")
    C = TT + 34; S = TT + 35; E = TT + 36; t = TT + 37
    e("s_mov_b32 s58, 0")
    e(f"s_add_u32 s59, s35, {BUF1}")
    e("s_mov_b32 s60, s38")
    e(f"s_add_u32 s61, s38, 2048")
    e("L_bj:")
    e("s_set_gpr_idx_on s58, 0x1")
    e("s_nop 0")
    e(f"v_mov_b32 v{C}, v{TT+4}")
    e("s_set_gpr_idx_off")
    e(f"v_mov_b32 v{S}, v{C}")
    e(f"v_cmp_lt_u32 vcc, 8, v{C}")
    for sh in (1, 2, 4, 8):
        e("s_nop 0")
        e(f"v_add_u32_dpp v{S}, v{S}, v{S} row_shr:{sh} row_mask:0xf bank_mask:0xf bound_ctrl:0")
        e("s_nop 0")
    e("s_nop 0")
    e(f"v_add_u32_dpp v{S}, v{S}, v{S} row_bcast:15 row_mask:0xa bank_mask:0xf")
    e("s_nop 1")
    e(f"v_add_u32_dpp v{S}, v{S}, v{S} row_bcast:31 row_mask:0xc bank_mask:0xf")
    e("s_nop 1")
    e(f"v_readlane_b32 s36, v{S}, 63")
    e(f"v_sub_u32 v{S}, v{S}, v{C}")
    e("s_cmp_lg_u64 vcc, 0")
    e("s_cselect_b32 s62, 1, 0")
    e(f"s_cmp_gt_u32 s36, {8*RCH}")
    e("s_cselect_b32 s62, 1, s62")
    e("s_add_u32 s36, s36, 7")
    e("s_lshr_b32 s36, s36, 3")
    e("s_cmp_eq_u32 s62, 0")
    e("s_cselect_b32 s36, s36, 0")
    e("s_cmp_eq_u32 s58, 0")
    e("s_cselect_b32 s30, s36, s30")
    e("s_cselect_b32 s64, s62, s64")
    e("s_mov_b32 s31, s36")
    e("s_mov_b32 s65, s62")
    e("s_cmp_lg_u32 s62, 0")
    e("s_cbranch_scc1 L_bj_next")
    e("s_mov_b32 s63, 0")
    e("L_be:")
    e(f"v_cmp_lt_u32 vcc, s63, v{C}")
    e("s_and_saveexec_b64 s[66:67], vcc")
    e("s_cbranch_execz L_be_done")
    e("s_add_u32 s36, s58, s63")
    e("s_set_gpr_idx_on s36, 0x1")
    e("s_nop 0")
    e(f"v_mov_b32 v{E}, v{TT+8}")
    e("s_set_gpr_idx_off")
    e(f"v_add_u32 v{t}, s63, v{S}")
    e(f"v_lshrrev_b32 v{t+1}, 3, v{t}")
    e(f"v_bfe_u32 v{t+2}, v{t}, 2, 1")
    e(f"v_and_b32 v{t+3}, 3, v{t}")
    e(f"v_lshrrev_b32 v{t+4}, 26, v{E}")
    e(f"v_lshl_add_u32 v{t+4}, v{t+2}, 5, v{t+4}")
    e(f"v_lshlrev_b32 v{t+4}, 4, v{t+4}")
    e(f"v_lshrrev_b32 v{t+5}, 1, v{t+1}")
    e(f"v_and_b32 v{t+6}, 1, v{t+1}")
    e(f"v_mul_u32_u24 v{t+7}, {RS}, v{t+5}")
    e(f"v_lshl_add_u32 v{t+7}, v{t+6}, 10, v{t+7}")
    e(f"v_add3_u32 v{t+7}, v{t+7}, v{t+4}, s59")
    e(f"v_lshl_add_u32 v{t+7}, v{t+3}, 2, v{t+7}")
    e(f"ds_write_b16 v{t+7}, v{E}")
    e(f"v_lshl_add_u32 v{t+8}, v{t+5}, 2, v{t+4}")
    e(f"v_add_u32 v{t+8}, s60, v{t+8}")
    e(f"v_lshlrev_b32 v{t+9}, 4, v{t+6}")
    e(f"v_lshl_add_u32 v{t+9}, v{t+3}, 2, v{t+9}")
    e(f"v_bfe_u32 v{t+10}, v{E}, 24, 2")
    e(f"v_lshlrev_b32 v{t+10}, v{t+9}, v{t+10}")
    e(f"ds_or_b32 v{t+8}, v{t+10}")
    e(f"v_lshlrev_b32 v{t+8}, 4, v{t+1}")
    e(f"v_bfe_u32 v{t+9}, v{t}, 1, 1")
    e(f"v_lshl_add_u32 v{t+8}, v{t+9}, 3, v{t+8}")
    e(f"v_lshl_add_u32 v{t+8}, v{t+2}, 2, v{t+8}")
    e(f"v_and_b32 v{t+9}, 1, v{t}")
    e(f"v_lshl_add_u32 v{t+8}, v{t+9}, 1, v{t+8}")
    e(f"v_add_u32 v{t+8}, s61, v{t+8}")
    e(f"v_bfe_u32 v{t+10}, v{E}, 16, 8")
    e(f"v_lshlrev_b32 v{t+10}, 3, v{t+10}")
    e(f"ds_write_b16 v{t+8}, v{t+10}")
    e("s_mov_b64 exec, s[66:67]")
    e("s_add_u32 s63, s63, 1")
    e("s_cmp_lt_u32 s63, 8")
    e("s_cbranch_scc1 L_be")
    e("L_be_done:")
    e("s_mov_b64 exec, s[66:67]")
    e("L_bj_next:")
    e("s_add_u32 s58, s58, 12")
    e(f"s_add_u32 s59, s59, {4*RS}")
    e("s_add_u32 s60, s60, 1024")
    e("s_add_u32 s61, s61, 128")
    e("s_cmp_lt_u32 s58, 24")
    e("s_cbranch_scc1 L_bj")
    e(f"v_add_u32 v{TT+33}, s38, v{T+3}")
    for j in range(2):
        for c in range(RCH):
            b = RAF + (j * RCH + c) * 4
            e(f"ds_read_b128 v[{b}:{b+3}], v{TT+2} offset:{(4*j + (c>>1))*RS + (c&1)*1024}")
            b = RPK + (j * RCH + c) * 2
            e(f"ds_read_b64 v[{b}:{b+1}], v{TT+33} offset:{2048 + j*128 + c*16}")
        e(f"ds_read_b128 v[{RIX+j*4}:{RIX+j*4+3}], v{TT+3} offset:{j*1024}")
    if cfg.WDMA:
        e("s_lshl_b32 s36, s28, 16")
        e(f"s_add_u32 s36, s36, {WS_WA + 0x8000 + 16*1024:#x}")
        e("s_waitcnt lgkmcnt(0)")
        for r in range(8):
            e(f"s_add_u32 m0, s35, {r*RS + BUF1}")
            if r: e("s_add_u32 s36, s36, 2048")
            else: e("s_nop 0")
            vm_issue("WD", f"buffer_load_dwordx4 v{vDX}, s[20:23], s36 offen" + (" sc1" if cfg.WSC else "") + " lds")
            vm_issue("WD", f"buffer_load_dwordx4 v{vDX}, s[20:23], s36 offen offset:1024" + (" sc1" if cfg.WSC else "") + " lds")
    w_loads(12, 32)
    if cfg.WDMA:
        wait(vtag="WD")
        for s_ in range(16, 32):
            k = s_ - 16
            e(f"ds_read_b128 {A(1,s_)}, v{TT+2} offset:{(k>>1)*RS + (k&1)*1024}")
    e("s_lshl_b32 s37, s26, 19")
    e("s_lshl_b32 s33, s24, 14")
    e("s_add_u32 s37, s37, s33")
    e("s_add_u32 s37, s37, 0x10000")
    e("s_lshl_b32 s41, s26, 19")
    e("s_lshl_b32 s33, s27, 14")
    e("s_add_u32 s41, s41, s33")
    e("s_lshl_b32 s33, s24, 12")
    e("s_add_u32 s41, s41, s33")
    e(f"s_add_u32 s41, s41, {cfg.TD * 0x10000}")
    e("s_lshl_b32 s33, s26, 19")
    e("s_lshl_b32 s36, s28, 7")
    e("s_add_u32 s33, s33, s36")
    e("s_mov_b32 s34, 0x40000000")
    e("s_mov_b32 s39, 0")
    e(f"s_mov_b32 s29, {BUF1}")
    e(f"s_add_u32 s32, s35, {BUF1}")
    wait(vtag="bias")
    e(f"v_cmp_eq_u32 vcc, 0, v{T+2}")
    for i in (1, 2, 3, 5, 6, 7):
        e(f"v_mov_b32 v{BIA+i}, 0")
    e(f"v_cndmask_b32 v{BIA}, 0, v{BIA}, vcc")
    e(f"v_cndmask_b32 v{BIA+4}, 0, v{BIA+4}, vcc")
    e(f"v_mov_b32 v{ONE}, 0x3f80")
    for i in (1, 2, 3):
        e(f"v_mov_b32 v{ONE+i}, 0")
    e("s_waitcnt vmcnt(0) lgkmcnt(0)")
    e("s_barrier")
    if cfg.PROF:
        e("s_memtime s[50:51]")
        e("s_waitcnt lgkmcnt(0)")
    if cfg.DBG:
        e("s_memrealtime s[50:51]")
        e("s_waitcnt lgkmcnt(0)")
    vm.clear()

    def init_acc(j):
        return f"v_mfma_f32_32x32x16_bf16 {acc(j)}, v[{BIA+4*j}:{BIA+4*j+3}], v[{ONE}:{ONE+3}], 0"

    def b_reads(s):
        b = bf(s)
        base = 64 * s
        return [("ds", ("B", s), f"ds_read_b128 v[{b}:{b+3}], v{vLB} offset:{base}"),
                ("ds", ("B", s), f"ds_read_b128 v[{b+4}:{b+7}], v{vLB} offset:{base+32}")]

    def g_items(j, c, gs, tag):
        r = []
        pk = RPK + (j * RCH + c) * 2
        for pb in range(4):
            d = GD + gs * 8 + 2 * pb
            r.append(("raw", f"v_add_u32_sdwa v{d}, v{vRB}, v{pk + (pb>>1)} dst_sel:DWORD dst_unused:UNUSED_PAD src0_sel:DWORD src1_sel:WORD_{pb&1}" if not cfg.RNOA else "s_nop 0"))
        for pb in range(4):
            d = GD + gs * 8 + 2 * pb
            r.append(("ds", tag, f"ds_read_b64 v[{d}:{d+1}], v{d}") if not cfg.RNOG else ("dsx", tag))
        return r

    uid = [0]
    def gather_block(j, c, gs):
        uid[0] += 1
        lbl = f"L_g{uid[0]}"
        e(f"s_cmp_le_u32 s{30+j}, {c}")
        e(f"s_cbranch_scc1 {lbl}")
        for it in g_items(j, c, gs, None):
            e(it[-1])
        e(f"{lbl}:")
        ds.append(("Gmark", j, c))
    def mfma_block(j, c, gs):
        cond = c >= RU
        if cond:
            uid[0] += 1
            lbl = f"L_m{uid[0]}"
            e(f"s_cmp_le_u32 s{30+j}, {c}")
            e(f"s_cbranch_scc1 {lbl}")
            wait(dtag=("Gmark", j, c))
        elif not cfg.RNOG:
            wait(dtag=("G", j, c))
        ra = RAF + (j * RCH + c) * 4
        if not cfg.RNOM: e(f"v_smfmac_f32_32x32x32_bf16 {acc(j)}, v[{ra}:{ra+3}], v[{GD+gs*8}:{GD+gs*8+7}], v{RIX + j*4 + (c>>1)}" + (" abid:1" if c & 1 else ""))
        if cond:
            e(f"{lbl}:")

    def emit_items(items):
        for x in items:
            if x[0] == "raw": e(x[1])
            elif x[0] == "ds": ds_issue(x[1], x[2])
            elif x[0] == "vm": vm_issue(x[1], x[2])
            elif x[0] == "G": gather_block(*x[1:])
            elif x[0] == "M": mfma_block(*x[1:])
            elif x[0] == "W": wait(dtag=x[1])
            elif x[0] == "dsx": ds.append(("Gmark", x[1])); ds.append(x[1]) if False else None
            else: raise Exception(x)

    def epilogue_items():
        if cfg.PERM == 2:
            wr = [("raw", f"v_permlane16_swap_b32 v{EP + 8*(i>>2) + (i&3)}, v{EP + 8*(i>>2) + 4 + (i&3)}") for i in range(8)]
            for pr in range(2):
                a = EP + 4 * pr; b = EP + 8 + 4 * pr
                wr += [("raw", f"v_mov_b32 v{TMP+i}, v{a+i}") for i in range(4)]
                wr += [("raw", f"v_mov_b32_dpp v{a+i}, v{b+i} row_ror:8 row_mask:0xf bank_mask:0xc") for i in range(4)]
                wr += [("raw", f"v_mov_b32_dpp v{b+i}, v{TMP+i} row_ror:8 row_mask:0xf bank_mask:0x3") for i in range(4)]
            st = []
            for i, a in enumerate((EP, EP + 8, EP + 4, EP + 12)):
                st.append(("raw", f"s_add_u32 s38, s34, {i*8*2048}"))
                st.append(("vm", "st", f"buffer_store_dwordx4 v[{a}:{a+3}], v{vST}, s[16:19], s38 offen" + ["", " nt", " sc1", " sc0 sc1", " sc1 nt"][cfg.STM]))
            return wr, [], st
        if cfg.PERM:
            wr = [("raw", f"v_permlane16_swap_b32 v{EP + 8*(i>>2) + (i&3)}, v{EP + 8*(i>>2) + 4 + (i&3)}") for i in range(8)]
            st = []
            for i in range(4):
                a = EP + 4 * i
                st.append(("raw", f"s_add_u32 s38, s34, {(i&1)*16*2048}"))
                st.append(("vm", "st", f"buffer_store_dwordx4 v[{a}:{a+3}], v{vST}, s[16:19], s38 offen offset:{64*(i>>1)}" + ["", " nt", " sc1", " sc0 sc1", " sc1 nt"][cfg.STM]))
            return wr, [], st
        wr = [("ds", "tw", f"ds_write_b128 v{vTW}, v[{EP+4*i}:{EP+4*i+3}] offset:{32*i}") for i in range(4)]
        rb = []; st = []
        for i in range(4):
            a = EP + 4 * i
            rb.append(("ds", ("tr", i), f"ds_read_b128 v[{a}:{a+3}], v{vTR} offset:{i*8*TRS}"))
            st.append(("W", ("tr", i)))
            st.append(("raw", f"s_add_u32 s38, s34, {i*8*2048}"))
            st.append(("vm", "st", f"buffer_store_dwordx4 v[{a}:{a+3}], v{vST}, s[16:19], s38 offen" + ["", " nt", " sc1", " sc0 sc1", " sc1 nt"][cfg.STM]))
        return wr, rb, st

    if cfg.SEG:
        for i in range(80, 88): e(f"s_mov_b32 s{i}, 0")
        e("s_memtime s[76:77]")
        e("s_waitcnt lgkmcnt(0)")
        e("s_mov_b32 s79, s76")
    e(init_acc(0))
    for s in range(PD):
        emit_items(b_reads(s))

    e("L_loop:")
    rq = []
    def at(g, items):
        for it in items:
            rq.append((g, it))
    order = [(j, c) for c in range(RCH) for j in range(2)] if not cfg.NORES else []
    for z, (j, c) in enumerate(order):
        g0 = int(min(cfg.RPER, (2 * (32 - PD) - 1 - cfg.RLAT) * 10 // 15) * z / 10)
        if c >= RU:
            at(g0, [("G", j, c, z & 1)])
        else:
            gi = g_items(j, c, z & 1, ("G", j, c))
            if cfg.GSPREAD:
                at(g0, [gi[0], gi[1], gi[4]]); at(g0 + 1, [gi[5], gi[2]]); at(g0 + 2, [gi[6], gi[3]]); at(g0 + 3, [gi[7]])
            else:
                at(g0, gi[:4]); at(g0 + 1, gi[4:])
        at(g0 + cfg.RLAT, [("M", j, c, z & 1)])
    if not cfg.NODMA:
        for r in range(8):
            at(cfg.DG0 + cfg.DGS * r, [("raw", f"s_add_u32 m0, s32, {r*RS}"), ("raw", f"s_add_u32 s36, s40, {r*2048}"),
                             ("vm", "Xn", f"buffer_load_dwordx4 v{vDX}, s[12:15], s36 offen lds")])
            at(cfg.DG0 + cfg.DGS * r + cfg.DGS // 2, [("vm", "Xn", f"buffer_load_dwordx4 v{vDX}, s[12:15], s36 offen offset:1024 lds")])
        at(cfg.DG0 + cfg.DGS * 8, [("raw", f"s_mov_b32 m0, {LDS_SCR}"), ("raw", "s_nop 0"), ("vm", "touch", f"buffer_load_dword v{vTC}, s[12:15], s42 offen lds")])
    if not cfg.NOEPI:
        wr, rb, st = epilogue_items()
        if cfg.PERM:
            for i in range(0, len(wr), 4):
                at(cfg.EW0 + i // 4, wr[i:i+4])
            for i in range(4):
                at(cfg.ES0 + cfg.ESS * i, st[2*i:2*i+2])
        elif not cfg.NOTR:
            for i in range(4):
                at(cfg.EW0 + cfg.EWS * i, [wr[i]])
            for i in range(4):
                at(cfg.ER0 + cfg.ERS * i, [rb[i]])
        for i in range(4):
            if not cfg.NOST and not cfg.PERM:
                at(cfg.ES0 + cfg.ESS * i, st[3*i + (1 if cfg.NOTR else 0):3*i+3])
    rq.sort(key=lambda t: t[0])
    def fill(gap):
        while rq and rq[0][0] <= gap:
            emit_items([rq.pop(0)[1]])

    e("s_cmp_lt_u32 s39, 7")
    e("s_cselect_b32 s40, s37, 0x40000000")
    e(f"s_cmp_lt_u32 s39, {8 - cfg.TD}")
    e("s_cselect_b32 s42, s41, 0x40000000")
    def M(j, s):
        e(f"v_smfmac_f32_32x32x32_bf16 {acc(j)}, {A(j,s)}, v[{bf(s)}:{bf(s)+7}], v{IDX + 16*j + (s>>1)}" + (" abid:1" if s & 1 else ""))
    def cvt(j, lo, hi):
        for i in range(lo, hi):
            e(f"v_cvt_pk_bf16_f32 v{EP+8*j+i}, v{ACC+16*j+2*i}, v{ACC+16*j+2*i+1}")
    def slow_path():
        e("s_or_b32 s36, s64, s65")
        e("s_cbranch_scc0 L_sp_end")
        e(f"v_lshrrev_b32 v{GD+13}, 4, v{vDX}")
        for r in (2, 3, 4, 5, 6, 7, 9, 10, 11):
            e(f"v_mov_b32 v{GD+r}, 0")
        e("s_mov_b32 s58, 0")
        e("L_sp_kr:")
        e("s_cmp_lt_u32 s58, 64")
        e("s_cselect_b32 s36, s64, s65")
        e("s_cmp_eq_u32 s36, 0")
        e("s_cbranch_scc1 L_sp_nx")
        e("s_lshl_b32 s59, s28, 7")
        e("s_add_u32 s59, s59, s58")
        e("s_lshl_b32 s60, s59, 2")
        e(f"buffer_load_dword v{GD+15}, v{GD+9}, s[20:23], s60 offen offset:{WS_CNT} sc1")
        e("s_lshl_b32 s59, s59, 10")
        e(f"s_add_u32 s59, s59, {WS_ENT:#x}")
        e("s_waitcnt vmcnt(0)")
        e(f"v_readfirstlane_b32 s60, v{GD+15}")
        e("s_nop 3")
        e("s_cmp_eq_u32 s60, 0")
        e("s_cbranch_scc1 L_sp_nx")
        e("L_sp_e:")
        e(f"buffer_load_dword v{GD+15}, v{GD+9}, s[20:23], s59 offen sc1")
        e("s_waitcnt vmcnt(0)")
        e(f"v_readfirstlane_b32 s62, v{GD+15}")
        e("s_nop 3")
        e("s_lshr_b32 s63, s62, 26")
        e(f"v_cmp_eq_u32 vcc, s63, v{GD+13}")
        e("s_and_b32 s63, s62, 0xffff")
        e(f"v_mov_b32 v{GD+14}, s63")
        e("s_bfe_u32 s63, s62, 0x80010")
        e("s_lshl_b32 s63, s63, 3")
        e(f"v_add_u32 v{GD}, s63, v{vRB}")
        e(f"v_cndmask_b32 v{GD+8}, 0, v{GD+14}, vcc")
        e("s_bfe_u32 s63, s62, 0x20018")
        e(f"v_mov_b32 v{GD+12}, s63")
        e(f"ds_read_b64 v[{GD}:{GD+1}], v{GD}")
        e("s_waitcnt lgkmcnt(0)")
        e("s_cmp_lt_u32 s58, 64")
        e("s_cbranch_scc0 L_sp_j1")
        e(f"v_smfmac_f32_32x32x32_bf16 {acc(0)}, v[{GD+8}:{GD+11}], v[{GD}:{GD+7}], v{GD+12}")
        e("s_branch L_sp_jd")
        e("L_sp_j1:")
        e(f"v_smfmac_f32_32x32x32_bf16 {acc(1)}, v[{GD+8}:{GD+11}], v[{GD}:{GD+7}], v{GD+12}")
        e("L_sp_jd:")
        e("s_add_u32 s59, s59, 4")
        e("s_sub_u32 s60, s60, 1")
        e("s_cmp_lg_u32 s60, 0")
        e("s_nop 4")
        e("s_cbranch_scc1 L_sp_e")
        e("L_sp_nx:")
        e("s_add_u32 s58, s58, 1")
        e("s_cmp_lt_u32 s58, 128")
        e("s_cbranch_scc1 L_sp_kr")
        e("L_sp_end:")
    assert PD == 3 and NB == 4
    wait(dtag=("B", 0))
    M(0, 0)
    cvt(1, 0, 4)
    emit_items(b_reads(3)[:1])
    wait(dtag=("B", 1))
    M(0, 1)
    cvt(1, 4, 8)
    emit_items(b_reads(3)[1:])
    e(init_acc(1))
    fill(0); fill(1)
    M(1, 0)
    emit_items(b_reads(4)[:1])
    fill(2)
    M(1, 1)
    emit_items(b_reads(4)[1:])
    fill(3)
    for s in range(2, 30):
        wait(dtag=("B", s))
        M(0, s)
        sn = s + PD
        rd = b_reads(sn) if sn < 32 else []
        emit_items(rd[:1])
        fill(2 * s)
        M(1, s)
        for _ in range(cfg.XMF):
            e(f"v_mfma_f32_32x32x16_bf16 {acc(1)}, v[{ONE}:{ONE+3}], v[{BIA+1}:{BIA+4}], {acc(1)}" if False else f"v_mfma_f32_16x16x32_bf16 v[{BIA+0}:{BIA+3}], v[{ONE}:{ONE+3}], v[{ONE}:{ONE+3}], v[{BIA+0}:{BIA+3}]" if False else f"v_smfmac_f32_32x32x32_bf16 {acc(1)}, v[{BIA+1-1+0}:{BIA+3}], v[{bf(s)}:{bf(s)+7}], v{RIX}" if False else "s_sleep 1")
        emit_items(rd[1:])
        fill(2 * s + 1)
        if s == 28:
            assert not rq, len(rq)
            slow_path()
        if s == 29:
            if cfg.PROF:
                e("s_memtime s[54:55]")
            if cfg.NODMA:
                e("s_waitcnt lgkmcnt(0)")
            else:
                e(f"s_waitcnt vmcnt({min(vm_n('Xn'),63)}) lgkmcnt(0)")
            e("s_barrier")
            if cfg.PROF:
                e("s_memtime s[56:57]")
                e("s_waitcnt lgkmcnt(0)")
                e("s_sub_u32 s56, s56, s54")
                e("s_add_u32 s52, s52, s56")
            e(f"v_add_u32 v{vLB}, s29, v{vLB}")
            e(f"v_add_u32 v{vRB}, s29, v{vRB}")
            emit_items(b_reads(0))
    M(0, 30)
    emit_items(b_reads(1))
    e("s_sub_u32 s32, s32, s29")
    e("s_sub_u32 s29, 0, s29")
    M(0, 31)
    e("s_mov_b32 s34, s33")
    e("s_add_u32 s33, s33, 0x10000")
    e("s_add_u32 s37, s37, 0x10000")
    e("s_add_u32 s41, s41, 0x10000")
    e("s_add_u32 s39, s39, 1")
    M(1, 30)
    emit_items(b_reads(2))
    e("s_cmp_lt_u32 s39, 8")
    e("s_nop 2")
    M(1, 31)
    cvt(0, 0, 8)
    e(init_acc(0))
    e("s_cbranch_scc1 L_loop")
    e("s_nop 7")
    cvt(1, 0, 8)
    wr, rb, st = epilogue_items()
    e("s_nop 1")
    emit_items(wr); emit_items(rb); emit_items(st)
    if cfg.PROF:
        e("s_memtime s[54:55]")
        e("s_memrealtime s[98:99]")
        e("s_waitcnt lgkmcnt(0)")
        e("s_sub_u32 s56, s50, s48")
        e("s_sub_u32 s57, s54, s50")
        e("s_sub_u32 s48, s98, s96")
        e("s_nop 4")
        e(f"v_mov_b32 v{GD}, s56")
        e(f"v_mov_b32 v{GD+1}, s52")
        e(f"v_mov_b32 v{GD+2}, s57")
        e(f"v_mov_b32 v{GD+3}, s48")
        e("s_lshl_b32 s36, s2, 2")
        e("s_add_u32 s36, s36, s24")
        e("s_lshl_b32 s36, s36, 4")
        e("s_add_u32 s36, s36, 0x8000000")
        e(f"v_mov_b32 v{GD+8}, 0")
        e(f"v_mov_b32 v{GD+4}, s94")
        e(f"v_mov_b32 v{GD+5}, s95")
        e(f"v_mov_b32 v{GD+6}, s53")
        e(f"v_mov_b32 v{GD+7}, 0")
        e(f"buffer_store_dwordx4 v[{GD}:{GD+3}], v{GD+8}, s[20:23], s36 offen")
        e("s_add_u32 s36, s36, 0x100000")
        e(f"buffer_store_dwordx4 v[{GD+4}:{GD+7}], v{GD+8}, s[20:23], s36 offen")
        e("s_nop 2")
        e(f"v_mov_b32 v{GD+4}, s96")
        e(f"v_mov_b32 v{GD+5}, s100")
        e(f"v_mov_b32 v{GD+6}, s101")
        e(f"v_mov_b32 v{GD+7}, s98")
        e("s_add_u32 s36, s36, 0x100000")
        e(f"buffer_store_dwordx4 v[{GD+4}:{GD+7}], v{GD+8}, s[20:23], s36 offen")
        if cfg.SEG:
            e("s_nop 2")
            for i in range(8): e(f"v_mov_b32 v{GD+i}, s{80+i}")
            e("s_add_u32 s36, s36, 0x100000")
            e(f"buffer_store_dwordx4 v[{GD}:{GD+3}], v{GD+8}, s[20:23], s36 offen")
            e("s_add_u32 s36, s36, 0x100000")
            e(f"buffer_store_dwordx4 v[{GD+4}:{GD+7}], v{GD+8}, s[20:23], s36 offen")
    if cfg.DBG:
        e("s_memrealtime s[56:57]")
        e("s_waitcnt vmcnt(0)")
        e("s_memrealtime s[98:99]")
        e("s_waitcnt lgkmcnt(0)")
        e("s_sub_u32 s98, s98, s96")
        e("s_sub_u32 s100, s100, s96")
        e("s_sub_u32 s50, s50, s96")
        e("s_sub_u32 s56, s56, s96")
        e(f"v_mov_b32 v{GD}, s100")
        e(f"v_mov_b32 v{GD+1}, s50")
        e(f"v_mov_b32 v{GD+2}, s56")
        e(f"v_mov_b32 v{GD+3}, s98")
        e(f"v_mov_b32 v{GD+4}, 0")
        e("s_and_b32 s36, s2, 63")
        e("s_or_b32 s36, s36, s24")
        e("s_cbranch_scc1 L_main_end")
        e("s_lshr_b32 s36, s2, 6")
        e("s_lshl_b32 s36, s36, 4")
        e(f"v_cmp_eq_u32 vcc, 0, v{vDX}")
        e("s_and_saveexec_b64 s[66:67], vcc")
        e(f"buffer_store_dwordx4 v[{GD}:{GD+3}], v{GD+4}, s[72:75], s36 offen")
    e("L_main_end:")
    e("s_endpgm")


gen_main()
_n = 0
L2 = []
for ln in L:
    if ln.strip() == "X0LOOP":
        _n += 1
        L2 += [f"L_x0_loop{_n}:", f"    s_mul_i32 s40, s38, {RS}", "    s_mov_b32 m0, s40", "    s_lshl_b32 s40, s38, 11", "    s_add_u32 s40, s40, s37",
               "    buffer_load_dwordx4 v3, s[12:15], s40 offen lds", "    buffer_load_dwordx4 v3, s[12:15], s40 offen offset:1024 lds",
               "    s_add_u32 s38, s38, 1", "    s_cmp_lt_u32 s38, s39", f"    s_cbranch_scc1 L_x0_loop{_n}"]
    else:
        L2.append(ln)
L = L2

tail = """
.section .rodata,"a"
.p2align 6
.amdhsa_kernel standalone__structured_sparse_n_m__ragged_kernel
  .amdhsa_next_free_vgpr 512
  .amdhsa_next_free_sgpr 102
  .amdhsa_accum_offset 256
  .amdhsa_group_segment_fixed_size 0
  .amdhsa_kernarg_size 48
  .amdhsa_user_sgpr_count 2
  .amdhsa_user_sgpr_kernarg_segment_ptr 1
  .amdhsa_system_sgpr_workgroup_id_x 1
.end_amdhsa_kernel
"""
open(OUT, "w").write(hdr + "\n".join(L) + "\n" + tail)
print("wrote", OUT, len(L), "lines")
```
